```python
import torch

def _softmax(x, axis=-1):
    return torch.softmax(x, dim=axis)
def _gelu(x):
    return torch.nn.functional.gelu(x, approximate="tanh")
def _silu(x):
    return torch.nn.functional.silu(x)
def _sigmoid(x):
    return torch.sigmoid(x)
def _layernorm(x, axis=-1, eps=1e-5):
    m = x.mean(dim=axis, keepdim=True)
    v = x.var(dim=axis, keepdim=True, unbiased=False)
    return (x - m) / torch.sqrt(v + eps)
def _scatter_add(tgt, idx, src, axis=0):
    return tgt.clone().index_add_(axis, idx, src)
def _segment_sum(src, seg, n):
    out = torch.zeros((n,) + src.shape[1:], dtype=src.dtype)
    return out.index_add_(0, seg, src)
def _pad(x, pw):
    flat = tuple(v for pair in reversed(pw) for v in pair)
    return torch.nn.functional.pad(x, flat)

kernel_name = 'parallel_sum__gqa_block_cached__glu_gated_geglu__decode'

def setup_inputs():

    _w = (lambda a: (lambda t: t.to(torch.bfloat16) if t.is_floating_point() else t)(torch.as_tensor(a)))
    def _A_setup():
        B, Sq, D = 1, 1, 640
        Hq, Hkv, Sk, Dh = 32, 32, 8192, 192
        assert Hq % Hkv == 0, (Hq, Hkv)
        return {
            "x": _w((lambda *s: torch.randn(*s, dtype=torch.bfloat16) * 0.05)(B, Sq, D)),
            "k_cache": _w((lambda *s: torch.randn(*s, dtype=torch.bfloat16) * 1.6)(B, Hkv, Sk, Dh)),
            "v_cache": _w((lambda *s: torch.randn(*s, dtype=torch.bfloat16) * 0.8)(B, Hkv, Sk, Dh)),
            "wq": _w((lambda *s: torch.randn(*s, dtype=torch.bfloat16) * 1.6)(D, Hq * Dh) * (D ** -0.5)),
            "wo": _w((lambda *s: torch.randn(*s, dtype=torch.bfloat16) * 0.8)(Hq * Dh, D) * ((Hq * Dh) ** -0.5)),
        }
    _A_in = _A_setup()

    def _B_setup():
        B, S, Dm, Df = 1, 1, 640, 1536
        return {
            "x": _w((lambda *s: torch.randn(*s, dtype=torch.bfloat16) * 0.05)(B, S, Dm)),
            "w_gate": _w((lambda *s: torch.randn(*s, dtype=torch.bfloat16) * 0.4)(Dm, Df) * (Dm ** -0.5)),
            "w_up": _w((lambda *s: torch.randn(*s, dtype=torch.bfloat16) * 0.4)(Dm, Df) * (Dm ** -0.5)),
            "w_down": _w((lambda *s: torch.randn(*s, dtype=torch.bfloat16) * 0.4)(Df, Dm) * (Df ** -0.5)),
        }
    _B_in = _B_setup()

    return {
        "A_x": _A_in["x"],
        "A_k_cache": _A_in["k_cache"],
        "A_v_cache": _A_in["v_cache"],
        "A_wq": _A_in["wq"],
        "A_wo": _A_in["wo"],
        "B_x": _B_in["x"],
        "B_w_gate": _B_in["w_gate"],
        "B_w_up": _B_in["w_up"],
        "B_w_down": _B_in["w_down"],
    }

def reference(A_x, A_k_cache, A_v_cache, A_wq, A_wo, B_x, B_w_gate, B_w_up, B_w_down):
    def _A_ref(x, k_cache, v_cache, wq, wo):
        B, Sq, D = x.shape
        Hq, Dh = 32, 192
        Hkv = k_cache.shape[1]
        rep = Hq // Hkv
        q = (lambda x, *d: x.permute(*d))((x @ wq).reshape(B, Sq, Hq, Dh), 0, 2, 1, 3)
        k = (lambda x, n, axis: torch.repeat_interleave(x, n, dim=axis))(k_cache, rep, axis=1)
        v = (lambda x, n, axis: torch.repeat_interleave(x, n, dim=axis))(v_cache, rep, axis=1)
        scores = torch.einsum("bhqd,bhkd->bhqk", q, k) * (Dh ** -0.5)
        p = _softmax(scores, axis=-1)
        o = torch.einsum("bhqk,bhkd->bhqd", p, v)
        return (lambda x, *d: x.permute(*d))(o, 0, 2, 1, 3).reshape(B, Sq, Hq * Dh) @ wo

    def _B_ref(x, w_gate, w_up, w_down):
        g = torch.einsum("bsd,df->bsf", x, w_gate)
        u = torch.einsum("bsd,df->bsf", x, w_up)
        h = _gelu(g) * u
        return torch.einsum("bsf,fd->bsd", h, w_down)

    x = A_x
    xn = _layernorm(x, axis=-1)
    return x + _A_ref(xn, A_k_cache, A_v_cache, A_wq, A_wo) + _B_ref(xn, B_w_gate, B_w_up, B_w_down)
```

```python
import re
TRANS = ("v_exp_f32", "v_log_f32", "v_rcp_f32", "v_rsq_f32", "v_sqrt_f32", "v_sin_f32", "v_cos_f32")
def regs(tok):
    tok = tok.strip()
    tok = tok.lstrip("-")
    if tok.startswith("abs(") : tok = tok[4:-1]
    if tok.startswith("|"): tok = tok.strip("|")
    m = re.fullmatch(r"([vsa])(\d+)", tok)
    if m: return {(m.group(1), int(m.group(2)))}
    m = re.fullmatch(r"([vsa])\[(\d+):(\d+)\]", tok)
    if m: return {(m.group(1), i) for i in range(int(m.group(2)), int(m.group(3)) + 1)}
    if tok == "vcc": return {("s", 106), ("s", 107)}
    if tok == "exec": return {("s", 126), ("s", 127)}
    return set()
class Ins:
    def __init__(self, text):
        self.text = text
        t = text.split(";")[0].strip()
        self.label = t.endswith(":")
        self.directive = t.startswith(".") or t == ""
        p = t.split(None, 1)
        self.op = p[0] if p else ""
        ops = []
        if len(p) > 1:
            ops = [o.strip() for o in p[1].split(",")]
            last = ops[-1].split()
            self.mods = " ".join(last[1:]) if last else ""
            if last: ops[-1] = last[0]
            ops = [o.split()[0] for o in ops if o]
        else: self.mods = ""
        self.ops = ops
        op = self.op
        self.valu = op.startswith("v_") and not op.startswith("v_mfma")
        self.mfma = op.startswith("v_mfma")
        self.dpp = "_dpp" in op
        self.perml = op.startswith("v_permlane")
        self.trans = op in TRANS
        self.dot = op.startswith("v_dot2")
        self.rdl = op.startswith("v_readlane") or op.startswith("v_readfirstlane")
        self.vmem = op.startswith("buffer_") or op.startswith("global_")
        self.ds = op.startswith("ds_")
        self.store = self.vmem and ("store" in op or "atomic" in op)
        self.widestore = self.store and ("x3" in op or "x4" in op)
        R = [regs(o) for o in ops]
        self.w = set(); self.r = set(); self.srcc = set(); self.srcab = set()
        if self.mfma:
            self.w = R[0]; self.srcab = R[1] | R[2]; self.srcc = R[3]; self.r = self.srcab | self.srcc
        elif self.valu:
            self.w = set(R[0]); self.r = set().union(*R[1:]) if len(R) > 1 else set()
            if self.perml: self.w = R[0] | R[1]; self.r = R[0] | R[1]
            if op.startswith("v_fmac") or op.startswith("v_dot2c") or self.dpp: self.r |= R[0]
            if op.startswith("v_add_co") or op.startswith("v_addc_co"): self.w |= R[1]
        elif self.vmem:
            if self.store: self.r = set().union(*R)
            else: self.w = R[0]; self.r = set().union(*R[1:])
            self.sdata = R[0] if op.startswith("buffer_") else (R[1] if len(R) > 1 else set())
        elif self.ds:
            if "read" in op or "permute" in op or "swizzle" in op: self.w = R[0]; self.r = set().union(*R[1:])
            else: self.r = set().union(*R)
        elif op.startswith("s_") and ops:
            self.w = R[0]; self.r = set().union(*R[1:]) if len(R) > 1 else set()
    def states(self):
        if self.label or self.directive: return 0
        if self.op == "s_nop": return int(self.ops[0], 0) + 1
        return 1
def need(p, c):
    n = 0
    vw = {x for x in p.w if x[0] in "va"}; sw = {x for x in p.w if x[0] == "s"}
    if p.valu:
        if vw & c.r:
            if c.dpp or c.perml or c.mfma: n = max(n, 2)
            if c.rdl: n = max(n, 1)
            if p.trans and (c.valu or c.mfma): n = max(n, 1)
        if p.dot and (vw & (c.r | c.w)):
            same_acc = c.dot and c.op == p.op and not (vw & (set().union(*[regs(o) for o in c.ops[1:3]])))
            if not same_acc: n = max(n, 3)
        if sw & c.r:
            if c.valu: n = max(n, 4 if c.rdl else 2)
            if c.vmem: n = max(n, 5)
        if c.op.startswith("v_cndmask") and ("s", 106) in sw: n = max(n, 2)
    if p.mfma:
        if c.mfma:
            if vw & c.srcab: n = max(n, 8)
            if vw & c.srcc and vw != c.srcc: n = max(n, 6)
        elif vw & (c.r | c.w): n = max(n, 8)
        if c.valu and (p.srcc & c.w): n = max(n, 3)
    if p.widestore and (p.sdata & c.w) and (c.valu or c.mfma or c.vmem or c.ds): n = max(n, 2)
    return n
class Asm:
    def __init__(self): self.L = []
    def __call__(self, s):
        for line in s.split("\n"):
            line = line.strip()
            if line: self.L.append(line)
    def finish(self):
        out = []; hist = []
        for line in self.L:
            c = Ins(line)
            if not (c.label or c.directive or line.startswith(";")):
                d = 0; pad = 0
                for p in reversed(hist):
                    if d >= 8: break
                    pad = max(pad, need(p, c) - d)
                    d += p.states()
                if pad > 0:
                    nop = Ins(f"s_nop {pad-1}"); out.append("    " + nop.text); hist.append(nop)
                hist.append(c); hist = hist[-12:]
                out.append("    " + line)
            else:
                out.append(line)
        return "\n".join(out) + "\n"
```

```python
import sys
from asmlib import Asm
NAME = "parallel_sum__gqa_block_cached__glu_gated_geglu__decode"
HDR = open("cdna_kernels/" + NAME + ".s.ref").read().split("; Override launch")[0]
WS_ML, WS_O, WS_F, WS_Y = 0, 8192, 204800, 303104
WS_USED = 393216
L_P, L_Q, L_Y = 0, 6144, 6656
LDS_BYTES = 8704
DPPM = "row_mask:0xf bank_mask:0xf"
SPIN = 1 << 22
def srd(A, r, off, size):
    A(f"s_load_dwordx2 s[{r}:{r+1}], s[0:1], {off}")
    A(f"s_mov_b32 s{r+2}, {size}\ns_mov_b32 s{r+3}, 0x20000")
def red8(A, op, rs):
    for mod in ("quad_perm:[1,0,3,2]", "quad_perm:[2,3,0,1]", "row_half_mirror"):
        for r in rs: A(f"{op}_dpp v{r}, v{r}, v{r} {mod} {DPPM}")
def redhi(A, op, r, t, steps=(8, 16, 32)):
    if 8 in steps: A(f"{op}_dpp v{r}, v{r}, v{r} row_ror:8 {DPPM}")
    if 16 in steps: A(f"v_mov_b32 v{t}, v{r}\nv_permlane16_swap_b32 v{r}, v{t}\n{op} v{r}, v{r}, v{t}")
    if 32 in steps: A(f"v_mov_b32 v{t}, v{r}\nv_permlane32_swap_b32 v{r}, v{t}\n{op} v{r}, v{r}, v{t}")
def masks(A):
    A("v_and_b32 v2, 1, v0\nv_lshlrev_b32 v2, 4, v2\nv_mov_b32 v3, 0xffff\nv_lshlrev_b32 v3, v2, v3\nv_bfe_u32 v2, v0, 1, 2")
    for w in range(4): A(f"v_cmp_eq_u32 vcc, {w}, v2\nv_cndmask_b32 v{4+w}, 0, v3, vcc")
def abuild(A, a, pk):
    for w in range(4): A(f"v_and_b32 v{a+w}, v{4+w}, v{pk}")
def mfma(A, d, a, b, first=False):
    c = "0" if first else f"v[{d}:{d+3}]"
    A(f"v_mfma_f32_16x16x32_bf16 v[{d}:{d+3}], v[{a}:{a+3}], v[{b}:{b+3}], {c}")
class VM:
    def __init__(s, A): s.A = A; s.n = 0; s.at = {}
    def op(s, text, key=None): s.A(text); s.at[key] = s.n; s.n += 1
    def wait(s, key): s.A(f"s_waitcnt vmcnt({s.n - 1 - s.at[key]})")

def gen(R=5, R0=6, RR=44, NB=34, RQ=12, R2=10, T2=16, CU=4, stamps=0, kvpol="nt", wqpol="nt", wpol="nt", prio=0, mimic=1, rot=1, pre=0):
    A = Asm()
    def stamp(i):
        if stamps: A(f"s_memrealtime s[{64+2*i}:{65+2*i}]")
    A(f"; @launch grid=(256,1,1) block=(512,1,1) lds={LDS_BYTES}")
    A('.amdgcn_target "amdgcn-amd-amdhsa--gfx950"\n.text')
    A(f".globl {NAME}_kernel\n.p2align 8\n.type {NAME}_kernel,@function\n{NAME}_kernel:")
    A("s_cmp_ge_u32 s2, 256\ns_cbranch_scc1 L_end")
    stamp(0)
    A("v_lshrrev_b32 v1, 6, v0\nv_and_b32 v0, 63, v0\nv_readfirstlane_b32 s3, v1")
    A("s_and_b32 s4, s2, 7\ns_lshr_b32 s5, s2, 3\ns_lshl_b32 s6, s4, 2\ns_and_b32 s8, s5, 3\ns_add_u32 s6, s6, s8\ns_lshr_b32 s7, s5, 2")
    A("s_cmp_ge_u32 s3, 4\ns_cbranch_scc1 L_aux")
    srd(A, 16, 8, 100663296); srd(A, 20, 16, 100663296); srd(A, 24, 88, WS_USED)
    A(f"s_mul_i32 s52, s6, 3145728\ns_lshl_b32 s8, s7, 2\ns_add_u32 s8, s8, s3\ns_mul_i32 s9, s8, 98304\ns_add_u32 s52, s52, s9")
    A("s_lshl_b32 s54, s6, 5\ns_add_u32 s54, s54, s8\ns_lshl_b32 s54, s54, 3")
    A("v_lshrrev_b32 v1, 3, v0\nv_mul_u32_u24 v1, 384, v1\nv_and_b32 v2, 7, v0\nv_lshl_add_u32 v1, v2, 4, v1")
    Q, ACC, AB, S, M, LS, T0, RING = 8, 20, 32, 40, 72, 73, 74, 76
    assert RING + 4 * RR <= 256
    vm = VM(A); N = 192
    st = dict(issued=0, consumed=0)
    slot = lambda i: RING + 4 * (i % RR)
    def issue_to(n):
        n = min(n, N)
        while st["issued"] < n:
            i = st["issued"]
            assert i - RR < st["consumed"], (i, st)
            g, j = (i % 96) // 3, i % 3
            if j == 0: A(f"s_add_u32 s53, s52, {g*3072}")
            vm.op(f"buffer_load_dwordx4 v[{slot(i)}:{slot(i)+3}], v1, s[{16 if i < 96 else 20}:{19 if i < 96 else 23}], s53 offen offset:{j*128} {kvpol}", i)
            st["issued"] += 1
            if st["issued"] == N: A("s_barrier ; B15: last V load issued")
    A("s_waitcnt lgkmcnt(0)")
    issue_to(R0)
    masks(A)
    for g in range(32): A(f"v_mov_b32 v{S+g}, 0")
    A(f"v_mov_b32 v{M}, 0xff800000")
    A("s_mov_b32 s55, 0xffff0000\ns_mov_b32 s56, 0x3d93cd3a\ns_mov_b32 s57, 0x3fb8aa3b")
    A(f"v_and_b32 v2, 7, v0\nv_lshlrev_b32 v2, 4, v2")
    A(f"v_lshrrev_b32 v3, 5, v0\nv_lshl_add_u32 v3, s3, 1, v3\nv_mul_u32_u24 v3, 768, v3\nv_lshl_add_u32 v3, v2, 1, v3\nv_and_b32 v{T0}, 16, v0\nv_add_u32 v3, v3, v{T0}")
    win = lambda i: R0 if i < NB else (R2 if i >= N - T2 else R)
    def step(i):
        vm.wait(i); issue_to(i + 1 + win(i))
    def kgroups(gs):
        for e in range(12):
            for g in gs: A(f"v_dot2c_f32_bf16 v{S+g}, v{slot(3*g + e//4) + e%4}, v{Q+e}")
        st["consumed"] = 3 * gs[-1] + 3
        red8(A, "v_add_f32", [S + g for g in gs])
        if mimic:
            for g in gs: A(f"v_cvt_pk_bf16_f32 v{S+g}, v{S+g}, v{S+g}")
            for g in gs: A(f"v_and_b32 v{S+g}, s55, v{S+g}")
        for g in gs: A(f"v_mul_f32 v{S+g}, s56, v{S+g}")
        if mimic:
            for g in gs: A(f"v_cvt_pk_bf16_f32 v{S+g}, v{S+g}, v{S+g}")
            for g in gs: A(f"v_and_b32 v{S+g}, s55, v{S+g}")
        for g in gs: A(f"v_max_f32 v{M}, v{M}, v{S+g}")
    i = 0
    while i < NB: step(i); i += 1
    A("s_barrier ; B1a")
    step(i); i += 1
    A("s_barrier ; B1b: q ready")
    for j in range(3): A(f"ds_read_b128 v[{Q+4*j}:{Q+4*j+3}], v2 offset:{L_Q + 128*j}")
    A("s_waitcnt lgkmcnt(0)")
    gk = 0
    while gk < 32:
        avail = min(i, 96) // 3 - gk
        if avail > 0:
            n = min(avail, CU); kgroups(list(range(gk, gk + n))); gk += n
        if gk < 32 : step(i); i += 1
    redhi(A, "v_max_f32", M, T0)
    A(f"v_mul_f32 v{M}, s57, v{M}")
    step(i); i += 1
    for g in range(32): A(f"v_fma_f32 v{S+g}, v{S+g}, s57, -v{M}")
    for g in range(16): A(f"v_exp_f32 v{S+g}, v{S+g}")
    step(i); i += 1
    for g in range(16, 32): A(f"v_exp_f32 v{S+g}, v{S+g}")
    A(f"v_add_f32 v{LS}, v{S}, v{S+1}\nv_add_f32 v{T0}, v{S+2}, v{S+3}")
    for g in range(4, 32, 2): A(f"v_add_f32 v{LS}, v{LS}, v{S+g}\nv_add_f32 v{T0}, v{T0}, v{S+g+1}")
    A(f"v_add_f32 v{LS}, v{LS}, v{T0}")
    redhi(A, "v_add_f32", LS, T0)
    A(f"v_min_u32 v{M}, -2, v{M}\nv_min_u32 v{LS}, -2, v{LS}\nv_mov_b32 v{T0}, 0\ns_mov_b64 exec, 1")
    vm.op(f"buffer_store_dwordx2 v[{M}:{LS}], v{T0}, s[24:27], s54 offen sc1", "ml")
    A("s_mov_b64 exec, -1")
    for g in range(32): A(f"v_cvt_pk_bf16_f32 v{S+g}, v{S+g}, v{S+g}")
    c = 96
    abuild(A, AB, S)
    while c < N:
        while c < i:
            g, j = (c - 96) // 3, c % 3
            mfma(A, ACC + 4 * j, AB + 4 * (g & 1), slot(c), first=(g == 0))
            c += 1; st["consumed"] = c
            if j == 0 and g < 31: abuild(A, AB + 4 * ((g + 1) & 1), S + g + 1)
        if i < N: step(i); i += 1
    A("s_mov_b32 exec_lo, 0x00ff00ff\ns_mov_b32 exec_hi, 0xff00ff00")
    for j in range(3): A(f"ds_write_b128 v3, v[{ACC+4*j}:{ACC+4*j+3}] offset:{L_P + 256*j}")
    A("s_waitcnt lgkmcnt(0)\ns_barrier ; B2\ns_endpgm")

    A("L_aux:\n; ---- aux waves 4..7: layernorm, q projection, FFN, output projection, hand-offs")
    srd(A, 20, 0, 1280); srd(A, 16, 24, 7864320); srd(A, 24, 88, WS_USED if not stamps else 402653184); srd(A, 44, 80, 256)
    srd(A, 28, 48, 1966080); srd(A, 32, 56, 1966080); srd(A, 36, 32, 7864320); srd(A, 40, 64, 1966080); srd(A, 48, 72, 1280)
    A("s_sub_u32 s3, s3, 4")
    XS, X0, X1, PK, ACC, AB, T, RING = 8, 14, 20, 26, 48, 60, 68, 96
    VQ, VC, VR = 1, 46, 47
    A(f"v_lshrrev_b32 v{VR}, 3, v0\nv_and_b32 v{VC}, 7, v0\nv_lshlrev_b32 v{VC}, 4, v{VC}")
    A(f"v_mul_u32_u24 v2, 20, v0\nv_mul_u32_u24 v3, 20, v{VR}\nv_mul_u32_u24 v{VQ}, 122880, v{VR}\nv_add_u32 v{VQ}, v{VQ}, v{VC}")
    A("s_lshl_b32 s8, s3, 1\ns_add_u32 s8, s8, s7\ns_add_u32 s9, s8, 1\ns_and_b32 s8, s8, 7\ns_and_b32 s9, s9, 7")
    if pre:
        A(f"s_getpc_b64 s[12:13]\nL_pc:\ns_sub_u32 s12, s12, L_pc-{NAME}_kernel\ns_subb_u32 s13, s13, 0\nv_lshlrev_b32 v{T}, 6, v0\nv_lshl_add_u32 v{T}, s3, 12, v{T}")
        A(f"global_load_dword v{T+1}, v{T}, s[12:13]")
    A("s_mul_i32 s10, s8, 160\ns_mul_i32 s11, s9, 160\ns_mul_i32 s12, s6, 384\ns_mul_i32 s52, s8, 983040\ns_add_u32 s52, s52, s12\ns_mul_i32 s54, s9, 983040\ns_add_u32 s54, s54, s12")
    A("s_mov_b32 s55, 0xffff0000\ns_mov_b32 s57, 0x3fb8aa3b")
    A("s_waitcnt lgkmcnt(0)")
    vm = VM(A)
    vm.op(f"buffer_load_dwordx4 v[{XS}:{XS+3}], v2, s[20:23], 0 offen")
    vm.op(f"buffer_load_dword v{XS+4}, v2, s[20:23], 0 offen offset:16", "xs")
    for X, so in ((X0, "s10"), (X1, "s11")):
        vm.op(f"buffer_load_dwordx4 v[{X}:{X+3}], v3, s[20:23], {so} offen")
        vm.op(f"buffer_load_dword v{X+4}, v3, s[20:23], {so} offen offset:16", "x01")
    NQ = 60; sq = dict(issued=0); RRQ = 40
    assert RING + 4 * RRQ <= 256 and RQ < RRQ
    qslot = lambda i: RING + 4 * (i % RRQ)
    def qissue(n):
        while sq["issued"] < min(n, NQ):
            i = sq["issued"]; gg, j = i // 3, i % 3
            if j == 0: A(f"s_add_u32 s53, {'s52' if gg < 10 else 's54'}, {(gg % 10)*12288}")
            vm.op(f"buffer_load_dwordx4 v[{qslot(i)}:{qslot(i)+3}], v{VQ}, s[16:19], s53 offen offset:{j*128} {wqpol}", i)
            sq["issued"] += 1
    qissue(RQ)
    A("s_cmp_lt_u32 s5, 30\ns_cbranch_scc1 L_noclear")
    A(f"s_sub_u32 s13, s2, 240\ns_lshl_b32 s13, s13, 2\ns_add_u32 s13, s13, s3\ns_mul_i32 s13, s13, 6144\ns_add_u32 s14, s13, 3072")
    A(f"v_lshlrev_b32 v{T}, 4, v0")
    for r in range(4): A(f"v_mov_b32 v{T+4+r}, -1")
    for e in range(6): A(f"buffer_store_dwordx4 v[{T+4}:{T+7}], v{T}, s[24:27], {'s13' if e < 3 else 's14'} offen offset:{(e%3)*1024} sc1")
    A(f"s_waitcnt vmcnt(0)\nv_mov_b32 v{T}, 0\nv_mov_b32 v{T+1}, 1\ns_mov_b64 exec, 1")
    A(f"buffer_atomic_add v{T+1}, v{T}, s[44:47], 0 offen sc1\ns_mov_b64 exec, -1\ns_waitcnt vmcnt(0)")
    A("L_noclear:")
    masks(A)
    vm.wait("xs")
    stamp(1)
    for e in range(5): A(f"v_lshlrev_b32 v{T+2*e}, 16, v{XS+e}\nv_and_b32 v{T+2*e+1}, s55, v{XS+e}")
    SM, SV, TT = T + 10, T + 11, T + 12
    A(f"v_add_f32 v{SM}, v{T}, v{T+1}")
    for e in range(2, 10): A(f"v_add_f32 v{SM}, v{SM}, v{T+e}")
    red8(A, "v_add_f32", [SM]); redhi(A, "v_add_f32", SM, TT)
    A(f"v_mul_f32 v{SM}, 0x3acccccd, v{SM}")
    for e in range(10): A(f"v_sub_f32 v{T+e}, v{T+e}, v{SM}")
    A(f"v_mul_f32 v{SV}, v{T}, v{T}")
    for e in range(1, 10): A(f"v_fmac_f32 v{SV}, v{T+e}, v{T+e}")
    red8(A, "v_add_f32", [SV]); redhi(A, "v_add_f32", SV, TT)
    def rb(r): A(f"v_cvt_pk_bf16_f32 v{r}, v{r}, v{r}\nv_and_b32 v{r}, s55, v{r}")
    A(f"v_mul_f32 v{SV}, 0x3acccccd, v{SV}"); rb(SV); rb(SM)
    A(f"v_add_f32 v{SV}, 0x3727c5ac, v{SV}"); rb(SV)
    A(f"v_sqrt_f32 v{SV}, v{SV}"); rb(SV)
    A(f"v_rcp_f32 v{SV}, v{SV}")
    vm.wait("x01")
    def norm(X, P):
        for e in range(5): A(f"v_lshlrev_b32 v{P+2*e}, 16, v{X+e}\nv_and_b32 v{P+2*e+1}, s55, v{X+e}")
        for e in range(10): A(f"v_sub_f32 v{P+e}, v{P+e}, v{SM}")
        for e in range(10): A(f"v_cvt_pk_bf16_f32 v{P+e}, v{P+e}, v{P+e}")
        for e in range(10): A(f"v_and_b32 v{P+e}, s55, v{P+e}")
        for e in range(10): A(f"v_mul_f32 v{P+e}, v{P+e}, v{SV}")
        for e in range(10): A(f"v_cvt_pk_bf16_f32 v{P+e}, v{P+e}, v{P+e}")
    norm(X0, PK)
    abuild(A, AB, PK)
    for i in range(NQ):
        gg, j = i // 3, i % 3
        vm.wait(i); qissue(i + 1 + RQ)
        mfma(A, ACC + 4 * j, AB + 4 * (gg & 1), qslot(i), first=(gg == 0))
        if j == 0 and gg < 19: abuild(A, AB + 4 * ((gg + 1) & 1), PK + gg + 1)
        if i == 13: norm(X1, PK + 10)
    stamp(2)
    A("s_and_b32 s8, s5, 3\ns_mul_i32 s58, s4, 3\ns_add_u32 s58, s58, s8\ns_cmp_lt_u32 s8, 3\ns_cselect_b32 s59, 1, 0\ns_cmp_eq_u32 s3, 0\ns_cselect_b32 s59, s59, 0")
    A(f"v_mul_u32_u24 v2, 30720, v{VR}\nv_add_u32 v2, v2, v{VC}")
    A("s_cmp_eq_u32 s59, 0\ns_cbranch_scc1 L_noffn_a")
    A("s_mul_i32 s8, s7, 245760\ns_lshl_b32 s9, s58, 7\ns_add_u32 s8, s8, s9")
    FR = RING + 80
    assert (NQ - 1) % RRQ < 20
    for g in range(10):
        if g % 2 == 0: A(f"s_add_u32 s53, s8, {g*3072}")
        for mtx in range(2):
            r = FR + 8 * g + 4 * mtx
            A(f"buffer_load_dwordx4 v[{r}:{r+3}], v2, s[{28+4*mtx}:{31+4*mtx}], s53 offen offset:{(g%2)*3072} {wpol}")
    A("L_noffn_a:")
    A(f"v_lshrrev_b32 v3, 5, v0\nv_lshl_add_u32 v3, s3, 1, v3\nv_and_b32 v{T}, 16, v0\nv_lshl_add_u32 v{T}, v{VC}, 1, v{T}")
    A(f"v_lshl_add_u32 v{T+1}, v3, 8, v{T}\nv_mul_u32_u24 v3, 768, v3\nv_add_u32 v3, v3, v{T}")
    VY = 45
    A(f"v_mov_b32 v{VY}, v{T+1}")
    A("s_mov_b32 s60, 64\ns_cmp_lg_u32 s3, 3\ns_cbranch_scc1 L_noflag\ns_load_dword s60, s[44:45], 0\nL_noflag:")
    A("s_mov_b32 exec_lo, 0x00ff00ff\ns_mov_b32 exec_hi, 0xff00ff00")
    for j in range(3): A(f"ds_write_b128 v3, v[{ACC+4*j}:{ACC+4*j+3}] offset:{L_P + 256*j}")
    A("s_mov_b64 exec, -1\ns_waitcnt lgkmcnt(0)")
    A(f"s_cmp_eq_u32 s60, 64\ns_cbranch_scc1 L_flag_ok\ns_mov_b32 s61, {SPIN}\nv_mov_b32 v{T}, 0")
    A(f"L_flag:\nbuffer_load_dword v{T+1}, v{T}, s[44:47], 0 offen sc1\ns_waitcnt vmcnt(0)\nv_readfirstlane_b32 s60, v{T+1}")
    A("s_sub_u32 s61, s61, 1\ns_cbranch_scc1 L_flag_ok\ns_cmp_lg_u32 s60, 64\ns_cbranch_scc1 L_flag\nL_flag_ok:")
    A("s_barrier ; B1a")
    VP = 3
    A(f"v_lshlrev_b32 v{VP}, 2, v0\nv_lshl_add_u32 v{VP}, s3, 8, v{VP}")
    A("s_cmp_eq_u32 s3, 3\ns_cbranch_scc1 L_noq")
    def readP(base, stride):
        for r in range(4): A(f"ds_read2st64_b32 v[{T+2*r}:{T+2*r+1}], v{VP} offset0:{base//256 + 2*r*stride} offset1:{base//256 + (2*r+1)*stride}")
        A("s_waitcnt lgkmcnt(0)")
    readP(L_P, 3)
    for r in range(4): A(f"v_add_f32 v{T+2*r}, v{T+2*r}, v{T+2*r+1}")
    A(f"v_add_f32 v{T}, v{T}, v{T+2}\nv_add_f32 v{T+4}, v{T+4}, v{T+6}\nv_add_f32 v{T}, v{T}, v{T+4}\nv_lshrrev_b32 v{T+1}, 1, v{VP}")
    A(f"v_cvt_pk_bf16_f32 v{T}, v{T}, v{T}\nds_write_b16 v{T+1}, v{T} offset:{L_Q}\ns_waitcnt lgkmcnt(0)")
    A("L_noq:\ns_barrier ; B1b")
    stamp(3)
    A("s_cmp_eq_u32 s59, 0\ns_cbranch_scc1 L_noffn_b")
    for g in range(10):
        abuild(A, AB + 4 * (g & 1), PK + g)
        A(f"s_waitcnt vmcnt({18 - 2*g})")
        for mtx in range(2): mfma(A, ACC + 4 * mtx, AB + 4 * (g & 1), FR + 8 * g + 4 * mtx, first=(g == 0))
    dst = [0, 1, 4, 5, 2, 3, 6, 7]
    for r in range(8): A(f"v_mov_b32 v{T+8+r}, v{ACC+r}")
    for r in range(8): A(f"v_permlane32_swap_b32 v{ACC+r}, v{T+8+r}")
    for r in range(8): A(f"v_add_f32_dpp v{T+dst[r]}, v{T+8+r}, v{ACC+r} row_ror:8 {DPPM}")
    for r in range(8): A(f"v_min_u32 v{T+r}, -2, v{T+r}")
    A(f"v_and_b32 v2, 16, v0\nv_lshlrev_b32 v2, 1, v2\nv_lshl_add_u32 v2, v{VC}, 2, v2")
    A(f"s_lshl_b32 s8, s58, 3\ns_add_u32 s8, s8, s7\ns_lshl_b32 s8, s8, 9\ns_add_u32 s8, s8, {WS_F}")
    A("s_mov_b64 exec, 0x00ff00ff")
    A(f"buffer_store_dwordx4 v[{T}:{T+3}], v2, s[24:27], s8 offen sc1\nbuffer_store_dwordx4 v[{T+4}:{T+7}], v2, s[24:27], s8 offen offset:16 sc1")
    A("s_mov_b64 exec, -1\nL_noffn_b:")
    A("s_mul_i32 s8, s5, 205\ns_lshr_b32 s8, s8, 11\ns_mul_i32 s9, s8, 10\ns_sub_u32 s62, s5, s9\ns_mul_i32 s63, s4, 3\ns_add_u32 s63, s63, s8")
    A("s_lshl_b32 s8, s63, 2\ns_add_u32 s8, s8, s3\ns_lshl_b32 s9, s62, 7")
    A("s_mul_i32 s10, s8, 81920\ns_add_u32 s10, s10, s9\ns_add_u32 s11, s10, 5120\ns_mul_i32 s12, s8, 20480\ns_add_u32 s12, s12, s9")
    A(f"s_lshl_b32 s13, s63, 12\ns_lshl_b32 s14, s3, 7\ns_add_u32 s13, s13, s14\ns_add_u32 s13, s13, {WS_F}")
    A(f"s_mul_i32 s14, s8, 43691\ns_lshr_b32 s14, s14, 17\ns_mul_i32 s15, s14, 3\ns_sub_u32 s15, s8, s15\ns_mul_i32 s14, s14, 6144\ns_lshl_b32 s15, s15, 8\ns_add_u32 s14, s14, s15\ns_add_u32 s14, s14, {WS_O}")
    A(f"s_lshl_b32 s15, s6, 3\ns_add_u32 s15, s15, s7\ns_mul_i32 s15, s15, 768\ns_add_u32 s15, s15, {WS_O}")
    A(f"s_mul_i32 s52, s62, 24\ns_add_u32 s52, s52, s63\ns_lshl_b32 s52, s52, 8\ns_add_u32 s52, s52, {WS_Y}")
    A("s_lshl_b32 s54, s6, 8\ns_lshl_b32 s53, s7, 2")
    VWO, VWD, VF, VO, VML = 8, 9, 10, 11, 12
    A(f"v_mul_u32_u24 v{VWO}, 10240, v{VR}\nv_add_u32 v{VWO}, v{VWO}, v{VC}\nv_mul_u32_u24 v{VWD}, 2560, v{VR}\nv_add_u32 v{VWD}, v{VWD}, v{VC}")
    A(f"v_lshlrev_b32 v{VF}, 4, v{VR}\nv_lshl_add_u32 v{VF}, v{VC}, 5, v{VF}")
    A(f"v_mul_u32_u24 v{VO}, 48, v{VC}\nv_lshl_add_u32 v{VO}, v{VR}, 5, v{VO}")
    A(f"v_and_b32 v{VML}, 31, v0\nv_lshlrev_b32 v{VML}, 3, v{VML}")
    A("s_waitcnt vmcnt(0)\ns_barrier ; B15")
    stamp(4)
    ML, FG, WD, WO, YA, G = 14, 16, 20, RING, ACC, 28
    A(f"buffer_load_dwordx2 v[{ML}:{ML+1}], v{VML}, s[24:27], s54 offen sc1")
    A("s_cmp_ge_u32 s5, 30\ns_cbranch_scc1 L_spare_a")
    A(f"buffer_load_dwordx4 v[{FG}:{FG+3}], v{VF}, s[24:27], s13 offen sc1")
    for g in range(2): A(f"buffer_load_dwordx4 v[{WD+4*g}:{WD+4*g+3}], v{VWD}, s[40:43], s12 offen offset:{g*1280} {wpol}")
    for g in range(8): A(f"buffer_load_dwordx4 v[{WO+4*g}:{WO+4*g+3}], v{VWO}, s[36:39], {'s10' if g < 4 else 's11'} offen offset:{(g%4)*1280} {wpol}")
    A(f"s_mov_b32 s61, {SPIN}\ns_waitcnt vmcnt(10)\nL_fchk:")
    A(f"v_max3_u32 v{T}, v{FG}, v{FG+1}, v{FG+2}\nv_max_u32 v{T}, v{T}, v{FG+3}\nv_cmp_eq_u32 vcc, -1, v{T}\ns_cbranch_vccz L_fok")
    A(f"s_sub_u32 s61, s61, 1\ns_cbranch_scc1 L_fok\nbuffer_load_dwordx4 v[{FG}:{FG+3}], v{VF}, s[24:27], s13 offen sc1\ns_waitcnt vmcnt(0)\ns_branch L_fchk\nL_fok:")
    red8(A, "v_add_f32", [FG, FG + 1, FG + 2, FG + 3])
    for r in range(4): rb(FG + r)
    for r in range(2):
        g_, t = FG + r, T + r
        A(f"v_mul_f32 v{t}, v{g_}, v{g_}\nv_mul_f32 v{t}, 0x3d372713, v{t}\nv_fma_f32 v{t}, v{t}, v{g_}, v{g_}\nv_mul_f32 v{t}, 0xc0135761, v{t}")
        A(f"v_exp_f32 v{t}, v{t}\nv_add_f32 v{t}, 1.0, v{t}\nv_rcp_f32 v{t}, v{t}\nv_mul_f32 v{t}, v{t}, v{g_}"); rb(t)
        A(f"v_mul_f32 v{t}, v{t}, v{FG+2+r}\nv_cvt_pk_bf16_f32 v{t}, v{t}, v{t}")
        abuild(A, AB + 4 * r, t)
    A("s_waitcnt vmcnt(8)")
    for g in range(2): mfma(A, YA, AB + 4 * g, WD + 4 * g, first=(g == 0))
    A("s_branch L_ml\nL_spare_a:\ns_waitcnt vmcnt(0)\nL_ml:")
    A(f"s_mov_b32 s61, {SPIN}\nL_mchk:\nv_max_u32 v{T}, v{ML}, v{ML+1}\nv_cmp_eq_u32 vcc, -1, v{T}\ns_cbranch_vccz L_mok")
    A(f"s_sub_u32 s61, s61, 1\ns_cbranch_scc1 L_mok\nbuffer_load_dwordx2 v[{ML}:{ML+1}], v{VML}, s[24:27], s54 offen sc1\ns_waitcnt vmcnt(0)\ns_branch L_mchk\nL_mok:")
    A(f"v_mov_b32 v{T}, v{ML}")
    red8(A, "v_max_f32", [T]); redhi(A, "v_max_f32", T, T + 1, (8, 16))
    A(f"v_sub_f32 v{T}, v{ML}, v{T}\nv_exp_f32 v{T}, v{T}\nv_mul_f32 v{T+2}, v{T}, v{ML+1}")
    red8(A, "v_add_f32", [T + 2]); redhi(A, "v_add_f32", T + 2, T + 1, (8, 16))
    A(f"v_rcp_f32 v{T+2}, v{T+2}\nv_mul_f32 v{T}, v{T}, v{T+2}")
    for w in range(4): A(f"s_add_u32 s9, s53, {w}\nv_readlane_b32 s{56 if w == 0 else 57+w}, v{T}, s9")
    FS = [56, 58, 59, 60]
    A("s_barrier ; B2")
    stamp(5)
    A("s_cmp_eq_u32 s3, 3\ns_cbranch_scc1 L_noo")
    readP(L_P, 3)
    for r in range(4): A(f"v_add_f32 v{T+2*r}, v{T+2*r}, v{T+2*r+1}")
    A(f"v_mul_f32 v{T}, s{FS[0]}, v{T}\nv_mul_f32 v{T+4}, s{FS[2]}, v{T+4}\nv_fmac_f32 v{T}, s{FS[1]}, v{T+2}\nv_fmac_f32 v{T+4}, s{FS[3]}, v{T+6}")
    A(f"v_add_f32 v{T}, v{T}, v{T+4}\nv_min_u32 v{T}, -2, v{T}")
    A(f"buffer_store_dword v{T}, v{VP}, s[24:27], s15 offen sc1")
    A("L_noo:\ns_cmp_ge_u32 s5, 30\ns_cbranch_scc1 L_spare_b")
    A(f"s_mov_b32 s61, {SPIN}\nL_ochk:")
    A(f"buffer_load_dwordx4 v[{G}:{G+3}], v{VO}, s[24:27], s14 offen sc1\nbuffer_load_dwordx4 v[{G+4}:{G+7}], v{VO}, s[24:27], s14 offen offset:16 sc1")
    A("s_sub_u32 s61, s61, 1\ns_waitcnt vmcnt(0)\ns_cbranch_scc1 L_ook")
    A(f"v_max3_u32 v{T+1}, v{G}, v{G+1}, v{G+2}\nv_max3_u32 v{T+2}, v{G+3}, v{G+4}, v{G+5}\nv_max3_u32 v{T+1}, v{T+1}, v{G+6}, v{G+7}\nv_max_u32 v{T+1}, v{T+1}, v{T+2}")
    A(f"v_cmp_eq_u32 vcc, -1, v{T+1}\ns_cbranch_vccnz L_ochk\nL_ook:")
    stamp(6)
    red8(A, "v_add_f32", [G + r for r in range(8)])
    for r in range(8): A(f"v_cvt_pk_bf16_f32 v{G+r}, v{G+r}, v{G+r}")
    abuild(A, AB, G)
    for g in range(8):
        if g < 7: abuild(A, AB + 4 * ((g + 1) & 1), G + g + 1)
        mfma(A, YA, AB + 4 * (g & 1), WO + 4 * g)
    A("s_mov_b32 exec_lo, 0x00ff00ff\ns_mov_b32 exec_hi, 0xff00ff00")
    A(f"ds_write_b128 v{VY}, v[{YA}:{YA+3}] offset:{L_Y}\ns_mov_b64 exec, -1\ns_waitcnt lgkmcnt(0)\ns_barrier ; B3")
    A("s_cmp_lg_u32 s3, 0\ns_cbranch_scc1 L_end")
    readP(L_Y, 1)
    for r in range(4): A(f"v_add_f32 v{T+2*r}, v{T+2*r}, v{T+2*r+1}")
    A(f"v_add_f32 v{T}, v{T}, v{T+2}\nv_add_f32 v{T+4}, v{T+4}, v{T+6}\nv_add_f32 v{T}, v{T}, v{T+4}\nv_min_u32 v{T}, -2, v{T}")
    A(f"buffer_store_dword v{T}, v{VP}, s[24:27], s52 offen sc1")
    def putstamps():
        if not stamps: return
        stamp(7); A("s_waitcnt lgkmcnt(0)")
        for e in range(16): A(f"v_mov_b32 v{RING+e}, s{64+e}")
        A(f"s_lshl_b32 s8, s2, 6\ns_add_u32 s8, s8, {64<<20}\nv_mov_b32 v1, 0")
        for e in range(4): A(f"buffer_store_dwordx4 v[{RING+4*e}:{RING+4*e+3}], v1, s[24:27], s8 offen offset:{16*e}")
    putstamps()
    A("s_endpgm")
    A("L_spare_b:\ns_cmp_lg_u32 s3, 3\ns_cbranch_scc1 L_end\ns_sub_u32 s8, s2, 240")
    A(f"s_cmp_ge_u32 s8, 10\ns_cbranch_scc1 {'L_st' if stamps else 'L_end'}")
    A(f"s_mul_i32 s9, s8, 6144\ns_add_u32 s9, s9, {WS_Y}\ns_add_u32 s10, s9, 3072\ns_lshl_b32 s11, s8, 7")
    A(f"v_lshlrev_b32 v1, 4, v0\nv_and_b32 v2, 15, v0\nv_lshlrev_b32 v2, 3, v2")
    A(f"buffer_load_dwordx2 v[{ML}:{ML+1}], v2, s[20:23], s11 offen")
    A(f"s_mov_b32 s61, {SPIN}\nL_ychk:")
    for e in range(6): A(f"buffer_load_dwordx4 v[{RING+4*e}:{RING+4*e+3}], v1, s[24:27], {'s9' if e < 3 else 's10'} offen offset:{(e%3)*1024} sc1")
    A("s_sub_u32 s61, s61, 1\ns_waitcnt vmcnt(0)\ns_cbranch_scc1 L_yok")
    for e in range(8): A(f"v_max3_u32 v{T+e}, v{RING+3*e}, v{RING+3*e+1}, v{RING+3*e+2}")
    A(f"v_max3_u32 v{T}, v{T}, v{T+1}, v{T+2}\nv_max3_u32 v{T+3}, v{T+3}, v{T+4}, v{T+5}\nv_max3_u32 v{T}, v{T}, v{T+6}, v{T+7}\nv_max_u32 v{T}, v{T}, v{T+3}")
    A(f"v_cmp_eq_u32 vcc, -1, v{T}\ns_cbranch_vccnz L_ychk\nL_yok:")
    stamp(6)
    for e in (0, 2, 4):
        for r in range(4): A(f"v_add_f32 v{RING+4*e+r}, v{RING+4*e+r}, v{RING+4*e+4+r}")
    for e in (2, 4):
        for r in range(4): A(f"v_add_f32 v{RING+r}, v{RING+r}, v{RING+4*e+r}")
    for sw in (16, 32):
        for r in range(4): A(f"v_mov_b32 v{T+r}, v{RING+r}")
        for r in range(4): A(f"v_permlane{sw}_swap_b32 v{RING+r}, v{T+r}")
        for r in range(4): A(f"v_add_f32 v{RING+r}, v{RING+r}, v{T+r}")
    for e in range(2): A(f"v_lshlrev_b32 v{T+2*e}, 16, v{ML+e}\nv_and_b32 v{T+2*e+1}, s55, v{ML+e}")
    for r in range(4): A(f"v_add_f32 v{RING+r}, v{RING+r}, v{T+r}")
    A(f"v_cvt_pk_bf16_f32 v{T}, v{RING}, v{RING+1}\nv_cvt_pk_bf16_f32 v{T+1}, v{RING+2}, v{RING+3}")
    A(f"s_mov_b64 exec, 0xffff\nbuffer_store_dwordx2 v[{T}:{T+1}], v2, s[48:51], s11 offen")
    if stamps:
        A("s_mov_b64 exec, -1\ns_waitcnt vmcnt(0)\ns_branch L_st2\nL_st:"); stamp(6); A("L_st2:"); putstamps()
    A("L_end:\ns_endpgm")
    A(f""".section .rodata,"a"
.p2align 6
.amdhsa_kernel {NAME}_kernel
.amdhsa_next_free_vgpr 256
.amdhsa_next_free_sgpr 96
.amdhsa_accum_offset 256
.amdhsa_group_segment_fixed_size 0
.amdhsa_kernarg_size 96
.amdhsa_user_sgpr_count 2
.amdhsa_user_sgpr_kernarg_segment_ptr 1
.amdhsa_system_sgpr_workgroup_id_x 1
.amdhsa_float_denorm_mode_32 3
.end_amdhsa_kernel""")
    return HDR + A.finish()
if __name__ == "__main__":
    for spec in sys.argv[1:]:
        kw = {}; out = None
        for p in spec.split(","):
            k, v = p.split("=")
            if k == "out": out = v; continue
            kw[k] = int(v) if v.lstrip("-").isdigit() else v.replace("+", " ").replace("none", "")
        fn = out or ("k_" + spec.replace(",", "_").replace("=", "").replace("+", "") + ".s")
        open(fn, "w").write(gen(**kw))
        print(fn)
```

```python
import sys
from asmlib import Asm
NAME = "parallel_sum__gqa_block_cached__glu_gated_geglu__decode"
HDR = open("cdna_kernels/" + NAME + ".s.ref").read().split("; Override launch")[0]
WS_ML, WS_O, WS_F, WS_Y, WS_Q = 0, 8192, 204800, 303104, 393216
WS_USED = 589824
L_P, L_Q, L_Y = 0, 6144, 6656
L_PROG, L_MODE = 8704, 8708
WS_C = 364544
LDS_BYTES = 8720
DPPM = "row_mask:0xf bank_mask:0xf"
SPIN = 1 << 22
def srd(A, r, off, size):
    A(f"s_load_dwordx2 s[{r}:{r+1}], s[0:1], {off}")
    A(f"s_mov_b32 s{r+2}, {size}\ns_mov_b32 s{r+3}, 0x20000")
def red8(A, op, rs):
    for mod in ("quad_perm:[1,0,3,2]", "quad_perm:[2,3,0,1]", "row_half_mirror"):
        for r in rs: A(f"{op}_dpp v{r}, v{r}, v{r} {mod} {DPPM}")
def redhi(A, op, r, t, steps=(8, 16, 32)):
    if 8 in steps: A(f"{op}_dpp v{r}, v{r}, v{r} row_ror:8 {DPPM}")
    if 16 in steps: A(f"v_mov_b32 v{t}, v{r}\nv_permlane16_swap_b32 v{r}, v{t}\n{op} v{r}, v{r}, v{t}")
    if 32 in steps: A(f"v_mov_b32 v{t}, v{r}\nv_permlane32_swap_b32 v{r}, v{t}\n{op} v{r}, v{r}, v{t}")
def masks(A):
    A("v_and_b32 v2, 1, v0\nv_lshlrev_b32 v2, 4, v2\nv_mov_b32 v3, 0xffff\nv_lshlrev_b32 v3, v2, v3\nv_bfe_u32 v2, v0, 1, 2")
    for w in range(4): A(f"v_cmp_eq_u32 vcc, {w}, v2\nv_cndmask_b32 v{4+w}, 0, v3, vcc")
def abuild(A, a, pk):
    for w in range(4): A(f"v_and_b32 v{a+w}, v{4+w}, v{pk}")
def mfma(A, d, a, b, first=False):
    c = "0" if first else f"v[{d}:{d+3}]"
    A(f"v_mfma_f32_16x16x32_bf16 v[{d}:{d+3}], v[{a}:{a+3}], v[{b}:{b+3}], {c}")
class VM:
    def __init__(s, A): s.A = A; s.n = 0; s.at = {}
    def op(s, text, key=None): s.A(text); s.at[key] = s.n; s.n += 1
    def wait(s, key): s.A(f"s_waitcnt vmcnt({s.n - 1 - s.at[key]})")

def reporter(ri, rm, rk):
    A = Asm()
    A("s_cmp_ge_u32 s2, 1\ns_cbranch_scc1 L_rend")
    srd(A, 8, 88, 402653184)
    A(f"v_lshlrev_b32 v1, 6, v0\ns_mov_b32 s12, {64<<20}\ns_waitcnt lgkmcnt(0)")
    for e in range(4):
        A(f"buffer_load_dword v{4+e}, v1, s[8:11], s12 offen\nbuffer_load_dword v{8+e}, v1, s[8:11], s12 offen offset:{8*ri}\ns_add_u32 s12, s12, 4096")
    A("s_waitcnt vmcnt(0)\nv_readfirstlane_b32 s13, v4\ns_sub_u32 s13, s13, 100000")
    for e in range(8): A(f"v_subrev_u32 v{4+e}, s13, v{4+e}")
    A("v_min_u32 v4, v4, v5\nv_min3_u32 v4, v4, v6, v7")
    red8(A, "v_min_u32", [4]); redhi(A, "v_min_u32", 4, 12)
    for e in range(4): A(f"v_sub_u32 v{8+e}, v{8+e}, v4")
    op = {"max": "v_max_u32", "min": "v_min_u32", "avg": "v_add_u32"}[rm]
    A(f"{op} v8, v8, v9\n{op} v10, v10, v11\n{op} v8, v8, v10")
    red8(A, op, [8]); redhi(A, op, 8, 12)
    A("v_readfirstlane_b32 s14, v8")
    if rm == "avg": A("s_lshr_b32 s14, s14, 8")
    A(f"s_mul_i32 s14, s14, {rk}\ns_min_u32 s14, s14, 100000\ns_memrealtime s[16:17]\ns_waitcnt lgkmcnt(0)")
    A("L_rs:\ns_memrealtime s[18:19]\ns_waitcnt lgkmcnt(0)\ns_sub_u32 s18, s18, s16\ns_cmp_lt_u32 s18, s14\ns_cbranch_scc1 L_rs\nL_rend:")
    return A.finish()
def gen(R=5, R0=5, RR=44, NB=38, N0=10, R2=10, T2=16, CU=4, stamps=0, kvpol="nt", wqpol="nt", wpol="nt", prio=0, mimic=1, B0=12, B02=22, BA=1, RF=3, TM=72, NL=4, ctl=1, RS=4, RB=7, TH=12, TB=0, CE=21, cst="", cw=1, lst="", ri=7, rm="max", rk=2):
    A = Asm()
    def stamp(i):
        if stamps: A(f"s_memrealtime s[{64+2*i}:{65+2*i}]")
    def putst(base):
        stamp(7); A("s_waitcnt lgkmcnt(0)")
        for e in range(16): A(f"v_mov_b32 v{base+e}, s{64+e}")
        A(f"s_lshl_b32 s8, s2, 6\ns_add_u32 s8, s8, {64<<20}\nv_mov_b32 v1, 0")
        for e in range(4): A(f"buffer_store_dwordx4 v[{base+4*e}:{base+4*e+3}], v1, s[24:27], s8 offen offset:{16*e}")
    if not lst: A(f"; @launch grid=(256,1,1) block=(512,1,1) lds={LDS_BYTES}")
    for c in lst:
        if c == "m": A(f"; @launch kernel={NAME}_kernel grid=(256,1,1) block=(512,1,1) lds={LDS_BYTES}")
        else: A(f"; @launch kernel=empty_kernel grid=(1,1,1) block=(64,1,1) lds=0")
    A('.amdgcn_target "amdgcn-amd-amdhsa--gfx950"\n.text')
    A(f".globl {NAME}_kernel\n.p2align 8\n.type {NAME}_kernel,@function\n{NAME}_kernel:")
    for r, off in ((20, 0), (16, 24), (24, 88), (28, 8), (44, 80), (32, 16)): A(f"s_load_dwordx2 s[{r}:{r+1}], s[0:1], {off}")
    stamp(0)
    A("v_lshrrev_b32 v1, 6, v0\nv_and_b32 v0, 63, v0\ns_cmp_ge_u32 s2, 256\nv_readfirstlane_b32 s3, v1\ns_cbranch_scc1 L_end")
    A("s_and_b32 s4, s2, 7\ns_lshr_b32 s5, s2, 3\ns_lshl_b32 s6, s4, 2\ns_and_b32 s8, s5, 3\ns_add_u32 s6, s6, s8\ns_lshr_b32 s7, s5, 2")
    A(f"s_mov_b32 s26, {WS_USED if not stamps else 402653184}\ns_mov_b32 s27, 0x20000\ns_mov_b32 s55, 0xffff0000")
    A("s_cmp_lt_u32 s3, 4\ns_cbranch_scc1 L_stream")
    A("; ---- aux waves 4..7: layernorm, q projection, FFN, output projection, hand-offs")
    A("s_mov_b32 s18, 7864320\ns_mov_b32 s19, 0x20000\ns_movk_i32 s22, 1280\ns_mov_b32 s23, s19\ns_movk_i32 s46, 256\ns_mov_b32 s47, s19")
    A("s_sub_u32 s3, s3, 4")
    XS, X0, PK, ACC, AB, T, RING = 8, 14, 26, 48, 60, 68, 96
    VQ, VY, VC, VR, VO = 1, 45, 46, 47, 44
    G = 28
    A(f"v_lshrrev_b32 v{VR}, 3, v0\nv_and_b32 v{VC}, 7, v0\nv_lshlrev_b32 v{VC}, 4, v{VC}")
    A("s_cmp_ge_u32 s3, 2\ns_cbranch_scc1 L_clear")
    A(f"v_mul_u32_u24 v2, 20, v0\nv_mul_u32_u24 v3, 20, v{VR}\ns_mul_i32 s10, s7, 160")
    A(f"v_mul_u32_u24 v{VQ}, 122880, v{VR}\nv_add_u32 v{VQ}, v{VQ}, v{VC}")
    A("s_mul_i32 s52, s7, 983040\ns_mul_i32 s12, s6, 384\ns_add_u32 s52, s52, s12")
    def rb(r): A(f"v_cvt_pk_bf16_f32 v{r}, v{r}, v{r}\nv_and_b32 v{r}, s55, v{r}")
    A("s_waitcnt lgkmcnt(0)")
    A(f"buffer_load_dwordx4 v[{XS}:{XS+3}], v2, s[20:23], 0 offen\nbuffer_load_dword v{XS+4}, v2, s[20:23], 0 offen offset:16")
    A(f"buffer_load_dwordx4 v[{X0}:{X0+3}], v3, s[20:23], s10 offen\nbuffer_load_dword v{X0+4}, v3, s[20:23], s10 offen offset:16")
    A("s_cmp_eq_u32 s3, 1\ns_cbranch_scc1 L_w1")
    for g in range(10):
        for j in range(3): A(f"buffer_load_dwordx4 v[{RING+12*g+4*j}:{RING+12*g+4*j+3}], v{VQ}, s[16:19], s52 offen offset:{128*j} {wqpol}")
        if g < 9: A("s_add_u32 s52, s52, 12288")
        if g == BA - 1: A("s_barrier ; BA")
    A("s_waitcnt vmcnt(30)\ns_branch L_ln\nL_w1:")
    if BA: A("s_barrier ; BA")
    A("s_waitcnt vmcnt(0)\nL_ln:")
    stamp(1)
    for e in range(5): A(f"v_lshlrev_b32 v{T+2*e}, 16, v{XS+e}\nv_and_b32 v{T+2*e+1}, s55, v{XS+e}")
    SM, SV, TT = T + 10, T + 11, T + 12
    A(f"v_add_f32 v{SM}, v{T}, v{T+1}")
    for e in range(2, 10): A(f"v_add_f32 v{SM}, v{SM}, v{T+e}")
    red8(A, "v_add_f32", [SM]); redhi(A, "v_add_f32", SM, TT)
    A(f"v_mul_f32 v{SM}, 0x3acccccd, v{SM}")
    for e in range(10): A(f"v_sub_f32 v{T+e}, v{T+e}, v{SM}")
    A(f"v_mul_f32 v{SV}, v{T}, v{T}")
    for e in range(1, 10): A(f"v_fmac_f32 v{SV}, v{T+e}, v{T+e}")
    red8(A, "v_add_f32", [SV]); redhi(A, "v_add_f32", SV, TT)
    A(f"v_mul_f32 v{SV}, 0x3acccccd, v{SV}"); rb(SV); rb(SM)
    A(f"v_add_f32 v{SV}, 0x3727c5ac, v{SV}"); rb(SV)
    A(f"v_sqrt_f32 v{SV}, v{SV}"); rb(SV)
    A(f"v_rcp_f32 v{SV}, v{SV}")
    for e in range(5): A(f"v_lshlrev_b32 v{PK+2*e}, 16, v{X0+e}\nv_and_b32 v{PK+2*e+1}, s55, v{X0+e}")
    for e in range(10): A(f"v_sub_f32 v{PK+e}, v{PK+e}, v{SM}")
    for e in range(10): A(f"v_cvt_pk_bf16_f32 v{PK+e}, v{PK+e}, v{PK+e}")
    for e in range(10): A(f"v_and_b32 v{PK+e}, s55, v{PK+e}")
    for e in range(10): A(f"v_mul_f32 v{PK+e}, v{PK+e}, v{SV}")
    for e in range(10): A(f"v_cvt_pk_bf16_f32 v{PK+e}, v{PK+e}, v{PK+e}")
    A("s_cmp_eq_u32 s3, 1\ns_cbranch_scc1 L_idle")
    masks(A)
    def halfsum(n):
        for r in range(n): A(f"v_mov_b32 v{T+12+r}, v{ACC+r}")
        for r in range(n): A(f"v_permlane32_swap_b32 v{ACC+r}, v{T+12+r}")
        for r in range(n): A(f"v_add_f32_dpp v{T+r}, v{T+12+r}, v{ACC+r} row_ror:8 {DPPM}")
        for r in range(n): A(f"v_min_u32 v{T+r}, -2, v{T+r}")
        A(f"v_and_b32 v2, 16, v0\nv_lshl_add_u32 v2, v{VC}, 1, v2")
    abuild(A, AB, PK)
    for g in range(10):
        if g < 9: abuild(A, AB + 4 * ((g + 1) & 1), PK + g + 1)
        A(f"s_waitcnt vmcnt({27-3*g})")
        for j in range(3): mfma(A, ACC + 4 * j, AB + 4 * (g & 1), RING + 12 * g + 4 * j, first=(g == 0))
    A(f"v_mul_u32_u24 v{VO}, 48, v{VC}\nv_lshl_add_u32 v{VO}, v{VR}, 5, v{VO}")
    A(f"s_mul_i32 s13, s6, 6144\ns_add_u32 s13, s13, {WS_Q}\ns_mul_i32 s12, s7, 768\ns_add_u32 s12, s12, s13")
    halfsum(12)
    if stamps == 3: stamp(2)
    if B0: A("s_barrier ; B0")
    def flagcheck(lab, so, n):
        A(f"s_load_dword s60, s[44:45], {so}\ns_waitcnt lgkmcnt(0)")
        A(f"s_cmp_ge_u32 s60, {n}\ns_cbranch_scc1 {lab}_ok\ns_mov_b32 s61, {SPIN}\nv_mov_b32 v{T+12}, 0")
        A(f"{lab}:\nbuffer_load_dword v{T+13}, v{T+12}, s[44:47], {so} offen sc1\ns_waitcnt vmcnt(0)\nv_readfirstlane_b32 s60, v{T+13}")
        A(f"s_sub_u32 s61, s61, 1\ns_cbranch_scc1 {lab}_ok\ns_cmp_lt_u32 s60, {n}\ns_cbranch_scc1 {lab}\n{lab}_ok:")
    A("s_lshl_b32 s14, s6, 2")
    flagcheck("L_flag", "s14", 1)
    if stamps != 3: stamp(2)
    A("s_mov_b64 exec, 0x00ff00ff")
    for j in range(3): A(f"buffer_store_dwordx4 v[{T+4*j}:{T+4*j+3}], v2, s[24:27], s12 offen offset:{256*j} sc1")
    A("s_mov_b64 exec, -1")
    def gather(lab, so, base, nj):
        A(f"s_mov_b32 s61, {SPIN}\n{lab}chk:")
        for j in range(nj):
            for e in range(2): A(f"buffer_load_dwordx4 v[{base+8*j+4*e}:{base+8*j+4*e+3}], v{VO}, s[24:27], {so} offen offset:{256*j+16*e} sc1")
        A(f"s_sub_u32 s61, s61, 1\ns_waitcnt vmcnt(0)\ns_cbranch_scc1 {lab}ok")
        rs = [base + r for r in range(8 * nj)]; t = T + 12
        while len(rs) > 1:
            if len(rs) == 2: A(f"v_max_u32 v{t}, v{rs[0]}, v{rs[1]}"); rs = [t]
            else: A(f"v_max3_u32 v{t}, v{rs[0]}, v{rs[1]}, v{rs[2]}"); rs = rs[3:] + [t]
            t += 1
        A(f"v_cmp_eq_u32 vcc, -1, v{rs[0]}\ns_cbranch_vccnz {lab}chk\n{lab}ok:")
    if B02: A("s_barrier ; B02")
    gather("L_q", "s13", RING, 3)
    red8(A, "v_add_f32", [RING + r for r in range(24)])
    for r in range(12): A(f"v_cvt_pk_bf16_f32 v{T+r}, v{RING+2*r}, v{RING+2*r+1}")
    A(f"v_lshlrev_b32 v2, 4, v{VR}")
    for j in range(3): A(f"ds_write_b128 v2, v[{T+4*j}:{T+4*j+3}] offset:{L_Q + 128*j}")
    A("s_branch L_b1")
    A("L_clear:")
    A(f"s_cmp_lt_u32 s7, 2\ns_cselect_b32 s8, s3, 0\ns_cmp_eq_u32 s8, 3\ns_cbranch_scc0 L_noclear")
    A(f"v_lshlrev_b32 v{T}, 4, v0\nv_mov_b32 v{T+2}, 0\nv_mov_b32 v{T+1}, 1")
    for r in range(4): A(f"v_mov_b32 v{T+4+r}, -1")
    def clr(n):
        for e in range(n):
            A(f"buffer_store_dwordx4 v[{T+4}:{T+7}], v{T}, s[24:27], s13 offen offset:{(e%3)*1024} sc1")
            if e % 3 == 2 and e < n - 1: A("s_add_u32 s13, s13, 3072")
    A(f"s_cmp_eq_u32 s7, 1\ns_cbranch_scc1 L_clear2\ns_mul_i32 s13, s6, 6144\ns_add_u32 s13, s13, {WS_Q}\ns_lshl_b32 s14, s6, 2\ns_waitcnt lgkmcnt(0)")
    clr(6)
    if BA: A("s_barrier ; BA")
    A(f"s_waitcnt vmcnt(0)\ns_mov_b64 exec, 1\nbuffer_store_dword v{T+1}, v{T+2}, s[44:47], s14 offen sc1\ns_mov_b64 exec, -1")
    def clrstamp():
        if not stamps: return
        A(f"s_memrealtime s[80:81]\ns_waitcnt vmcnt(0)\ns_memrealtime s[82:83]\ns_waitcnt lgkmcnt(0)")
        for e in range(4): A(f"v_mov_b32 v{T+4+e}, s{80+e}")
        A(f"s_lshl_b32 s8, s2, 4\ns_add_u32 s8, s8, {66<<20}\nbuffer_store_dwordx4 v[{T+4}:{T+7}], v{T+2}, s[24:27], s8 offen")
    clrstamp()
    A("s_branch L_idle\nL_clear2:\ns_mul_i32 s13, s6, 12288\ns_waitcnt lgkmcnt(0)")
    if BA: A("s_barrier ; BA")
    clr(12)
    A(f"s_waitcnt vmcnt(0)\ns_mov_b64 exec, 1\nbuffer_atomic_add v{T+1}, v{T+2}, s[44:47], 0 offen offset:128 sc1\ns_mov_b64 exec, -1")
    clrstamp()
    A("s_branch L_idle\nL_noclear:")
    if BA: A("s_barrier ; BA")
    stamp(1); stamp(2)
    A("L_idle:")
    masks(A)
    A(f"v_mul_u32_u24 v{VO}, 48, v{VC}\nv_lshl_add_u32 v{VO}, v{VR}, 5, v{VO}\ns_waitcnt lgkmcnt(0)")
    if B0: A("s_barrier ; B0")
    if B02: A("s_barrier ; B02")
    A("s_cmp_eq_u32 s3, 2\ns_cbranch_scc0 L_b1\ns_movk_i32 s14, 128")
    flagcheck("L_flag2", "s14", 32)
    if ctl: A(f"v_mov_b32 v{T}, 0\nv_mov_b32 v{T+2}, {192-TM}\nv_mov_b32 v{T+3}, 1\nds_write_b64 v{T}, v[{T+2}:{T+3}] offset:{L_PROG}")
    A("L_b1:\ns_waitcnt lgkmcnt(0)")
    if stamps >= 2: stamp(3)
    A("s_barrier ; B1")
    if stamps == 1: stamp(3)
    A("s_and_b32 s8, s5, 3\ns_mul_i32 s58, s4, 3\ns_add_u32 s58, s58, s8\ns_cmp_lt_u32 s8, 3\ns_cselect_b32 s8, s3, 0\ns_cmp_eq_u32 s8, 1\ns_cbranch_scc0 L_noffn")
    srd(A, 28, 48, 1966080); srd(A, 32, 56, 1966080)
    A(f"v_mul_u32_u24 v{VQ}, 30720, v{VR}\nv_add_u32 v{VQ}, v{VQ}, v{VC}")
    A("s_mul_i32 s52, s7, 245760\ns_lshl_b32 s12, s58, 7\ns_add_u32 s52, s52, s12\ns_waitcnt lgkmcnt(0)")
    for g in range(10):
        for mtx in range(2):
            r = RING + 8 * g + 4 * mtx
            A(f"buffer_load_dwordx4 v[{r}:{r+3}], v{VQ}, s[{28+4*mtx}:{31+4*mtx}], s52 offen offset:{(g%2)*3072} {wpol}\ns_waitcnt vmcnt({RF-1})")
        if g % 2 and g < 9: A("s_add_u32 s52, s52, 6144")
    A("s_waitcnt vmcnt(0)")
    for g in range(10):
        abuild(A, AB + 4 * (g & 1), PK + g)
        for mtx in range(2): mfma(A, ACC + 4 * mtx, AB + 4 * (g & 1), RING + 8 * g + 4 * mtx, first=(g == 0))
    halfsum(8)
    A(f"s_lshl_b32 s8, s58, 3\ns_add_u32 s8, s8, s7\ns_lshl_b32 s8, s8, 9\ns_add_u32 s8, s8, {WS_F}")
    A(f"s_mov_b64 exec, 0x00ff00ff\nbuffer_store_dwordx4 v[{T}:{T+3}], v2, s[24:27], s8 offen sc1\nbuffer_store_dwordx4 v[{T+4}:{T+7}], v2, s[24:27], s8 offen offset:256 sc1")
    A("s_mov_b64 exec, -1\nL_noffn:")
    srd(A, 36, 32, 7864320); srd(A, 40, 64, 1966080); srd(A, 48, 72, 1280)
    A(f"v_lshrrev_b32 v3, 5, v0\nv_lshl_add_u32 v3, s3, 1, v3\nv_and_b32 v{T}, 16, v0\nv_lshl_add_u32 v{T}, v{VC}, 1, v{T}\nv_lshl_add_u32 v{VY}, v3, 8, v{T}")
    VP = 3
    A(f"v_lshlrev_b32 v{VP}, 2, v0\nv_lshl_add_u32 v{VP}, s3, 8, v{VP}")
    def readP(base, stride):
        for r in range(4): A(f"ds_read2st64_b32 v[{T+2*r}:{T+2*r+1}], v{VP} offset0:{base//256 + 2*r*stride} offset1:{base//256 + (2*r+1)*stride}")
        A("s_waitcnt lgkmcnt(0)")
    A("s_mul_i32 s8, s5, 205\ns_lshr_b32 s8, s8, 11\ns_mul_i32 s9, s8, 10\ns_sub_u32 s62, s5, s9\ns_mul_i32 s63, s4, 3\ns_add_u32 s63, s63, s8")
    A("s_lshl_b32 s8, s63, 2\ns_add_u32 s8, s8, s3\ns_lshl_b32 s9, s62, 7")
    A("s_mul_i32 s10, s8, 81920\ns_add_u32 s10, s10, s9\ns_add_u32 s11, s10, 5120\ns_mul_i32 s12, s8, 20480\ns_add_u32 s12, s12, s9")
    A(f"s_lshl_b32 s13, s63, 12\ns_lshl_b32 s14, s3, 6\ns_add_u32 s13, s13, s14\ns_add_u32 s13, s13, {WS_F}")
    A(f"s_mul_i32 s14, s8, 43691\ns_lshr_b32 s14, s14, 17\ns_mul_i32 s15, s14, 3\ns_sub_u32 s15, s8, s15\ns_mul_i32 s14, s14, 6144\ns_lshl_b32 s15, s15, 8\ns_add_u32 s14, s14, s15\ns_add_u32 s14, s14, {WS_O}")
    A(f"s_lshl_b32 s15, s6, 3\ns_add_u32 s15, s15, s7\ns_mul_i32 s15, s15, 768\ns_add_u32 s15, s15, {WS_O}")
    A(f"s_mul_i32 s52, s62, 24\ns_add_u32 s52, s52, s63\ns_lshl_b32 s52, s52, 8\ns_add_u32 s52, s52, {WS_Y}")
    A("s_lshl_b32 s54, s6, 8\ns_lshl_b32 s53, s7, 2")
    VWO, VWD, VF, VML = 8, 9, 10, 12
    A(f"v_mul_u32_u24 v{VWO}, 10240, v{VR}\nv_add_u32 v{VWO}, v{VWO}, v{VC}\nv_mul_u32_u24 v{VWD}, 2560, v{VR}\nv_add_u32 v{VWD}, v{VWD}, v{VC}")
    A(f"v_lshlrev_b32 v{VF}, 3, v{VR}\nv_lshl_add_u32 v{VF}, v{VC}, 5, v{VF}")
    A(f"v_and_b32 v{VML}, 31, v0\nv_lshlrev_b32 v{VML}, 3, v{VML}")
    ML, FG, WD, WO, YA = 14, 16, 20, RING, ACC
    woload = lambda g: A(f"buffer_load_dwordx4 v[{WO+4*g}:{WO+4*g+3}], v{VWO}, s[36:39], {'s10' if g < 4 else 's11'} offen offset:{(g%4)*1280} {wpol}")
    A("s_waitcnt vmcnt(0) lgkmcnt(0)\ns_cmp_ge_u32 s5, 30\ns_cbranch_scc1 L_bm")
    for g in range(2): A(f"buffer_load_dwordx4 v[{WD+4*g}:{WD+4*g+3}], v{VWD}, s[40:43], s12 offen offset:{g*1280} {wpol}\ns_waitcnt vmcnt(0)")
    for g in range(8 - NL): woload(g); A("s_waitcnt vmcnt(0)")
    A("L_bm:\ns_barrier ; BM")
    fload = f"buffer_load_dwordx2 v[{FG}:{FG+1}], v{VF}, s[24:27], s13 offen sc1\nbuffer_load_dwordx2 v[{FG+2}:{FG+3}], v{VF}, s[24:27], s13 offen offset:256 sc1"
    A(f"buffer_load_dwordx2 v[{ML}:{ML+1}], v{VML}, s[24:27], s54 offen sc1")
    A("s_cmp_ge_u32 s5, 30\ns_cbranch_scc1 L_spare_a")
    A(fload)
    A(f"s_mov_b32 s61, {SPIN}\ns_waitcnt vmcnt(0)\nL_fchk:")
    A(f"v_max3_u32 v{T}, v{FG}, v{FG+1}, v{FG+2}\nv_max_u32 v{T}, v{T}, v{FG+3}\nv_cmp_eq_u32 vcc, -1, v{T}\ns_cbranch_vccz L_fok")
    A(f"s_sub_u32 s61, s61, 1\ns_cbranch_scc1 L_fok\n{fload}\ns_waitcnt vmcnt(0)\ns_branch L_fchk\nL_fok:")
    red8(A, "v_add_f32", [FG, FG + 1, FG + 2, FG + 3])
    for r in range(4): rb(FG + r)
    for r in range(2):
        g_, t = FG + r, T + r
        A(f"v_mul_f32 v{t}, v{g_}, v{g_}\nv_mul_f32 v{t}, 0x3d372713, v{t}\nv_fma_f32 v{t}, v{t}, v{g_}, v{g_}\nv_mul_f32 v{t}, 0xc0135761, v{t}")
        A(f"v_exp_f32 v{t}, v{t}\nv_add_f32 v{t}, 1.0, v{t}\nv_rcp_f32 v{t}, v{t}\nv_mul_f32 v{t}, v{t}, v{g_}"); rb(t)
        A(f"v_mul_f32 v{t}, v{t}, v{FG+2+r}\nv_cvt_pk_bf16_f32 v{t}, v{t}, v{t}")
        abuild(A, AB + 4 * r, t)
    for g in range(2): mfma(A, YA, AB + 4 * g, WD + 4 * g, first=(g == 0))
    A("s_branch L_ml\nL_spare_a:\ns_waitcnt vmcnt(0)\nL_ml:")
    A(f"s_mov_b32 s61, {SPIN}\nL_mchk:\nv_max_u32 v{T}, v{ML}, v{ML+1}\nv_cmp_eq_u32 vcc, -1, v{T}\ns_cbranch_vccz L_mok")
    A(f"s_sub_u32 s61, s61, 1\ns_cbranch_scc1 L_mok\nbuffer_load_dwordx2 v[{ML}:{ML+1}], v{VML}, s[24:27], s54 offen sc1\ns_waitcnt vmcnt(0)\ns_branch L_mchk\nL_mok:")
    A(f"v_mov_b32 v{T}, v{ML}")
    red8(A, "v_max_f32", [T]); redhi(A, "v_max_f32", T, T + 1, (8, 16))
    A(f"v_sub_f32 v{T}, v{ML}, v{T}\nv_exp_f32 v{T}, v{T}\nv_mul_f32 v{T+2}, v{T}, v{ML+1}")
    red8(A, "v_add_f32", [T + 2]); redhi(A, "v_add_f32", T + 2, T + 1, (8, 16))
    A(f"v_rcp_f32 v{T+2}, v{T+2}\nv_mul_f32 v{T}, v{T}, v{T+2}")
    for w in range(4): A(f"s_add_u32 s9, s53, {w}\nv_readlane_b32 s{56 if w == 0 else 57+w}, v{T}, s9")
    FS = [56, 58, 59, 60]
    if ctl:
        A(f"s_cmp_eq_u32 s3, 3\ns_cbranch_scc0 L_noctl\ns_lshl_b32 s8, s4, 9\ns_add_u32 s8, s8, {WS_C}\ns_lshl_b32 s9, s5, 2\ns_add_u32 s9, s9, s8\nv_mov_b32 v{T}, 0\nv_lshrrev_b32 v{T+3}, 1, v{VML}")
        A(f"L_ctl:\nds_read_b32 v{T+1}, v{T} offset:{L_PROG}\ns_waitcnt lgkmcnt(0)\ns_mov_b64 exec, 1\nbuffer_store_dword v{T+1}, v{T}, s[24:27], s9 offen {cst}\ns_mov_b64 exec, -1\nv_readfirstlane_b32 s61, v{T+1}")
        A(f"s_cmp_ge_u32 s61, {192-CE}\ns_cbranch_scc1 L_ctld")
        if cw: A("s_waitcnt vmcnt(0)")
        A(f"buffer_load_dword v{T+4}, v{T+3}, s[24:27], s8 offen sc1\ns_waitcnt vmcnt(0)")
        A(f"v_max_i32 v{T+4}, {192-TM-6}, v{T+4}\nv_sub_u32 v{T+4}, v{T+4}, v{T+1}")
        red8(A, "v_add_u32", [T + 4]); redhi(A, "v_add_u32", T + 4, T + 5, (8, 16))
        A(f"v_readfirstlane_b32 s61, v{T+4}")
        A(f"s_cmp_gt_i32 s61, {4*(TH+TB)}\ns_cselect_b32 s84, 2, 1\ns_cmp_lt_i32 s61, {4*(TB-TH)}\ns_cselect_b32 s84, 0, s84\nv_mov_b32 v{T+2}, s84\nds_write_b32 v{T}, v{T+2} offset:{L_MODE}\ns_branch L_ctl")
        A("L_ctld:\ns_mov_b64 exec, -1\nL_noctl:")
    A("s_barrier ; B15")
    stamp(4)
    if NL:
        A("s_cmp_ge_u32 s5, 30\ns_cbranch_scc1 L_nowo")
        for g in range(8 - NL, 8): woload(g)
        A("L_nowo:")
    A("s_barrier ; B2")
    stamp(5)
    A("s_cmp_eq_u32 s3, 3\ns_cbranch_scc1 L_noo")
    readP(L_P, 3)
    for r in range(4): A(f"v_add_f32 v{T+2*r}, v{T+2*r}, v{T+2*r+1}")
    A(f"v_mul_f32 v{T}, s{FS[0]}, v{T}\nv_mul_f32 v{T+4}, s{FS[2]}, v{T+4}\nv_fmac_f32 v{T}, s{FS[1]}, v{T+2}\nv_fmac_f32 v{T+4}, s{FS[3]}, v{T+6}")
    A(f"v_add_f32 v{T}, v{T}, v{T+4}\nv_min_u32 v{T}, -2, v{T}")
    A(f"buffer_store_dword v{T}, v{VP}, s[24:27], s15 offen sc1")
    A("L_noo:\ns_cmp_ge_u32 s5, 30\ns_cbranch_scc1 L_spare_b")
    gather("L_o", "s14", G, 1)
    stamp(6)
    red8(A, "v_add_f32", [G + r for r in range(8)])
    for r in range(8): A(f"v_cvt_pk_bf16_f32 v{G+r}, v{G+r}, v{G+r}")
    abuild(A, AB, G)
    for g in range(8):
        if g < 7: abuild(A, AB + 4 * ((g + 1) & 1), G + g + 1)
        mfma(A, YA, AB + 4 * (g & 1), WO + 4 * g)
    A("s_mov_b32 exec_lo, 0x00ff00ff\ns_mov_b32 exec_hi, 0xff00ff00")
    A(f"ds_write_b128 v{VY}, v[{YA}:{YA+3}] offset:{L_Y}\ns_mov_b64 exec, -1\ns_waitcnt lgkmcnt(0)\ns_barrier ; B3")
    A("s_cmp_lg_u32 s3, 0\ns_cbranch_scc1 L_end")
    readP(L_Y, 1)
    for r in range(4): A(f"v_add_f32 v{T+2*r}, v{T+2*r}, v{T+2*r+1}")
    A(f"v_add_f32 v{T}, v{T}, v{T+2}\nv_add_f32 v{T+4}, v{T+4}, v{T+6}\nv_add_f32 v{T}, v{T}, v{T+4}\nv_min_u32 v{T}, -2, v{T}")
    A(f"buffer_store_dword v{T}, v{VP}, s[24:27], s52 offen sc1")
    def putstamps():
        if stamps and stamps != 4: putst(RING)
    putstamps()
    A("s_endpgm")
    A("L_spare_b:\ns_cmp_lg_u32 s3, 3\ns_cbranch_scc1 L_end\ns_sub_u32 s8, s2, 240")
    A(f"s_cmp_ge_u32 s8, 10\ns_cbranch_scc1 {'L_st' if stamps else 'L_end'}")
    A(f"s_mul_i32 s9, s8, 6144\ns_add_u32 s9, s9, {WS_Y}\ns_add_u32 s10, s9, 3072\ns_lshl_b32 s11, s8, 7")
    A(f"v_lshlrev_b32 v1, 4, v0\nv_and_b32 v2, 15, v0\nv_lshlrev_b32 v2, 3, v2")
    A(f"buffer_load_dwordx2 v[{ML}:{ML+1}], v2, s[20:23], s11 offen")
    A(f"s_mov_b32 s61, {SPIN}\nL_ychk:")
    for e in range(6): A(f"buffer_load_dwordx4 v[{RING+4*e}:{RING+4*e+3}], v1, s[24:27], {'s9' if e < 3 else 's10'} offen offset:{(e%3)*1024} sc1")
    A("s_sub_u32 s61, s61, 1\ns_waitcnt vmcnt(0)\ns_cbranch_scc1 L_yok")
    for e in range(8): A(f"v_max3_u32 v{T+e}, v{RING+3*e}, v{RING+3*e+1}, v{RING+3*e+2}")
    A(f"v_max3_u32 v{T}, v{T}, v{T+1}, v{T+2}\nv_max3_u32 v{T+3}, v{T+3}, v{T+4}, v{T+5}\nv_max3_u32 v{T}, v{T}, v{T+6}, v{T+7}\nv_max_u32 v{T}, v{T}, v{T+3}")
    A(f"v_cmp_eq_u32 vcc, -1, v{T}\ns_cbranch_vccnz L_ychk\nL_yok:")
    stamp(6)
    for e in (0, 2, 4):
        for r in range(4): A(f"v_add_f32 v{RING+4*e+r}, v{RING+4*e+r}, v{RING+4*e+4+r}")
    for e in (2, 4):
        for r in range(4): A(f"v_add_f32 v{RING+r}, v{RING+r}, v{RING+4*e+r}")
    for sw in (16, 32):
        for r in range(4): A(f"v_mov_b32 v{T+r}, v{RING+r}")
        for r in range(4): A(f"v_permlane{sw}_swap_b32 v{RING+r}, v{T+r}")
        for r in range(4): A(f"v_add_f32 v{RING+r}, v{RING+r}, v{T+r}")
    for e in range(2): A(f"v_lshlrev_b32 v{T+2*e}, 16, v{ML+e}\nv_and_b32 v{T+2*e+1}, s55, v{ML+e}")
    for r in range(4): A(f"v_add_f32 v{RING+r}, v{RING+r}, v{T+r}")
    A(f"v_cvt_pk_bf16_f32 v{T}, v{RING}, v{RING+1}\nv_cvt_pk_bf16_f32 v{T+1}, v{RING+2}, v{RING+3}")
    A(f"s_mov_b64 exec, 0xffff\nbuffer_store_dwordx2 v[{T}:{T+1}], v2, s[48:51], s11 offen")
    if stamps:
        A("s_mov_b64 exec, -1\ns_waitcnt vmcnt(0)\ns_branch L_st2\nL_st:"); stamp(6); A("L_st2:"); putstamps()
    A("s_endpgm")
    A("L_stream:\n; ---- stream waves 0..3: 256 keys each, K pass then V pass")
    A("s_mov_b32 s30, 100663296\ns_mov_b32 s31, 0x20000\ns_mov_b32 s34, 100663296\ns_mov_b32 s35, 0x20000")
    A(f"s_mul_i32 s52, s6, 3145728\ns_lshl_b32 s8, s7, 2\ns_add_u32 s8, s8, s3\ns_mul_i32 s9, s8, 98304\ns_add_u32 s52, s52, s9")
    A("s_lshl_b32 s54, s6, 5\ns_add_u32 s54, s54, s8\ns_lshl_b32 s54, s54, 3")
    A("v_lshrrev_b32 v1, 3, v0\nv_mul_u32_u24 v1, 384, v1\nv_and_b32 v2, 7, v0\nv_lshl_add_u32 v1, v2, 4, v1")
    Q, ACC, AB, S, M, LS, T0, RING = 8, 20, 32, 40, 72, 73, 74, 76
    assert RING + 4 * RR <= 256
    vm = VM(A); N = 192
    st = dict(issued=0, consumed=0, ctl=0)
    slot = lambda i: RING + 4 * (i % RR)
    def issue_to(n):
        n = min(n, N)
        while st["issued"] < n:
            i = st["issued"]
            assert i - RR < st["consumed"], (i, st)
            g, j = (i % 96) // 3, i % 3
            if j == 0: A(f"s_add_u32 s53, s52, {g*3072}")
            if st["ctl"]:
                A(f"s_cmp_eq_u32 s58, 2\ns_cbranch_scc1 L_i{i}\ns_waitcnt vmcnt({R-1})\ns_cbranch_vccz L_i{i}\ns_waitcnt vmcnt({RS-1})\nL_i{i}:")
            vm.op(f"buffer_load_dwordx4 v[{slot(i)}:{slot(i)+3}], v1, s[{28 if i < 96 else 32}:{31 if i < 96 else 35}], s53 offen offset:{j*128} {kvpol}", i)
            st["issued"] += 1
            if st["issued"] == N: A("s_barrier ; B15: last V load issued")
    A("s_waitcnt lgkmcnt(0)")
    if BA: A("s_barrier")
    issue_to(R0)
    masks(A)
    for g in range(32): A(f"v_mov_b32 v{S+g}, 0")
    A(f"v_mov_b32 v{M}, 0xff800000")
    A("s_mov_b32 s56, 0x3d93cd3a\ns_mov_b32 s57, 0x3fb8aa3b")
    A(f"v_and_b32 v2, 7, v0\nv_lshlrev_b32 v2, 4, v2")
    A(f"v_lshrrev_b32 v3, 5, v0\nv_lshl_add_u32 v3, s3, 1, v3\nv_mul_u32_u24 v3, 768, v3\nv_lshl_add_u32 v3, v2, 1, v3\nv_and_b32 v{T0}, 16, v0\nv_add_u32 v3, v3, v{T0}")
    win = lambda i: R0 if i < N0 else (RB if st['ctl'] else (R2 if i >= N - T2 else R))
    def step(i):
        vm.wait(i); issue_to(i + 1 + win(i))
        if i == N - TM:
            A("s_barrier ; BM")
            if ctl: st["ctl"] = 1; A(f"s_mov_b32 s58, 1\ns_mov_b64 vcc, 0\nv_mov_b32 v{T0}, 0")
        if st["ctl"] and st["issued"] < N:
            if i % 3 == 0: A(f"v_mov_b32 v{Q}, {i}\nds_read_b32 v{Q+1}, v{T0} offset:{L_MODE}\ns_cmp_lg_u32 s3, 0\ns_cbranch_scc1 L_p{i}\nds_write_b32 v{T0}, v{Q} offset:{L_PROG}\nL_p{i}:")
            if i % 3 == 1 and i > N - TM + 1: A(f"s_waitcnt lgkmcnt(0)\nv_readfirstlane_b32 s58, v{Q+1}\nv_cmp_eq_u32 vcc, 0, v{Q+1}")
        if stamps == 4 and i in (0, 16, NB - 1, 95, 143): stamp({0: 1, 16: 2, NB - 1: 3, 95: 5, 143: 6}[i])
    def kgroups(gs):
        for e in range(12):
            for g in gs: A(f"v_dot2c_f32_bf16 v{S+g}, v{slot(3*g + e//4) + e%4}, v{Q+e}")
        st["consumed"] = 3 * gs[-1] + 3
        red8(A, "v_add_f32", [S + g for g in gs])
        if mimic:
            for g in gs: A(f"v_cvt_pk_bf16_f32 v{S+g}, v{S+g}, v{S+g}")
            for g in gs: A(f"v_and_b32 v{S+g}, s55, v{S+g}")
        for g in gs: A(f"v_mul_f32 v{S+g}, s56, v{S+g}")
        if mimic:
            for g in gs: A(f"v_cvt_pk_bf16_f32 v{S+g}, v{S+g}, v{S+g}")
            for g in gs: A(f"v_and_b32 v{S+g}, s55, v{S+g}")
        for g in gs: A(f"v_max_f32 v{M}, v{M}, v{S+g}")
    i = 0
    while i < NB:
        step(i); i += 1
        if B0 and i == B0: A("s_barrier ; B0")
        if B02 and i == B02: A("s_barrier ; B02")
    A("s_barrier ; B1: q ready")
    if stamps == 4: stamp(4)
    for j in range(3): A(f"ds_read_b128 v[{Q+4*j}:{Q+4*j+3}], v2 offset:{L_Q + 128*j}")
    A("s_waitcnt lgkmcnt(0)")
    gk = 0
    while gk < 32:
        avail = min(i, 96) // 3 - gk
        if avail > 0:
            n = min(avail, CU); kgroups(list(range(gk, gk + n))); gk += n
        if gk < 32 : step(i); i += 1
    redhi(A, "v_max_f32", M, T0)
    A(f"v_mul_f32 v{M}, s57, v{M}")
    step(i); i += 1
    for g in range(32): A(f"v_fma_f32 v{S+g}, v{S+g}, s57, -v{M}")
    for g in range(16): A(f"v_exp_f32 v{S+g}, v{S+g}")
    step(i); i += 1
    for g in range(16, 32): A(f"v_exp_f32 v{S+g}, v{S+g}")
    A(f"v_add_f32 v{LS}, v{S}, v{S+1}\nv_add_f32 v{T0}, v{S+2}, v{S+3}")
    for g in range(4, 32, 2): A(f"v_add_f32 v{LS}, v{LS}, v{S+g}\nv_add_f32 v{T0}, v{T0}, v{S+g+1}")
    A(f"v_add_f32 v{LS}, v{LS}, v{T0}")
    redhi(A, "v_add_f32", LS, T0)
    A(f"v_min_u32 v{M}, -2, v{M}\nv_min_u32 v{LS}, -2, v{LS}\nv_mov_b32 v{T0}, 0\ns_mov_b64 exec, 1")
    vm.op(f"buffer_store_dwordx2 v[{M}:{LS}], v{T0}, s[24:27], s54 offen sc1", "ml")
    A("s_mov_b64 exec, -1")
    for g in range(32): A(f"v_cvt_pk_bf16_f32 v{S+g}, v{S+g}, v{S+g}")
    c = 96
    abuild(A, AB, S)
    while c < N:
        while c < i:
            g, j = (c - 96) // 3, c % 3
            mfma(A, ACC + 4 * j, AB + 4 * (g & 1), slot(c), first=(g == 0))
            c += 1; st["consumed"] = c
            if j == 0 and g < 31: abuild(A, AB + 4 * ((g + 1) & 1), S + g + 1)
        if i < N: step(i); i += 1
    A("s_mov_b32 exec_lo, 0x00ff00ff\ns_mov_b32 exec_hi, 0xff00ff00")
    for j in range(3): A(f"ds_write_b128 v3, v[{ACC+4*j}:{ACC+4*j+3}] offset:{L_P + 256*j}")
    A("s_waitcnt lgkmcnt(0)")
    if stamps == 4:
        A("s_mov_b64 exec, -1\ns_cmp_lg_u32 s3, 0\ns_cbranch_scc1 L_nost"); putst(RING); A("L_nost:")
    A("s_barrier ; B2")

    A("L_end:\ns_endpgm")
    if "e" in lst or "r" in lst:
        A(""".globl empty_kernel
.p2align 8
.type empty_kernel,@function
empty_kernel:
""" + (reporter(ri, rm, rk) if "r" in lst else "") + """
s_endpgm
.section .rodata,"a"
.p2align 6
.amdhsa_kernel empty_kernel
.amdhsa_next_free_vgpr 32
.amdhsa_next_free_sgpr 32
.amdhsa_accum_offset 32
.amdhsa_group_segment_fixed_size 0
.amdhsa_kernarg_size 96
.amdhsa_user_sgpr_count 2
.amdhsa_user_sgpr_kernarg_segment_ptr 1
.amdhsa_system_sgpr_workgroup_id_x 1
.end_amdhsa_kernel""")
    A(f""".section .rodata,"a"
.p2align 6
.amdhsa_kernel {NAME}_kernel
.amdhsa_next_free_vgpr 256
.amdhsa_next_free_sgpr 96
.amdhsa_accum_offset 256
.amdhsa_group_segment_fixed_size 0
.amdhsa_kernarg_size 96
.amdhsa_user_sgpr_count 2
.amdhsa_user_sgpr_kernarg_segment_ptr 1
.amdhsa_system_sgpr_workgroup_id_x 1
.amdhsa_float_denorm_mode_32 3
.end_amdhsa_kernel""")
    return HDR + A.finish()
if __name__ == "__main__":
    for spec in sys.argv[1:]:
        kw = {}; out = None
        for p in spec.split(","):
            k, v = p.split("=")
            if k == "out": out = v; continue
            kw[k] = int(v) if v.lstrip("-").isdigit() else v.replace("+", " ").replace("none", "")
        fn = out or ("k_" + spec.replace(",", "_").replace("=", "").replace("+", "") + ".s")
        open(fn, "w").write(gen(**kw))
        print(fn)
```

```python
import sys
from asmlib import Asm
NAME = "parallel_sum__gqa_block_cached__glu_gated_geglu__decode"
HDR = open("cdna_kernels/" + NAME + ".s.ref").read().split("; Override launch")[0]
WS_ML, WS_O, WS_F, WS_Y, WS_OB, WS_Q = 0, 8192, 204800, 303104, 393216, 589824
WS_USED = 786432
L_P, L_Q, L_Y = 0, 6144, 6656
L_PROG, L_MODE, L_ML, L_FS = 8704, 8708, 8720, 8752
WS_C = 364544
LDS_BYTES = 8768
WS_G = WS_C + 4096
DPPM = "row_mask:0xf bank_mask:0xf"
SPIN = 1 << 22
def srd(A, r, off, size):
    A(f"s_load_dwordx2 s[{r}:{r+1}], s[0:1], {off}")
    A(f"s_mov_b32 s{r+2}, {size}\ns_mov_b32 s{r+3}, 0x20000")
def red8(A, op, rs):
    for mod in ("quad_perm:[1,0,3,2]", "quad_perm:[2,3,0,1]", "row_half_mirror"):
        for r in rs: A(f"{op}_dpp v{r}, v{r}, v{r} {mod} {DPPM}")
def redhi(A, op, r, t, steps=(8, 16, 32)):
    if 8 in steps: A(f"{op}_dpp v{r}, v{r}, v{r} row_ror:8 {DPPM}")
    if 16 in steps: A(f"v_mov_b32 v{t}, v{r}\nv_permlane16_swap_b32 v{r}, v{t}\n{op} v{r}, v{r}, v{t}")
    if 32 in steps: A(f"v_mov_b32 v{t}, v{r}\nv_permlane32_swap_b32 v{r}, v{t}\n{op} v{r}, v{r}, v{t}")
def masks(A):
    A("v_and_b32 v2, 1, v0\nv_lshlrev_b32 v2, 4, v2\nv_mov_b32 v3, 0xffff\nv_lshlrev_b32 v3, v2, v3\nv_bfe_u32 v2, v0, 1, 2")
    for w in range(4): A(f"v_cmp_eq_u32 vcc, {w}, v2\nv_cndmask_b32 v{4+w}, 0, v3, vcc")
def abuild(A, a, pk):
    for w in range(4): A(f"v_and_b32 v{a+w}, v{4+w}, v{pk}")
def mfma(A, d, a, b, first=False):
    c = "0" if first else f"v[{d}:{d+3}]"
    A(f"v_mfma_f32_16x16x32_bf16 v[{d}:{d+3}], v[{a}:{a+3}], v[{b}:{b+3}], {c}")
class VM:
    def __init__(s, A): s.A = A; s.n = 0; s.at = {}
    def op(s, text, key=None): s.A(text); s.at[key] = s.n; s.n += 1
    def wait(s, key): s.A(f"s_waitcnt vmcnt({s.n - 1 - s.at[key]})")

def reporter(ri, rm, rk):
    A = Asm()
    A("s_cmp_ge_u32 s2, 1\ns_cbranch_scc1 L_rend")
    srd(A, 8, 88, 402653184)
    A(f"v_lshlrev_b32 v1, 6, v0\ns_mov_b32 s12, {64<<20}\ns_waitcnt lgkmcnt(0)")
    for e in range(4):
        A(f"buffer_load_dword v{4+e}, v1, s[8:11], s12 offen\nbuffer_load_dword v{8+e}, v1, s[8:11], s12 offen offset:{8*ri}\ns_add_u32 s12, s12, 4096")
    A("s_waitcnt vmcnt(0)\nv_readfirstlane_b32 s13, v4\ns_sub_u32 s13, s13, 100000")
    for e in range(8): A(f"v_subrev_u32 v{4+e}, s13, v{4+e}")
    A("v_min_u32 v4, v4, v5\nv_min3_u32 v4, v4, v6, v7")
    red8(A, "v_min_u32", [4]); redhi(A, "v_min_u32", 4, 12)
    for e in range(4): A(f"v_sub_u32 v{8+e}, v{8+e}, v4")
    op = {"max": "v_max_u32", "min": "v_min_u32", "avg": "v_add_u32"}[rm]
    A(f"{op} v8, v8, v9\n{op} v10, v10, v11\n{op} v8, v8, v10")
    red8(A, op, [8]); redhi(A, op, 8, 12)
    A("v_readfirstlane_b32 s14, v8")
    if rm == "avg": A("s_lshr_b32 s14, s14, 8")
    A(f"s_mul_i32 s14, s14, {rk}\ns_min_u32 s14, s14, 100000\ns_memrealtime s[16:17]\ns_waitcnt lgkmcnt(0)")
    A("L_rs:\ns_memrealtime s[18:19]\ns_waitcnt lgkmcnt(0)\ns_sub_u32 s18, s18, s16\ns_cmp_lt_u32 s18, s14\ns_cbranch_scc1 L_rs\nL_rend:")
    return A.finish()
def gen(R=6, R0=6, RR=45, NB=38, N0=10, R2=10, T2=16, CU=4, stamps=0, kvpol="nt", wqpol="nt", wpol="nt", prio=0, mimic=1, B0=6, B02=16, fast=1, FB=32, pt=0, yp=3, yld='sc1', yw=1, BA=10, ff=1, R00=2, RF=3, TM=72, NL=6, ctl=1, RS=5, RB=8, TH=12, TB=-16, CE=21, cst="", cw=0, il=2, IC=1, burst=0, rho=608, CS=48, xc=0, TX=0, XG=8,  lst="", ri=7, rm="max", rk=2):
    A = Asm()
    def stamp(i):
        if stamps: A(f"s_memrealtime s[{64+2*i}:{65+2*i}]")
    def putst(base):
        stamp(7); A("s_waitcnt lgkmcnt(0)")
        for e in range(16): A(f"v_mov_b32 v{base+e}, s{64+e}")
        A(f"s_lshl_b32 s8, s2, 6\ns_add_u32 s8, s8, {64<<20}\nv_mov_b32 v1, 0")
        for e in range(4): A(f"buffer_store_dwordx4 v[{base+4*e}:{base+4*e+3}], v1, s[24:27], s8 offen offset:{16*e}")
    if not lst: A(f"; @launch grid=(256,1,1) block=(512,1,1) lds={LDS_BYTES}")
    for c in lst:
        if c == "m": A(f"; @launch kernel={NAME}_kernel grid=(256,1,1) block=(512,1,1) lds={LDS_BYTES}")
        else: A(f"; @launch kernel=empty_kernel grid=(1,1,1) block=(64,1,1) lds=0")
    A('.amdgcn_target "amdgcn-amd-amdhsa--gfx950"\n.text')
    A(f".globl {NAME}_kernel\n.p2align 8\n.type {NAME}_kernel,@function\n{NAME}_kernel:")
    for r, off in ((20, 0), (16, 24), (24, 88), (28, 8), (44, 80), (32, 16)): A(f"s_load_dwordx2 s[{r}:{r+1}], s[0:1], {off}")
    stamp(0)
    A("v_lshrrev_b32 v1, 6, v0\nv_and_b32 v0, 63, v0\ns_cmp_ge_u32 s2, 256\nv_readfirstlane_b32 s3, v1\ns_cbranch_scc1 L_end")
    A("s_and_b32 s4, s2, 7\ns_lshr_b32 s5, s2, 3\ns_lshl_b32 s6, s4, 2\ns_and_b32 s8, s5, 3\ns_add_u32 s6, s6, s8\ns_lshr_b32 s7, s5, 2")
    A(f"s_mov_b32 s26, {WS_USED if not stamps else 402653184}\ns_mov_b32 s27, 0x20000\ns_mov_b32 s55, 0xffff0000")
    A("s_cmp_lt_u32 s3, 4\ns_cbranch_scc1 L_stream")
    A("; ---- aux waves 4..7: layernorm, q projection, FFN, output projection, hand-offs")
    A("s_mov_b32 s18, 7864320\ns_mov_b32 s19, 0x20000\ns_movk_i32 s22, 1280\ns_mov_b32 s23, s19\ns_movk_i32 s46, 256\ns_mov_b32 s47, s19")
    A("s_sub_u32 s3, s3, 4")
    XS, X0, PK, ACC, AB, T, RING = 8, 14, 26, 48, 60, 68, 96
    VQ, VY, VC, VR, VO = 1, 45, 46, 47, 44
    G = 28
    A(f"v_lshrrev_b32 v{VR}, 3, v0\nv_and_b32 v{VC}, 7, v0\nv_lshlrev_b32 v{VC}, 4, v{VC}")
    A("s_cmp_lt_u32 s3, 2\ns_cbranch_scc1 L_q0")
    A(f"s_cmp_lt_u32 s7, 2\ns_cselect_b32 s8, s3, 0\ns_cmp_eq_u32 s8, 3\ns_cbranch_scc0 L_noclear")
    A(f"v_lshlrev_b32 v{T}, 4, v0\nv_mov_b32 v{T+2}, 0\nv_mov_b32 v{T+1}, 1")
    for r in range(4): A(f"v_mov_b32 v{T+4+r}, -1")
    def clr(n):
        for e in range(n):
            A(f"buffer_store_dwordx4 v[{T+4}:{T+7}], v{T}, s[24:27], s13 offen offset:{(e%3)*1024} sc1")
            if e % 3 == 2 and e < n - 1: A("s_add_u32 s13, s13, 3072")
    def clrstamp():
        if not stamps: return
        A(f"s_memrealtime s[80:81]\ns_waitcnt vmcnt(0)\ns_memrealtime s[82:83]\ns_waitcnt lgkmcnt(0)")
        for e in range(4): A(f"v_mov_b32 v{T+4+e}, s{80+e}")
        A(f"s_lshl_b32 s8, s2, 4\ns_add_u32 s8, s8, {66<<20}\nbuffer_store_dwordx4 v[{T+4}:{T+7}], v{T+2}, s[24:27], s8 offen")
    A(f"s_cmp_eq_u32 s7, 1\ns_cbranch_scc1 L_clear2\ns_mul_i32 s13, s6, 6144\ns_add_u32 s13, s13, {WS_Q}\ns_lshl_b32 s14, s6, 2\ns_waitcnt lgkmcnt(0)")
    clr(6)
    if BA and not ff: A("s_barrier ; BA")
    A(f"s_waitcnt vmcnt(0)\ns_mov_b64 exec, 1\nbuffer_store_dword v{T+1}, v{T+2}, s[44:47], s14 offen sc1\ns_mov_b64 exec, -1")
    if BA and ff: A("s_barrier ; BA")
    clrstamp()
    A("s_branch L_idle\nL_q0:")
    A(f"v_mul_u32_u24 v2, 20, v0\nv_mul_u32_u24 v3, 20, v{VR}\ns_mul_i32 s10, s7, 160")
    A(f"v_mul_u32_u24 v{VQ}, 122880, v{VR}\nv_add_u32 v{VQ}, v{VQ}, v{VC}")
    A("s_mul_i32 s52, s7, 983040\ns_mul_i32 s12, s6, 384\ns_add_u32 s52, s52, s12")
    def rb(r): A(f"v_cvt_pk_bf16_f32 v{r}, v{r}, v{r}\nv_and_b32 v{r}, s55, v{r}")
    A("s_waitcnt lgkmcnt(0)")
    A(f"buffer_load_dwordx4 v[{XS}:{XS+3}], v2, s[20:23], 0 offen\nbuffer_load_dword v{XS+4}, v2, s[20:23], 0 offen offset:16")
    A(f"buffer_load_dwordx4 v[{X0}:{X0+3}], v3, s[20:23], s10 offen\nbuffer_load_dword v{X0+4}, v3, s[20:23], s10 offen offset:16")
    A("s_cmp_eq_u32 s3, 1\ns_cbranch_scc1 L_w1")
    for g in range(10):
        for j in range(3): A(f"buffer_load_dwordx4 v[{RING+12*g+4*j}:{RING+12*g+4*j+3}], v{VQ}, s[16:19], s52 offen offset:{128*j} {wqpol}")
        if g < 9: A("s_add_u32 s52, s52, 12288")
        if g == BA - 1: A("s_barrier ; BA")
    A("s_waitcnt vmcnt(30)\ns_branch L_ln\nL_w1:")
    if BA: A("s_barrier ; BA")
    A("s_waitcnt vmcnt(0)\nL_ln:")
    stamp(1)
    for e in range(5): A(f"v_lshlrev_b32 v{T+2*e}, 16, v{XS+e}\nv_and_b32 v{T+2*e+1}, s55, v{XS+e}")
    SM, SV, TT = T + 10, T + 11, T + 12
    A(f"v_add_f32 v{SM}, v{T}, v{T+1}")
    for e in range(2, 10): A(f"v_add_f32 v{SM}, v{SM}, v{T+e}")
    red8(A, "v_add_f32", [SM]); redhi(A, "v_add_f32", SM, TT)
    A(f"v_mul_f32 v{SM}, 0x3acccccd, v{SM}")
    for e in range(10): A(f"v_sub_f32 v{T+e}, v{T+e}, v{SM}")
    A(f"v_mul_f32 v{SV}, v{T}, v{T}")
    for e in range(1, 10): A(f"v_fmac_f32 v{SV}, v{T+e}, v{T+e}")
    red8(A, "v_add_f32", [SV]); redhi(A, "v_add_f32", SV, TT)
    A(f"v_mul_f32 v{SV}, 0x3acccccd, v{SV}"); rb(SV); rb(SM)
    A(f"v_add_f32 v{SV}, 0x3727c5ac, v{SV}"); rb(SV)
    A(f"v_sqrt_f32 v{SV}, v{SV}"); rb(SV)
    A(f"v_rcp_f32 v{SV}, v{SV}")
    for e in range(5): A(f"v_lshlrev_b32 v{PK+2*e}, 16, v{X0+e}\nv_and_b32 v{PK+2*e+1}, s55, v{X0+e}")
    for e in range(10): A(f"v_sub_f32 v{PK+e}, v{PK+e}, v{SM}")
    for e in range(10): A(f"v_cvt_pk_bf16_f32 v{PK+e}, v{PK+e}, v{PK+e}")
    for e in range(10): A(f"v_and_b32 v{PK+e}, s55, v{PK+e}")
    for e in range(10): A(f"v_mul_f32 v{PK+e}, v{PK+e}, v{SV}")
    for e in range(10): A(f"v_cvt_pk_bf16_f32 v{PK+e}, v{PK+e}, v{PK+e}")
    A("s_cmp_eq_u32 s3, 1\ns_cbranch_scc1 L_idle")
    masks(A)
    def halfsum(n):
        for r in range(n): A(f"v_mov_b32 v{T+12+r}, v{ACC+r}")
        for r in range(n): A(f"v_permlane32_swap_b32 v{ACC+r}, v{T+12+r}")
        for r in range(n): A(f"v_add_f32_dpp v{T+r}, v{T+12+r}, v{ACC+r} row_ror:8 {DPPM}")
        for r in range(n): A(f"v_min_u32 v{T+r}, -2, v{T+r}")
        A(f"v_and_b32 v2, 16, v0\nv_lshl_add_u32 v2, v{VC}, 1, v2")
    abuild(A, AB, PK)
    for g in range(10):
        if g < 9: abuild(A, AB + 4 * ((g + 1) & 1), PK + g + 1)
        A(f"s_waitcnt vmcnt({27-3*g})")
        for j in range(3): mfma(A, ACC + 4 * j, AB + 4 * (g & 1), RING + 12 * g + 4 * j, first=(g == 0))
    A(f"v_mul_u32_u24 v{VO}, 48, v{VC}\nv_lshl_add_u32 v{VO}, v{VR}, 5, v{VO}")
    A(f"s_mul_i32 s13, s6, 6144\ns_add_u32 s13, s13, {WS_Q}\ns_mul_i32 s12, s7, 768\ns_add_u32 s12, s12, s13")
    halfsum(12)
    if stamps == 3: stamp(2)
    if B0: A("s_barrier ; B0")
    def flagcheck(lab, so, n):
        A(f"s_load_dword s60, s[44:45], {so}\ns_waitcnt lgkmcnt(0)")
        A(f"s_cmp_ge_u32 s60, {n}\ns_cbranch_scc1 {lab}_ok\ns_mov_b32 s61, {SPIN}\nv_mov_b32 v{T+12}, 0")
        A(f"{lab}:\nbuffer_load_dword v{T+13}, v{T+12}, s[44:47], {so} offen sc1\ns_waitcnt vmcnt(0)\nv_readfirstlane_b32 s60, v{T+13}")
        A(f"s_sub_u32 s61, s61, 1\ns_cbranch_scc1 {lab}_ok\ns_cmp_lt_u32 s60, {n}\ns_cbranch_scc1 {lab}\n{lab}_ok:")
    A("s_lshl_b32 s14, s6, 2")
    flagcheck("L_flag", "s14", 1)
    if stamps != 3: stamp(2)
    A("s_mov_b64 exec, 0x00ff00ff")
    for j in range(3): A(f"buffer_store_dwordx4 v[{T+4*j}:{T+4*j+3}], v2, s[24:27], s12 offen offset:{256*j} sc1")
    A("s_mov_b64 exec, -1")
    def gather(lab, so, base, nj, alt=0):
        A(f"s_mov_b32 s61, {SPIN - 1}\n{lab}chk:")
        if alt:
            A(f"s_and_b32 s8, s61, {FB-1}\ns_cselect_b32 s8, 0, {alt}\ns_add_u32 s8, s8, {so}"); so = "s8"
        for j in range(nj):
            for e in range(2): A(f"buffer_load_dwordx4 v[{base+8*j+4*e}:{base+8*j+4*e+3}], v{VO}, s[24:27], {so} offen offset:{256*j+16*e} sc1")
        A(f"s_sub_u32 s61, s61, 1\ns_waitcnt vmcnt(0)\ns_cbranch_scc1 {lab}ok")
        rs = [base + r for r in range(8 * nj)]; t = T + 12
        while len(rs) > 1:
            if len(rs) == 2: A(f"v_max_u32 v{t}, v{rs[0]}, v{rs[1]}"); rs = [t]
            else: A(f"v_max3_u32 v{t}, v{rs[0]}, v{rs[1]}, v{rs[2]}"); rs = rs[3:] + [t]
            t += 1
        A(f"v_cmp_eq_u32 vcc, -1, v{rs[0]}\ns_cbranch_vccnz {lab}chk\n{lab}ok:")
    if B02: A("s_barrier ; B02")
    gather("L_q", "s13", RING, 3)
    red8(A, "v_add_f32", [RING + r for r in range(24)])
    for r in range(12): A(f"v_cvt_pk_bf16_f32 v{T+r}, v{RING+2*r}, v{RING+2*r+1}")
    A(f"v_lshlrev_b32 v2, 4, v{VR}")
    for j in range(3): A(f"ds_write_b128 v2, v[{T+4*j}:{T+4*j+3}] offset:{L_Q + 128*j}")
    A("s_branch L_b1")
    A("L_clear2:\ns_mul_i32 s13, s6, 18432\ns_waitcnt lgkmcnt(0)")
    if BA: A("s_barrier ; BA")
    clr(18)
    if B0: A("s_barrier ; B0")
    A(f"s_waitcnt vmcnt(0)\ns_mov_b64 exec, 1\nbuffer_atomic_add v{T+1}, v{T+2}, s[44:47], 0 offen offset:128 sc1\ns_mov_b64 exec, -1")
    clrstamp()
    A("s_branch L_idle2\nL_noclear:")
    if BA: A("s_barrier ; BA")
    stamp(1); stamp(2)
    A("L_idle:")
    if B0: A("s_barrier ; B0")
    A("L_idle2:")
    masks(A)
    A(f"v_mul_u32_u24 v{VO}, 48, v{VC}\nv_lshl_add_u32 v{VO}, v{VR}, 5, v{VO}\ns_waitcnt lgkmcnt(0)")
    if B02: A("s_barrier ; B02")
    A("s_cmp_eq_u32 s3, 2\ns_cbranch_scc0 L_b1")
    A(f"v_mov_b32 v{T}, 0\nv_mov_b32 v{T+2}, {CS}\nv_mov_b32 v{T+3}, 1\nds_write_b64 v{T}, v[{T+2}:{T+3}] offset:{L_PROG}")
    A(f"v_lshrrev_b32 v{T}, 2, v{VC}\nv_mov_b32 v{T+4}, -1\nds_write_b32 v{T}, v{T+4} offset:{L_ML}")
    A("L_b1:\ns_waitcnt lgkmcnt(0)")
    if stamps >= 2: stamp(3)
    A("s_barrier ; B1")
    if stamps == 1: stamp(3)
    A("s_and_b32 s8, s5, 3\ns_mul_i32 s58, s4, 3\ns_add_u32 s58, s58, s8\ns_cmp_lt_u32 s8, 3\ns_cselect_b32 s8, s3, 0\ns_cmp_eq_u32 s8, 1\ns_cbranch_scc0 L_noffn")
    srd(A, 28, 48, 1966080); srd(A, 32, 56, 1966080)
    A(f"v_mul_u32_u24 v{VQ}, 30720, v{VR}\nv_add_u32 v{VQ}, v{VQ}, v{VC}")
    A("s_mul_i32 s52, s7, 245760\ns_lshl_b32 s12, s58, 7\ns_add_u32 s52, s52, s12\ns_waitcnt lgkmcnt(0)")
    for g in range(10):
        for mtx in range(2):
            r = RING + 8 * g + 4 * mtx
            A(f"buffer_load_dwordx4 v[{r}:{r+3}], v{VQ}, s[{28+4*mtx}:{31+4*mtx}], s52 offen offset:{(g%2)*3072} {wpol}\ns_waitcnt vmcnt({RF-1})")
        if g % 2 and g < 9: A("s_add_u32 s52, s52, 6144")
    A("s_waitcnt vmcnt(0)")
    for g in range(10):
        abuild(A, AB + 4 * (g & 1), PK + g)
        for mtx in range(2): mfma(A, ACC + 4 * mtx, AB + 4 * (g & 1), RING + 8 * g + 4 * mtx, first=(g == 0))
    halfsum(8)
    A("s_movk_i32 s8, 128"); flagcheck("L_flag3", "s8", 32)
    A(f"s_lshl_b32 s8, s58, 3\ns_add_u32 s8, s8, s7\ns_lshl_b32 s8, s8, 9\ns_add_u32 s8, s8, {WS_F}")
    A(f"s_mov_b64 exec, 0x00ff00ff\nbuffer_store_dwordx4 v[{T}:{T+3}], v2, s[24:27], s8 offen sc1\nbuffer_store_dwordx4 v[{T+4}:{T+7}], v2, s[24:27], s8 offen offset:256 sc1")
    A("s_mov_b64 exec, -1\nL_noffn:")
    srd(A, 36, 32, 7864320); srd(A, 40, 64, 1966080); srd(A, 48, 72, 1280)
    A(f"v_lshrrev_b32 v3, 5, v0\nv_lshl_add_u32 v3, s3, 1, v3\nv_and_b32 v{T}, 16, v0\nv_lshl_add_u32 v{T}, v{VC}, 1, v{T}\nv_lshl_add_u32 v{VY}, v3, 8, v{T}")
    VP = 3
    A(f"v_lshlrev_b32 v{VP}, 2, v0\nv_lshl_add_u32 v{VP}, s3, 8, v{VP}")
    def readP(base, stride):
        for r in range(4): A(f"ds_read2st64_b32 v[{T+2*r}:{T+2*r+1}], v{VP} offset0:{base//256 + 2*r*stride} offset1:{base//256 + (2*r+1)*stride}")
        A("s_waitcnt lgkmcnt(0)")
    A("s_mul_i32 s8, s5, 205\ns_lshr_b32 s8, s8, 11\ns_mul_i32 s9, s8, 10\ns_sub_u32 s62, s5, s9\ns_mul_i32 s63, s4, 3\ns_add_u32 s63, s63, s8")
    A("s_lshl_b32 s8, s63, 2\ns_add_u32 s8, s8, s3\ns_lshl_b32 s9, s62, 7")
    A("s_mul_i32 s10, s8, 81920\ns_add_u32 s10, s10, s9\ns_add_u32 s11, s10, 5120\ns_mul_i32 s12, s8, 20480\ns_add_u32 s12, s12, s9")
    A(f"s_lshl_b32 s13, s63, 12\ns_lshl_b32 s14, s3, 6\ns_add_u32 s13, s13, s14\ns_add_u32 s13, s13, {WS_F}")
    A(f"s_mul_i32 s14, s8, 43691\ns_lshr_b32 s14, s14, 17\ns_mul_i32 s15, s14, 3\ns_sub_u32 s15, s8, s15\ns_mul_i32 s14, s14, 6144\ns_lshl_b32 s15, s15, 8\ns_add_u32 s14, s14, s15\ns_add_u32 s14, s14, {WS_O}")
    A(f"s_mul_i32 s52, s62, 24\ns_add_u32 s52, s52, s63\ns_lshl_b32 s52, s52, 8\ns_add_u32 s52, s52, {WS_Y}")
    A("s_lshl_b32 s54, s6, 8\ns_lshl_b32 s53, s7, 2")
    VWO, VWD, VF, VML = 8, 9, 10, 12
    A(f"v_mul_u32_u24 v{VWO}, 10240, v{VR}\nv_add_u32 v{VWO}, v{VWO}, v{VC}\nv_mul_u32_u24 v{VWD}, 2560, v{VR}\nv_add_u32 v{VWD}, v{VWD}, v{VC}")
    A(f"v_lshlrev_b32 v{VF}, 3, v{VR}\nv_lshl_add_u32 v{VF}, v{VC}, 5, v{VF}")
    A(f"v_and_b32 v{VML}, 31, v0\nv_lshlrev_b32 v{VML}, 3, v{VML}")
    ML, FG, WD, WO, YA = 14, 16, 20, RING, ACC
    woload = lambda g: A(f"buffer_load_dwordx4 v[{WO+4*g}:{WO+4*g+3}], v{VWO}, s[36:39], {'s10' if g < 4 else 's11'} offen offset:{(g%4)*1280} {wpol}")
    A("s_waitcnt vmcnt(0) lgkmcnt(0)\ns_cmp_ge_u32 s5, 30\ns_cbranch_scc1 L_bm")
    for g in range(2): A(f"buffer_load_dwordx4 v[{WD+4*g}:{WD+4*g+3}], v{VWD}, s[40:43], s12 offen offset:{g*1280} {wpol}\ns_waitcnt vmcnt(0)")
    for g in range(8 - NL): woload(g); A("s_waitcnt vmcnt(0)")
    def service(ph, stop):
        L = f"L_s{ph}"
        A(f"s_lshl_b32 s8, s4, 9\ns_add_u32 s8, s8, {WS_C}\nv_mov_b32 v{T}, 0\nv_min_u32 v{T+3}, 32, v0\nv_lshlrev_b32 v{T+3}, 2, v{T+3}")
        A(f"s_cmp_eq_u32 s3, 3\ns_cbranch_scc0 {L}x\ns_lshl_b32 s9, s5, 2\ns_add_u32 s9, s9, s8")
        if ph == 1: A(f"s_mov_b32 s85, 0\ns_lshl_b32 s86, s7, 5\ns_add_u32 s86, s86, s54\nv_and_b32 v{T+8}, 3, v0\nv_lshlrev_b32 v{T+8}, 3, v{T+8}")
        A(f"{L}c:\nds_read_b32 v{T+1}, v{T} offset:{L_PROG}")
        if ph == 1: A(f"ds_read_b64 v[{T+6}:{T+7}], v{T+8} offset:{L_ML}")
        A(f"s_waitcnt lgkmcnt(0)\ns_mov_b64 exec, 1\nbuffer_store_dword v{T+1}, v{T}, s[24:27], s9 offen\ns_mov_b64 exec, -1\nv_readfirstlane_b32 s61, v{T+1}")
        if ph == 1:
            A(f"s_cmp_eq_u32 s85, 1\ns_cbranch_scc1 {L}m\nv_max_u32 v{T+9}, v{T+6}, v{T+7}\nv_cmp_eq_u32 vcc, -1, v{T+9}\ns_cbranch_vccnz {L}n")
            A(f"s_mov_b64 exec, 15\nbuffer_store_dwordx2 v[{T+6}:{T+7}], v{T+8}, s[24:27], s86 offen sc1\ns_mov_b64 exec, -1\ns_mov_b32 s85, 1\n{L}m:")
        A(f"s_cmp_ge_u32 s61, {stop}\ns_cbranch_scc1 {L}d\n{L}n:")
        if cw: A("s_waitcnt vmcnt(0)")
        A(f"buffer_load_dword v{T+4}, v{T+3}, s[24:27], s8 offen sc1\ns_waitcnt vmcnt(0)\nv_readlane_b32 s84, v{T+4}, 32")
        A(f"v_max_i32 v{T+4}, {CS}, v{T+4}\nv_sub_u32 v{T+4}, v{T+4}, v{T+1}")
        red8(A, "v_add_u32", [T + 4]); redhi(A, "v_add_u32", T + 4, T + 5, (8, 16))
        A(f"v_readfirstlane_b32 s61, v{T+4}\ns_add_i32 s61, s61, s84")
        if ctl: A(f"s_cmp_gt_i32 s61, {4*(TH+TB)}\ns_cselect_b32 s84, 2, 1\ns_cmp_lt_i32 s61, {4*(TB-TH)}\ns_cselect_b32 s84, 0, s84\nv_mov_b32 v{T+2}, s84\nds_write_b32 v{T}, v{T+2} offset:{L_MODE}")
        A(f"s_branch {L}c\n{L}x:")
        if xc:
            A(f"s_lshl_b32 s9, s5, 2\ns_add_u32 s9, s9, s3\ns_cmp_eq_u32 s9, 126\ns_cbranch_scc0 {L}d\ns_lshl_b32 s9, s4, 7\ns_add_u32 s9, s9, {WS_G}\ns_mov_b32 s85, {WS_G}\nv_lshlrev_b32 v{T+8}, 3, v{VC}")
            A(f"{L}g:\nds_read_b32 v{T+1}, v{T} offset:{L_PROG}\nbuffer_load_dword v{T+4}, v{T+3}, s[24:27], s8 offen sc1\ns_waitcnt vmcnt(0) lgkmcnt(0)\nv_readfirstlane_b32 s61, v{T+1}\nv_max_i32 v{T+4}, {CS}, v{T+4}")
            red8(A, "v_add_u32", [T + 4]); redhi(A, "v_add_u32", T + 4, T + 5, (8, 16))
            A(f"s_mov_b64 exec, 1\nbuffer_store_dword v{T+4}, v{T}, s[24:27], s9 offen sc1\ns_mov_b64 exec, -1\ns_cmp_ge_u32 s61, {stop-6}\ns_cbranch_scc1 {L}d")
            A(f"s_waitcnt vmcnt(0)\nbuffer_load_dword v{T+6}, v{T+8}, s[24:27], s85 offen sc1\ns_waitcnt vmcnt(0)\nv_max_i32 v{T+6}, {32*CS}, v{T+6}\nv_sub_u32 v{T+6}, v{T+6}, v{T+4}")
            red8(A, "v_add_u32", [T + 6])
            A(f"v_mul_i32_i24 v{T+6}, {XG}, v{T+6}\nv_ashrrev_i32 v{T+6}, 6, v{T+6}\nv_add_u32 v{T+6}, {4*TX}, v{T+6}\ns_mov_b64 exec, 1\nbuffer_store_dword v{T+6}, v{T}, s[24:27], s8 offen offset:128\ns_mov_b64 exec, -1\ns_branch {L}g")
        A(f"{L}d:")
    A("L_bm:\ns_movk_i32 s8, 128"); flagcheck("L_flag2", "s8", 32)
    service(1, 192 - TM - 12)
    A("s_barrier ; BM")
    fload = f"buffer_load_dwordx2 v[{FG}:{FG+1}], v{VF}, s[24:27], s13 offen sc1\nbuffer_load_dwordx2 v[{FG+2}:{FG+3}], v{VF}, s[24:27], s13 offen offset:256 sc1"
    A("s_cmp_ge_u32 s5, 30\ns_cbranch_scc1 L_ml")
    if pt == 1: A(f"buffer_load_dwordx4 v[{G}:{G+3}], v{VO}, s[24:27], s14 offen sc1")
    A(fload)
    A(f"s_mov_b32 s61, {SPIN}\ns_waitcnt vmcnt(0)\nL_fchk:")
    A(f"v_max3_u32 v{T}, v{FG}, v{FG+1}, v{FG+2}\nv_max_u32 v{T}, v{T}, v{FG+3}\nv_cmp_eq_u32 vcc, -1, v{T}\ns_cbranch_vccz L_fok")
    A(f"s_sub_u32 s61, s61, 1\ns_cbranch_scc1 L_fok\n{fload}\ns_waitcnt vmcnt(0)\ns_branch L_fchk\nL_fok:")
    red8(A, "v_add_f32", [FG, FG + 1, FG + 2, FG + 3])
    for r in range(4): rb(FG + r)
    for r in range(2):
        g_, t = FG + r, T + r
        A(f"v_mul_f32 v{t}, v{g_}, v{g_}\nv_mul_f32 v{t}, 0x3d372713, v{t}\nv_fma_f32 v{t}, v{t}, v{g_}, v{g_}\nv_mul_f32 v{t}, 0xc0135761, v{t}")
        A(f"v_exp_f32 v{t}, v{t}\nv_add_f32 v{t}, 1.0, v{t}\nv_rcp_f32 v{t}, v{t}\nv_mul_f32 v{t}, v{t}, v{g_}"); rb(t)
        A(f"v_mul_f32 v{t}, v{t}, v{FG+2+r}\nv_cvt_pk_bf16_f32 v{t}, v{t}, v{t}")
        abuild(A, AB + 4 * r, t)
    for g in range(2): mfma(A, YA, AB + 4 * g, WD + 4 * g, first=(g == 0))
    A(f"L_ml:\ns_cmp_lg_u32 s3, 0\ns_cbranch_scc1 L_noml\nbuffer_load_dwordx2 v[{ML}:{ML+1}], v{VML}, s[24:27], s54 offen sc1\ns_waitcnt vmcnt(0)")
    A(f"s_mov_b32 s61, {SPIN}\nL_mchk:\nv_max_u32 v{T}, v{ML}, v{ML+1}\nv_cmp_eq_u32 vcc, -1, v{T}\ns_cbranch_vccz L_mok")
    A(f"s_sub_u32 s61, s61, 1\ns_cbranch_scc1 L_mok\nbuffer_load_dwordx2 v[{ML}:{ML+1}], v{VML}, s[24:27], s54 offen sc1\ns_waitcnt vmcnt(0)\ns_branch L_mchk\nL_mok:")
    A(f"v_mov_b32 v{T}, v{ML}")
    red8(A, "v_max_f32", [T]); redhi(A, "v_max_f32", T, T + 1, (8, 16))
    A(f"v_sub_f32 v{T}, v{ML}, v{T}\nv_exp_f32 v{T}, v{T}\nv_mul_f32 v{T+2}, v{T}, v{ML+1}")
    red8(A, "v_add_f32", [T + 2]); redhi(A, "v_add_f32", T + 2, T + 1, (8, 16))
    A(f"v_rcp_f32 v{T+2}, v{T+2}\nv_mul_f32 v{T}, v{T}, v{T+2}")
    A(f"v_subrev_u32 v{T+1}, s53, v0\nv_cmp_gt_u32 vcc, 4, v{T+1}\nv_lshlrev_b32 v{T+1}, 2, v{T+1}\ns_and_saveexec_b64 s[8:9], vcc\nds_write_b32 v{T+1}, v{T} offset:{L_FS}\ns_mov_b64 exec, -1\ns_waitcnt lgkmcnt(0)\nL_noml:")
    service(2, 192 - CE)
    A("s_barrier ; B15")
    stamp(4)
    A("s_cmp_ge_u32 s5, 30\ns_cbranch_scc1 L_nowo")
    if pt == 2: A(f"buffer_load_dwordx4 v[{G}:{G+3}], v{VO}, s[24:27], s14 offen sc1")
    for g in range(8 - NL, 8): woload(g)
    A("L_nowo:")
    A("s_barrier ; B2")
    stamp(5)
    A("s_cmp_ge_u32 s5, 30\ns_cbranch_scc1 L_spare_b")
    gather("L_o", "s14", G, 1, alt=(WS_OB - WS_O) if fast else 0)
    stamp(6)
    red8(A, "v_add_f32", [G + r for r in range(8)])
    for r in range(8): A(f"v_cvt_pk_bf16_f32 v{G+r}, v{G+r}, v{G+r}")
    abuild(A, AB, G)
    for g in range(8):
        if g < 7: abuild(A, AB + 4 * ((g + 1) & 1), G + g + 1)
        mfma(A, YA, AB + 4 * (g & 1), WO + 4 * g)
    A("s_mov_b32 exec_lo, 0x00ff00ff\ns_mov_b32 exec_hi, 0xff00ff00")
    A(f"ds_write_b128 v{VY}, v[{YA}:{YA+3}] offset:{L_Y}\ns_mov_b64 exec, -1\ns_waitcnt lgkmcnt(0)\ns_barrier ; B3")
    A("s_cmp_lg_u32 s3, 0\ns_cbranch_scc1 L_end")
    readP(L_Y, 1)
    for r in range(4): A(f"v_add_f32 v{T+2*r}, v{T+2*r}, v{T+2*r+1}")
    A(f"v_add_f32 v{T}, v{T}, v{T+2}\nv_add_f32 v{T+4}, v{T+4}, v{T+6}\nv_add_f32 v{T}, v{T}, v{T+4}\nv_min_u32 v{T}, -2, v{T}")
    A(f"buffer_store_dword v{T}, v{VP}, s[24:27], s52 offen sc1")
    def putstamps():
        if stamps and stamps != 4: putst(RING)
    putstamps()
    A("s_endpgm")
    A(f"L_spare_b:\ns_cmp_lt_u32 s3, {4-yw}\ns_cbranch_scc1 L_end\ns_sub_u32 s8, s2, 240")
    A(f"s_cmp_ge_u32 s8, 10\ns_cbranch_scc1 {'L_st' if stamps else 'L_end'}")
    A(f"s_mul_i32 s9, s8, 6144\ns_add_u32 s9, s9, {WS_Y}\ns_add_u32 s10, s9, 3072\ns_lshl_b32 s11, s8, 7")
    A(f"v_lshlrev_b32 v1, 4, v0\nv_and_b32 v2, 15, v0\nv_lshlrev_b32 v2, 3, v2")
    A(f"buffer_load_dwordx2 v[{ML}:{ML+1}], v2, s[20:23], s11 offen")
    def yround(k):
        for e in range(6): A(f"buffer_load_dwordx4 v[{RING+24*(k+1)+4*e}:{RING+24*(k+1)+4*e+3}], v1, s[24:27], {'s9' if e < 3 else 's10'} offen offset:{(e%3)*1024} {yld}")
    A(f"s_mov_b32 s61, {SPIN}")
    for k in range(yp - 1): yround(k)
    A("L_ychk:")
    for k in range(yp):
        yround((k + yp - 1) % yp); Y = RING + 24 * (k + 1)
        A(f"s_waitcnt vmcnt({6*(yp-1)})")
        for e in range(8): A(f"v_max3_u32 v{T+e}, v{Y+3*e}, v{Y+3*e+1}, v{Y+3*e+2}")
        A(f"v_max3_u32 v{T}, v{T}, v{T+1}, v{T+2}\nv_max3_u32 v{T+3}, v{T+3}, v{T+4}, v{T+5}\nv_max3_u32 v{T}, v{T}, v{T+6}, v{T+7}\nv_max_u32 v{T}, v{T}, v{T+3}")
        A(f"v_cmp_eq_u32 vcc, -1, v{T}")
        for e in (0, 2, 4):
            for r in range(0, 4, 2): A(f"v_pk_add_f32 v[{RING+4*e+r}:{RING+4*e+r+1}], v[{Y+4*e+r}:{Y+4*e+r+1}], v[{Y+4*e+4+r}:{Y+4*e+4+r+1}]")
        A("s_cbranch_vccz L_yok")
    A("s_sub_u32 s61, s61, 1\ns_cbranch_scc0 L_ychk\nL_yok:")
    stamp(6)
    for e in (2, 4):
        for r in range(4): A(f"v_add_f32 v{RING+r}, v{RING+r}, v{RING+4*e+r}")
    for sw in (16, 32):
        for r in range(4): A(f"v_mov_b32 v{T+r}, v{RING+r}")
        for r in range(4): A(f"v_permlane{sw}_swap_b32 v{RING+r}, v{T+r}")
        for r in range(4): A(f"v_add_f32 v{RING+r}, v{RING+r}, v{T+r}")
    for e in range(2): A(f"v_lshlrev_b32 v{T+2*e}, 16, v{ML+e}\nv_and_b32 v{T+2*e+1}, s55, v{ML+e}")
    for r in range(4): A(f"v_add_f32 v{RING+r}, v{RING+r}, v{T+r}")
    A(f"v_cvt_pk_bf16_f32 v{T}, v{RING}, v{RING+1}\nv_cvt_pk_bf16_f32 v{T+1}, v{RING+2}, v{RING+3}")
    A(f"s_mov_b64 exec, 0xffff\nbuffer_store_dwordx2 v[{T}:{T+1}], v2, s[48:51], s11 offen")
    if stamps:
        A("s_mov_b64 exec, -1\ns_waitcnt vmcnt(0)\ns_branch L_st2\nL_st:"); stamp(6); A("L_st2:"); putstamps()
    A("s_endpgm")
    A("L_stream:\n; ---- stream waves 0..3: 256 keys each, K pass then V pass")
    A("s_mov_b32 s30, 100663296\ns_mov_b32 s31, 0x20000\ns_mov_b32 s34, 100663296\ns_mov_b32 s35, 0x20000")
    sw, ss, sc = {0: (98304, 393216, IC*3072), 1: (IC*3072, 393216, 4*IC*3072), 2: (IC*3072, 4*IC*3072, 32*IC*3072), 3: (786432, IC*3072, 8*IC*3072)}[il]
    goff = lambda g: (g // IC) * sc + (g % IC) * 3072
    A(f"s_mul_i32 s52, s6, 3145728\ns_lshl_b32 s8, s7, 2\ns_add_u32 s8, s8, s3\ns_mul_i32 s9, s7, {ss}\ns_add_u32 s52, s52, s9\ns_mul_i32 s9, s3, {sw}\ns_add_u32 s52, s52, s9")
    A("v_lshrrev_b32 v1, 3, v0\nv_mul_u32_u24 v1, 384, v1\nv_and_b32 v2, 7, v0\nv_lshl_add_u32 v1, v2, 4, v1")
    Q, ACC, AB, S, M, LS, T0, RING = 8, 20, 32, 40, 72, 73, 74, 76
    assert RING + 4 * RR <= 256
    vm = VM(A); N = 192
    st = dict(issued=0, consumed=0, ctl=0)
    slot = lambda i: RING + 4 * (i % RR)
    def nextoff(g):
        if rho: A(f"s_add_u32 s53, s59, {32*g}\ns_and_b32 s53, s53, 1023\ns_mul_i32 s53, s53, 3072\ns_add_u32 s53, s53, s60")
        else: A(f"s_add_u32 s53, s52, {goff(g)}")
    if rho: A(f"s_mul_i32 s59, s6, {rho}\ns_add_u32 s59, s59, s8\ns_mul_i32 s60, s6, 3145728")
    nextoff(0)
    def issue_to(n):
        if burst: n = n // 3 * 3
        n = min(n, N)
        while st["issued"] < n:
            i = st["issued"]
            assert i - RR < st["consumed"], (i, st)
            g, j = (i % 96) // 3, i % 3
            bs = 3 if burst else 1
            if st["ctl"] and (j == 0 or not burst):
                A(f"s_cmp_eq_u32 s58, 2\ns_cbranch_scc1 L_i{i}\ns_waitcnt vmcnt({R-bs})\ns_cbranch_vccz L_i{i}\ns_waitcnt vmcnt({RS-bs})\nL_i{i}:")
            vm.op(f"buffer_load_dwordx4 v[{slot(i)}:{slot(i)+3}], v1, s[{28 if i < 96 else 32}:{31 if i < 96 else 35}], s53 offen offset:{j*128} {kvpol}", i)
            st["issued"] += 1
            if j == 2: nextoff((g + 1) % 32)
            if st["issued"] == N:
                A(f"s_barrier ; B15: last V load issued\nds_read_b128 v[{Q}:{Q+3}], v0 offset:{L_FS}")
                A(f"v_mbcnt_lo_u32_b32 v2, -1, 0\nv_mbcnt_hi_u32_b32 v2, -1, v2\nv_lshlrev_b32 v2, 2, v2\nv_lshl_add_u32 v2, s3, 8, v2")
                A(f"s_lshl_b32 s15, s6, 3\ns_add_u32 s15, s15, s7\ns_mul_i32 s15, s15, 768\ns_add_u32 s15, s15, {WS_O}")
    A("s_waitcnt lgkmcnt(0)")
    issue_to(R00)
    if BA: A("s_barrier")
    issue_to(R0)
    masks(A)
    for g in range(32): A(f"v_mov_b32 v{S+g}, 0")
    A(f"v_mov_b32 v{M}, 0xff800000")
    A("s_mov_b32 s56, 0x3d93cd3a\ns_mov_b32 s57, 0x3fb8aa3b")
    A(f"v_and_b32 v2, 7, v0\nv_lshlrev_b32 v2, 4, v2")
    A(f"v_lshrrev_b32 v3, 5, v0\nv_lshl_add_u32 v3, s3, 1, v3\nv_mul_u32_u24 v3, 768, v3\nv_lshl_add_u32 v3, v2, 1, v3\nv_and_b32 v{T0}, 16, v0\nv_add_u32 v3, v3, v{T0}")
    win = lambda i: R0 if i < N0 else (RB if st['ctl'] else (R2 if i >= N - T2 else R))
    def step(i):
        vm.wait(i); issue_to(i + 1 + win(i))
        if i == N - TM:
            A("s_barrier ; BM")
        if i == CS: st["ctl"] = 1; A(f"s_mov_b32 s58, 1\ns_mov_b64 vcc, 0\nv_mov_b32 v0, 0")
        if st["ctl"] and st["issued"] < N:
            if i % 3 == 0: A(f"v_mov_b32 v2, {i}\nds_read_b32 v75, v0 offset:{L_MODE}\ns_cmp_lg_u32 s3, 0\ns_cbranch_scc1 L_p{i}\nds_write_b32 v0, v2 offset:{L_PROG}\nL_p{i}:")
            if i % 3 == 1 and i > CS + 1: A(f"s_waitcnt lgkmcnt(0)\nv_readfirstlane_b32 s58, v75\nv_cmp_eq_u32 vcc, 0, v75")
        if stamps == 4 and i in (0, 16, NB - 1, 95, 143): stamp({0: 1, 16: 2, NB - 1: 3, 95: 5, 143: 6}[i])
    def kgroups(gs):
        for e in range(12):
            for g in gs: A(f"v_dot2c_f32_bf16 v{S+g}, v{slot(3*g + e//4) + e%4}, v{Q+e}")
        st["consumed"] = 3 * gs[-1] + 3
        red8(A, "v_add_f32", [S + g for g in gs])
        if mimic:
            for g in gs: A(f"v_cvt_pk_bf16_f32 v{S+g}, v{S+g}, v{S+g}")
            for g in gs: A(f"v_and_b32 v{S+g}, s55, v{S+g}")
        for g in gs: A(f"v_mul_f32 v{S+g}, s56, v{S+g}")
        if mimic:
            for g in gs: A(f"v_cvt_pk_bf16_f32 v{S+g}, v{S+g}, v{S+g}")
            for g in gs: A(f"v_and_b32 v{S+g}, s55, v{S+g}")
        for g in gs: A(f"v_max_f32 v{M}, v{M}, v{S+g}")
    i = 0
    while i < NB:
        step(i); i += 1
        if B0 and i == B0: A("s_barrier ; B0")
        if B02 and i == B02: A("s_barrier ; B02")
    A("s_barrier ; B1: q ready")
    if stamps == 4: stamp(4)
    for j in range(3): A(f"ds_read_b128 v[{Q+4*j}:{Q+4*j+3}], v2 offset:{L_Q + 128*j}")
    A("s_waitcnt lgkmcnt(0)")
    gk = 0
    while gk < 32:
        avail = min(i, 96) // 3 - gk
        if avail > 0:
            n = min(avail, CU); kgroups(list(range(gk, gk + n))); gk += n
        if gk < 32 : step(i); i += 1
    redhi(A, "v_max_f32", M, T0)
    A(f"v_mul_f32 v{M}, s57, v{M}")
    step(i); i += 1
    for g in range(32): A(f"v_fma_f32 v{S+g}, v{S+g}, s57, -v{M}")
    for g in range(16): A(f"v_exp_f32 v{S+g}, v{S+g}")
    step(i); i += 1
    for g in range(16, 32): A(f"v_exp_f32 v{S+g}, v{S+g}")
    A(f"v_add_f32 v{LS}, v{S}, v{S+1}\nv_add_f32 v{T0}, v{S+2}, v{S+3}")
    for g in range(4, 32, 2): A(f"v_add_f32 v{LS}, v{LS}, v{S+g}\nv_add_f32 v{T0}, v{T0}, v{S+g+1}")
    A(f"v_add_f32 v{LS}, v{LS}, v{T0}")
    redhi(A, "v_add_f32", LS, T0)
    A(f"v_min_u32 v{M}, -2, v{M}\nv_min_u32 v{LS}, -2, v{LS}")
    A(f"s_lshl_b32 s54, s3, 3\nv_mov_b32 v{T0}, s54\nds_write_b64 v{T0}, v[{M}:{LS}] offset:{L_ML}")
    for g in range(32): A(f"v_cvt_pk_bf16_f32 v{S+g}, v{S+g}, v{S+g}")
    c = 96
    abuild(A, AB, S)
    while c < N:
        while c < i:
            g, j = (c - 96) // 3, c % 3
            mfma(A, ACC + 4 * j, AB + 4 * (g & 1), slot(c), first=(g == 0))
            c += 1; st["consumed"] = c
            if j == 0 and g < 31: abuild(A, AB + 4 * ((g + 1) & 1), S + g + 1)
        if i < N: step(i); i += 1
    A("s_mov_b32 exec_lo, 0x00ff00ff\ns_mov_b32 exec_hi, 0xff00ff00")
    for j in range(3): A(f"ds_write_b128 v3, v[{ACC+4*j}:{ACC+4*j+3}] offset:{L_P + 256*j}")
    A("s_waitcnt lgkmcnt(0)")
    if stamps == 4:
        A("s_mov_b64 exec, -1\ns_cmp_lg_u32 s3, 0\ns_cbranch_scc1 L_nost"); putst(RING); A("L_nost:")
    A("s_mov_b64 exec, -1\ns_cmp_eq_u32 s3, 3\ns_barrier ; B2\ns_cbranch_scc1 L_end")
    U = Q + 4
    for r in range(4): A(f"ds_read2st64_b32 v[{U+2*r}:{U+2*r+1}], v2 offset0:{L_P//256 + 6*r} offset1:{L_P//256 + 6*r + 3}")
    for r in range(4): A(f"s_waitcnt lgkmcnt({3-r})\nv_add_f32 v{U+2*r}, v{U+2*r}, v{U+2*r+1}\n" + (f"v_mul_f32 v{U}, v{Q}, v{U}" if r == 0 else f"v_fmac_f32 v{U}, v{Q+r}, v{U+2*r}"))
    A(f"v_min_u32 v{U}, -2, v{U}")
    if fast: A(f"buffer_store_dword v{U}, v2, s[24:27], s15 offen\ns_add_u32 s15, s15, {WS_OB - WS_O}")
    A(f"buffer_store_dword v{U}, v2, s[24:27], s15 offen sc1\ns_cmp_ge_u32 s5, 30\ns_cbranch_scc1 L_end\ns_barrier ; B3")

    A("L_end:\ns_endpgm")
    if "e" in lst or "r" in lst:
        A(""".globl empty_kernel
.p2align 8
.type empty_kernel,@function
empty_kernel:
""" + (reporter(ri, rm, rk) if "r" in lst else "") + """
s_endpgm
.section .rodata,"a"
.p2align 6
.amdhsa_kernel empty_kernel
.amdhsa_next_free_vgpr 32
.amdhsa_next_free_sgpr 32
.amdhsa_accum_offset 32
.amdhsa_group_segment_fixed_size 0
.amdhsa_kernarg_size 96
.amdhsa_user_sgpr_count 2
.amdhsa_user_sgpr_kernarg_segment_ptr 1
.amdhsa_system_sgpr_workgroup_id_x 1
.end_amdhsa_kernel""")
    A(f""".section .rodata,"a"
.p2align 6
.amdhsa_kernel {NAME}_kernel
.amdhsa_next_free_vgpr 256
.amdhsa_next_free_sgpr 96
.amdhsa_accum_offset 256
.amdhsa_group_segment_fixed_size 0
.amdhsa_kernarg_size 96
.amdhsa_user_sgpr_count 2
.amdhsa_user_sgpr_kernarg_segment_ptr 1
.amdhsa_system_sgpr_workgroup_id_x 1
.amdhsa_float_denorm_mode_32 3
.end_amdhsa_kernel""")
    return HDR + A.finish()
if __name__ == "__main__":
    for spec in sys.argv[1:]:
        kw = {}; out = None
        for p in spec.split(","):
            k, v = p.split("=")
            if k == "out": out = v; continue
            kw[k] = int(v) if v.lstrip("-").isdigit() else v.replace("+", " ").replace("none", "")
        fn = out or ("k_" + spec.replace(",", "_").replace("=", "").replace("+", "") + ".s")
        open(fn, "w").write(gen(**kw))
        print(fn)
```

```python
import re
TRANS = ("v_exp_f32", "v_log_f32", "v_rcp_f32", "v_rsq_f32", "v_sqrt_f32", "v_sin_f32", "v_cos_f32")
def regs(tok):
    tok = tok.strip()
    tok = tok.lstrip("-")
    if tok.startswith("abs(") : tok = tok[4:-1]
    if tok.startswith("|"): tok = tok.strip("|")
    m = re.fullmatch(r"([vsa])(\d+)", tok)
    if m: return {(m.group(1), int(m.group(2)))}
    m = re.fullmatch(r"([vsa])\[(\d+):(\d+)\]", tok)
    if m: return {(m.group(1), i) for i in range(int(m.group(2)), int(m.group(3)) + 1)}
    if tok == "vcc": return {("s", 106), ("s", 107)}
    if tok == "exec": return {("s", 126), ("s", 127)}
    return set()
class Ins:
    def __init__(self, text):
        self.text = text
        t = text.split(";")[0].strip()
        self.label = t.endswith(":")
        self.directive = t.startswith(".") or t == ""
        p = t.split(None, 1)
        self.op = p[0] if p else ""
        ops = []
        if len(p) > 1:
            ops = [o.strip() for o in p[1].split(",")]
            last = ops[-1].split()
            self.mods = " ".join(last[1:]) if last else ""
            if last: ops[-1] = last[0]
            ops = [o.split()[0] for o in ops if o]
        else: self.mods = ""
        self.ops = ops
        op = self.op
        self.valu = op.startswith("v_") and not op.startswith("v_mfma")
        self.mfma = op.startswith("v_mfma")
        self.dpp = "_dpp" in op
        self.perml = op.startswith("v_permlane")
        self.trans = op in TRANS
        self.dot = op.startswith("v_dot2")
        self.rdl = op.startswith("v_readlane") or op.startswith("v_readfirstlane")
        self.vmem = op.startswith("buffer_") or op.startswith("global_")
        self.ds = op.startswith("ds_")
        self.store = self.vmem and ("store" in op or "atomic" in op)
        self.widestore = self.store and ("x3" in op or "x4" in op)
        R = [regs(o) for o in ops]
        self.w = set(); self.r = set(); self.srcc = set(); self.srcab = set()
        if self.mfma:
            self.w = R[0]; self.srcab = R[1] | R[2]; self.srcc = R[3]; self.r = self.srcab | self.srcc
        elif self.valu:
            self.w = set(R[0]); self.r = set().union(*R[1:]) if len(R) > 1 else set()
            if self.perml: self.w = R[0] | R[1]; self.r = R[0] | R[1]
            if op.startswith("v_fmac") or op.startswith("v_dot2c") or self.dpp: self.r |= R[0]
            if op.startswith("v_add_co") or op.startswith("v_addc_co"): self.w |= R[1]
        elif self.vmem:
            if self.store: self.r = set().union(*R)
            else: self.w = R[0]; self.r = set().union(*R[1:])
            self.sdata = R[0] if op.startswith("buffer_") else (R[1] if len(R) > 1 else set())
        elif self.ds:
            if "read" in op or "permute" in op or "swizzle" in op: self.w = R[0]; self.r = set().union(*R[1:])
            else: self.r = set().union(*R)
        elif op.startswith("s_") and ops:
            self.w = R[0]; self.r = set().union(*R[1:]) if len(R) > 1 else set()
    def states(self):
        if self.label or self.directive: return 0
        if self.op == "s_nop": return int(self.ops[0], 0) + 1
        return 1
def need(p, c):
    n = 0
    vw = {x for x in p.w if x[0] in "va"}; sw = {x for x in p.w if x[0] == "s"}
    if p.valu:
        if vw & c.r:
            if c.dpp or c.perml or c.mfma: n = max(n, 2)
            if c.rdl: n = max(n, 1)
            if p.trans and (c.valu or c.mfma): n = max(n, 1)
        if p.dot and (vw & (c.r | c.w)):
            same_acc = c.dot and c.op == p.op and not (vw & (set().union(*[regs(o) for o in c.ops[1:3]])))
            if not same_acc: n = max(n, 3)
        if sw & c.r:
            if c.valu: n = max(n, 4 if c.rdl else 2)
            if c.vmem: n = max(n, 5)
        if c.op.startswith("v_cndmask") and ("s", 106) in sw: n = max(n, 2)
    if p.mfma:
        if c.mfma:
            if vw & c.srcab: n = max(n, 8)
            if vw & c.srcc and vw != c.srcc: n = max(n, 6)
        elif vw & (c.r | c.w): n = max(n, 8)
        if c.valu and (p.srcc & c.w): n = max(n, 3)
    if p.widestore and (p.sdata & c.w) and (c.valu or c.mfma or c.vmem or c.ds): n = max(n, 2)
    return n
def isize(c):
    op = c.op
    if c.label or c.directive: return 0
    if c.mfma or c.vmem or c.ds or c.dpp or op.startswith("s_load") or op.startswith("s_mem"): return 8
    lit = False
    for o in c.ops[1:] if not op.startswith("s_cmp") else c.ops:
        try:
            v = int(o, 0)
            if not -16 <= v <= 64: lit = True
        except ValueError: pass
    if op.startswith("s_"):
        if op in ("s_waitcnt", "s_nop", "s_barrier", "s_endpgm", "s_movk_i32") or "branch" in op: return 4
        return 8 if lit else 4
    short = ("v_mov_b32", "v_and_b32", "v_add_f32", "v_sub_f32", "v_mul_f32", "v_max_f32", "v_dot2c_f32_bf16", "v_exp_f32", "v_add_u32", "v_lshlrev_b32",
             "v_lshrrev_b32", "v_min_u32", "v_max_u32", "v_fmac_f32", "v_readfirstlane_b32", "v_cndmask_b32", "v_cmp_eq_u32", "v_permlane16_swap_b32", "v_permlane32_swap_b32", "v_rcp_f32", "v_mul_u32_u24")
    return 4 if op in short and not lit else 8
class Asm:
    def __init__(self): self.L = []
    def pads(self, text, stride, nseg):
        lines = text.split("\n"); pos = []; on = False; acc = stride
        for n, l in enumerate(lines):
            t = l.strip()
            if t == ";padon": on = True; acc = stride; continue
            if t == ";padoff": on = False; continue
            if t.startswith(";") or not t: continue
            c = Ins(t)
            if t.startswith(".p2align"): acc += 128
            if c.label or c.directive: continue
            if on and acc + isize(c) > stride: pos.append(n); acc = 4
            acc += isize(c)
        per = -(-len(pos) // nseg); out = []; at = {n: i for i, n in enumerate(pos)}
        for n, l in enumerate(lines):
            if n in at:
                i = at[n]; last = (i % per == per - 1) or i == len(pos) - 1
                out.append(f"L_hop{i}:\n    s_cbranch_execz {'L_hopret' if last else 'L_hop%d' % (i + 1)}")
            if l.strip() == ";hopladder":
                for sg in range(nseg):
                    if sg * per < len(pos): out.append(f"    s_cmp_eq_u32 s8, {sg}\n    s_cbranch_scc1 L_hop{sg*per}")
                continue
            if l.strip() in (";padon", ";padoff"): continue
            out.append(l)
        return "\n".join(out)
    def __call__(self, s):
        for line in s.split("\n"):
            line = line.strip()
            if line: self.L.append(line)
    def finish(self):
        out = []; hist = []
        for line in self.L:
            c = Ins(line)
            if not (c.label or c.directive or line.startswith(";")):
                d = 0; pad = 0
                for p in reversed(hist):
                    if d >= 8: break
                    pad = max(pad, need(p, c) - d)
                    d += p.states()
                if pad > 0:
                    nop = Ins(f"s_nop {pad-1}"); out.append("    " + nop.text); hist.append(nop)
                hist.append(c); hist = hist[-12:]
                out.append("    " + line)
            else:
                out.append(line)
        return "\n".join(out) + "\n"
```

```python
import sys
from asmlib import Asm
NAME = "parallel_sum__gqa_block_cached__glu_gated_geglu__decode"
HDR = open("cdna_kernels/" + NAME + ".s.ref").read().split("; Override launch")[0]
WS_ML, WS_O, WS_F, WS_Y, WS_OB, WS_Q = 0, 8192, 204800, 303104, 393216, 589824
WS_USED = 786432
L_P, L_Q, L_Y = 0, 6144, 6656
L_PROG, L_MODE, L_ML, L_FS = 8704, 8720, 8736, 8768
WS_C = 364544
LDS_BYTES = 8784
WS_G = WS_C + 256
DPPM = "row_mask:0xf bank_mask:0xf"
SPIN = 1 << 22
def srd(A, r, off, size):
    A(f"s_load_dwordx2 s[{r}:{r+1}], s[0:1], {off}")
    A(f"s_mov_b32 s{r+2}, {size}\ns_mov_b32 s{r+3}, 0x20000")
def red8(A, op, rs):
    for mod in ("quad_perm:[1,0,3,2]", "quad_perm:[2,3,0,1]", "row_half_mirror"):
        for r in rs: A(f"{op}_dpp v{r}, v{r}, v{r} {mod} {DPPM}")
def redhi(A, op, r, t, steps=(8, 16, 32)):
    if 8 in steps: A(f"{op}_dpp v{r}, v{r}, v{r} row_ror:8 {DPPM}")
    if 16 in steps: A(f"v_mov_b32 v{t}, v{r}\nv_permlane16_swap_b32 v{r}, v{t}\n{op} v{r}, v{r}, v{t}")
    if 32 in steps: A(f"v_mov_b32 v{t}, v{r}\nv_permlane32_swap_b32 v{r}, v{t}\n{op} v{r}, v{r}, v{t}")
def masks(A):
    A("v_and_b32 v2, 1, v0\nv_lshlrev_b32 v2, 4, v2\nv_mov_b32 v3, 0xffff\nv_lshlrev_b32 v3, v2, v3\nv_bfe_u32 v2, v0, 1, 2")
    for w in range(4): A(f"v_cmp_eq_u32 vcc, {w}, v2\nv_cndmask_b32 v{4+w}, 0, v3, vcc")
def abuild(A, a, pk):
    for w in range(4): A(f"v_and_b32 v{a+w}, v{4+w}, v{pk}")
def mfma(A, d, a, b, first=False):
    c = "0" if first else f"v[{d}:{d+3}]"
    A(f"v_mfma_f32_16x16x32_bf16 v[{d}:{d+3}], v[{a}:{a+3}], v[{b}:{b+3}], {c}")
class VM:
    def __init__(s, A): s.A = A; s.n = 0; s.at = {}
    def op(s, text, key=None): s.A(text); s.at[key] = s.n; s.n += 1
    def wait(s, key): s.A(f"s_waitcnt vmcnt({s.n - 1 - s.at[key]})")

def reporter(ri, rm, rk):
    A = Asm()
    A("s_cmp_ge_u32 s2, 1\ns_cbranch_scc1 L_rend")
    srd(A, 8, 88, 402653184)
    A(f"v_lshlrev_b32 v1, 6, v0\ns_mov_b32 s12, {64<<20}\ns_waitcnt lgkmcnt(0)")
    for e in range(4):
        A(f"buffer_load_dword v{4+e}, v1, s[8:11], s12 offen\nbuffer_load_dword v{8+e}, v1, s[8:11], s12 offen offset:{8*ri}\ns_add_u32 s12, s12, 4096")
    A("s_waitcnt vmcnt(0)\nv_readfirstlane_b32 s13, v4\ns_sub_u32 s13, s13, 100000")
    for e in range(8): A(f"v_subrev_u32 v{4+e}, s13, v{4+e}")
    A("v_min_u32 v4, v4, v5\nv_min3_u32 v4, v4, v6, v7")
    red8(A, "v_min_u32", [4]); redhi(A, "v_min_u32", 4, 12)
    for e in range(4): A(f"v_sub_u32 v{8+e}, v{8+e}, v4")
    op = {"max": "v_max_u32", "min": "v_min_u32", "avg": "v_add_u32"}[rm]
    A(f"{op} v8, v8, v9\n{op} v10, v10, v11\n{op} v8, v8, v10")
    red8(A, op, [8]); redhi(A, op, 8, 12)
    A("v_readfirstlane_b32 s14, v8")
    if rm == "avg": A("s_lshr_b32 s14, s14, 8")
    A(f"s_mul_i32 s14, s14, {rk}\ns_min_u32 s14, s14, 100000\ns_memrealtime s[16:17]\ns_waitcnt lgkmcnt(0)")
    A("L_rs:\ns_memrealtime s[18:19]\ns_waitcnt lgkmcnt(0)\ns_sub_u32 s18, s18, s16\ns_cmp_lt_u32 s18, s14\ns_cbranch_scc1 L_rs\nL_rend:")
    return A.finish()
def gen(R=5, R0=5, RR=45, NB=38, N0=10, R2=10, T2=16, CU=4, stamps=0, kvpol="nt", wqpol="nt", wpol="nt", prio=0, mimic=1, B0=6, B02=16, fast=1, hop=0, al=0, FB=32, pt=0, yp=2, opol='', gate=0, qf=0, abl='', yld='sc1', yw=1, BA=10, ff=1, R00=2, RF=2, TM=72, NL=8, ctl=1, RS=5, RB=8, TH=12, TB=-16, CE=21, cst="", cw=0, il=2, IC=1, burst=0, rho=616, CS=48, xc=0, TX=0, XG=8, XE=12, GS=3328, xw=1, CX=512, cld='sc1', svc=1, WK='ea9', WV='eba', tv=0, tw=0, pace=0, NK=96, wdt=2, fr=0, PS=3,  lst="", ri=7, rm="max", rk=2):
    A = Asm()
    def stamp(i):
        if stamps: A(f"s_memrealtime s[{64+2*i}:{65+2*i}]")
    def putst(base):
        stamp(7); A("s_waitcnt lgkmcnt(0)")
        for e in range(16): A(f"v_mov_b32 v{base+e}, s{64+e}")
        A(f"s_lshl_b32 s8, s2, 6\ns_add_u32 s8, s8, {64<<20}\nv_mov_b32 v1, 0")
        for e in range(4): A(f"buffer_store_dwordx4 v[{base+4*e}:{base+4*e+3}], v1, s[24:27], s8 offen offset:{16*e}")
    if not lst: A(f"; @launch grid=(256,1,1) block=(512,1,1) lds={LDS_BYTES}")
    for c in lst:
        if c == "m": A(f"; @launch kernel={NAME}_kernel grid=(256,1,1) block=(512,1,1) lds={LDS_BYTES}")
        else: A(f"; @launch kernel=empty_kernel grid=(1,1,1) block=(64,1,1) lds=0")
    A('.amdgcn_target "amdgcn-amd-amdhsa--gfx950"\n.text')
    A(f".globl {NAME}_kernel\n.p2align 8\n.type {NAME}_kernel,@function\n{NAME}_kernel:")
    for r, off in ((20, 0), (16, 24), (24, 88), (28, 8), (44, 80), (32, 16)): A(f"s_load_dwordx2 s[{r}:{r+1}], s[0:1], {off}")
    stamp(0)
    A("v_lshrrev_b32 v1, 6, v0\nv_and_b32 v0, 63, v0\ns_cmp_ge_u32 s2, 256\nv_readfirstlane_b32 s3, v1\ns_cbranch_scc1 L_end")
    A("s_and_b32 s4, s2, 7\ns_lshr_b32 s5, s2, 3\ns_lshl_b32 s6, s4, 2\ns_and_b32 s8, s5, 3\ns_add_u32 s6, s6, s8\ns_lshr_b32 s7, s5, 2")
    A(f"s_mov_b32 s26, {WS_USED if not stamps else 402653184}\ns_mov_b32 s27, 0x20000\ns_mov_b32 s55, 0xffff0000")
    A("s_cmp_lt_u32 s3, 4\ns_cbranch_scc1 L_stream")
    A("; ---- aux waves 4..7: layernorm, q projection, FFN, output projection, hand-offs")
    A("s_mov_b32 s18, 7864320\ns_mov_b32 s19, 0x20000\ns_movk_i32 s22, 1280\ns_mov_b32 s23, s19\ns_movk_i32 s46, 256\ns_mov_b32 s47, s19")
    A("s_sub_u32 s3, s3, 4")
    XS, X0, PK, ACC, AB, T, RING = 8, 14, 26, 48, 60, 68, 96
    VQ, VY, VC, VR, VO = 1, 45, 46, 47, 44
    G = 28
    A(f"v_lshrrev_b32 v{VR}, 3, v0\nv_and_b32 v{VC}, 7, v0\nv_lshlrev_b32 v{VC}, 4, v{VC}")
    A("s_cmp_lt_u32 s3, 2\ns_cbranch_scc1 L_q0")
    A(f"s_cmp_lt_u32 s7, 2\ns_cselect_b32 s8, s3, 0\ns_cmp_eq_u32 s8, 3\ns_cbranch_scc0 L_noclear")
    A(f"v_lshlrev_b32 v{T}, 4, v0\nv_mov_b32 v{T+2}, 0\nv_mov_b32 v{T+1}, 1")
    for r in range(4): A(f"v_mov_b32 v{T+4+r}, -1")
    def clr(n):
        for e in range(n):
            A(f"buffer_store_dwordx4 v[{T+4}:{T+7}], v{T}, s[24:27], s13 offen offset:{(e%3)*1024} sc1")
            if e % 3 == 2 and e < n - 1: A("s_add_u32 s13, s13, 3072")
    def clrstamp():
        if not stamps: return
        A(f"s_memrealtime s[80:81]\ns_waitcnt vmcnt(0)\ns_memrealtime s[82:83]\ns_waitcnt lgkmcnt(0)")
        for e in range(4): A(f"v_mov_b32 v{T+4+e}, s{80+e}")
        A(f"s_lshl_b32 s8, s2, 4\ns_add_u32 s8, s8, {66<<20}\nbuffer_store_dwordx4 v[{T+4}:{T+7}], v{T+2}, s[24:27], s8 offen")
    A(f"s_cmp_eq_u32 s7, 1\ns_cbranch_scc1 L_clear2\ns_mul_i32 s13, s6, 6144\ns_add_u32 s13, s13, {WS_Q}\ns_lshl_b32 s14, s6, 2\ns_waitcnt lgkmcnt(0)")
    if 'u' not in abl: clr(6)
    if BA and not ff: A("s_barrier ; BA")
    if 'f' not in abl: A(f"s_waitcnt vmcnt(0)\ns_mov_b64 exec, 1\nbuffer_store_dword v{T+1}, v{T+2}, s[44:47], s14 offen sc1\ns_mov_b64 exec, -1")
    if BA and ff: A("s_barrier ; BA")
    clrstamp()
    A("s_branch L_idle\nL_q0:")
    A(f"v_mul_u32_u24 v2, 20, v0\nv_mul_u32_u24 v3, 20, v{VR}\ns_mul_i32 s10, s7, 160")
    A(f"v_mul_u32_u24 v{VQ}, 122880, v{VR}\nv_add_u32 v{VQ}, v{VQ}, v{VC}")
    A("s_mul_i32 s52, s7, 983040\ns_mul_i32 s12, s6, 384\ns_add_u32 s52, s52, s12")
    def rb(r): A(f"v_cvt_pk_bf16_f32 v{r}, v{r}, v{r}\nv_and_b32 v{r}, s55, v{r}")
    A("s_waitcnt lgkmcnt(0)")
    A(f"buffer_load_dwordx4 v[{XS}:{XS+3}], v2, s[20:23], 0 offen\nbuffer_load_dword v{XS+4}, v2, s[20:23], 0 offen offset:16")
    A(f"buffer_load_dwordx4 v[{X0}:{X0+3}], v3, s[20:23], s10 offen\nbuffer_load_dword v{X0+4}, v3, s[20:23], s10 offen offset:16")
    A("s_cmp_eq_u32 s3, 1\ns_cbranch_scc1 L_w1")
    for g in range(10):
        for j in range(3): A(f"buffer_load_dwordx4 v[{RING+12*g+4*j}:{RING+12*g+4*j+3}], v{VQ}, s[16:19], s52 offen offset:{128*j} {wqpol}")
        if g < 9: A("s_add_u32 s52, s52, 12288")
        if g == BA - 1: A("s_barrier ; BA")
    A("s_waitcnt vmcnt(30)\ns_branch L_ln\nL_w1:")
    if BA: A("s_barrier ; BA")
    A("s_waitcnt vmcnt(0)\nL_ln:\n;padon")
    stamp(1)
    for e in range(5): A(f"v_lshlrev_b32 v{T+2*e}, 16, v{XS+e}\nv_and_b32 v{T+2*e+1}, s55, v{XS+e}")
    SM, SV, TT = T + 10, T + 11, T + 12
    A(f"v_add_f32 v{SM}, v{T}, v{T+1}")
    for e in range(2, 10): A(f"v_add_f32 v{SM}, v{SM}, v{T+e}")
    red8(A, "v_add_f32", [SM]); redhi(A, "v_add_f32", SM, TT)
    A(f"v_mul_f32 v{SM}, 0x3acccccd, v{SM}")
    for e in range(10): A(f"v_sub_f32 v{T+e}, v{T+e}, v{SM}")
    A(f"v_mul_f32 v{SV}, v{T}, v{T}")
    for e in range(1, 10): A(f"v_fmac_f32 v{SV}, v{T+e}, v{T+e}")
    red8(A, "v_add_f32", [SV]); redhi(A, "v_add_f32", SV, TT)
    A(f"v_mul_f32 v{SV}, 0x3acccccd, v{SV}"); rb(SV); rb(SM)
    A(f"v_add_f32 v{SV}, 0x3727c5ac, v{SV}"); rb(SV)
    A(f"v_sqrt_f32 v{SV}, v{SV}"); rb(SV)
    A(f"v_rcp_f32 v{SV}, v{SV}")
    for e in range(5): A(f"v_lshlrev_b32 v{PK+2*e}, 16, v{X0+e}\nv_and_b32 v{PK+2*e+1}, s55, v{X0+e}")
    for e in range(10): A(f"v_sub_f32 v{PK+e}, v{PK+e}, v{SM}")
    for e in range(10): A(f"v_cvt_pk_bf16_f32 v{PK+e}, v{PK+e}, v{PK+e}")
    for e in range(10): A(f"v_and_b32 v{PK+e}, s55, v{PK+e}")
    for e in range(10): A(f"v_mul_f32 v{PK+e}, v{PK+e}, v{SV}")
    for e in range(10): A(f"v_cvt_pk_bf16_f32 v{PK+e}, v{PK+e}, v{PK+e}")
    A("s_cmp_eq_u32 s3, 1\ns_cbranch_scc1 L_idle")
    masks(A)
    def halfsum(n):
        for r in range(n): A(f"v_mov_b32 v{T+12+r}, v{ACC+r}")
        for r in range(n): A(f"v_permlane32_swap_b32 v{ACC+r}, v{T+12+r}")
        for r in range(n): A(f"v_add_f32_dpp v{T+r}, v{T+12+r}, v{ACC+r} row_ror:8 {DPPM}")
        for r in range(n): A(f"v_min_u32 v{T+r}, -2, v{T+r}")
        A(f"v_and_b32 v2, 16, v0\nv_lshl_add_u32 v2, v{VC}, 1, v2")
    abuild(A, AB, PK)
    for g in range(10):
        if g < 9: abuild(A, AB + 4 * ((g + 1) & 1), PK + g + 1)
        A(f"s_waitcnt vmcnt({27-3*g})")
        for j in range(3): mfma(A, ACC + 4 * j, AB + 4 * (g & 1), RING + 12 * g + 4 * j, first=(g == 0))
    A(f"v_mul_u32_u24 v{VO}, 48, v{VC}\nv_lshl_add_u32 v{VO}, v{VR}, 5, v{VO}")
    A(f"s_mul_i32 s13, s6, 6144\ns_add_u32 s13, s13, {WS_Q}\ns_mul_i32 s12, s7, 768\ns_add_u32 s12, s12, s13")
    halfsum(12)
    if stamps == 3: stamp(2)
    if B0: A("s_barrier ; B0")
    def flagcheck(lab, so, n):
        if ('f' in abl and n == 1) or ('a' in abl and n > 1): return
        A(f"s_load_dword s60, s[44:45], {so}\ns_waitcnt lgkmcnt(0)")
        A(f"s_cmp_ge_u32 s60, {n}\ns_cbranch_scc1 {lab}_ok\ns_mov_b32 s61, {SPIN}\nv_mov_b32 v{T+12}, 0")
        A(f"{lab}:\nbuffer_load_dword v{T+13}, v{T+12}, s[44:47], {so} offen sc1\ns_waitcnt vmcnt(0)\nv_readfirstlane_b32 s60, v{T+13}")
        A(f"s_sub_u32 s61, s61, 1\ns_cbranch_scc1 {lab}_ok\ns_cmp_lt_u32 s60, {n}\ns_cbranch_scc1 {lab}\n{lab}_ok:")
    A("s_lshl_b32 s14, s6, 2")
    flagcheck("L_flag", "s14", 1)
    if stamps != 3: stamp(2)
    def qpub(pol):
        A("s_mov_b64 exec, 0x00ff00ff")
        for j in range(3): A(f"buffer_store_dwordx4 v[{T+4*j}:{T+4*j+3}], v2, s[24:27], s12 offen offset:{256*j} {pol}")
        A("s_mov_b64 exec, -1")
    if 'p' not in abl: qpub("" if (qf or 'q' in abl) else "sc1")
    def gather(lab, so, base, nj, alt=0, after=None):
        A(f"s_mov_b32 s61, {SPIN - 1}\n{lab}chk:")
        if alt:
            A(f"s_and_b32 s8, s61, {FB-1}\ns_cselect_b32 s8, 0, {alt}\ns_add_u32 s8, s8, {so}"); so = "s8"
        for j in range(nj):
            for e in range(2): A(f"buffer_load_dwordx4 v[{base+8*j+4*e}:{base+8*j+4*e+3}], v{VO}, s[24:27], {so} offen offset:{256*j+16*e} sc1")
        A(f"s_sub_u32 s61, s61, 1\ns_waitcnt vmcnt(0)\ns_cbranch_scc1 {lab}ok")
        if after:
            A(f"s_cmp_eq_u32 s61, {SPIN - 2}\ns_cbranch_scc0 {lab}na"); after(); A(f"{lab}na:")
        rs = [base + r for r in range(8 * nj)]; t = T + 12
        while len(rs) > 1:
            if len(rs) == 2: A(f"v_max_u32 v{t}, v{rs[0]}, v{rs[1]}"); rs = [t]
            else: A(f"v_max3_u32 v{t}, v{rs[0]}, v{rs[1]}, v{rs[2]}"); rs = rs[3:] + [t]
            t += 1
        A(f"v_cmp_eq_u32 vcc, -1, v{rs[0]}\ns_cbranch_vccnz {lab}chk\n{lab}ok:")
    if B02: A("s_barrier ; B02")
    if 'g' not in abl: gather("L_q", "s13", RING, 3, after=(lambda: qpub("sc1")) if qf else None)
    red8(A, "v_add_f32", [RING + r for r in range(24)])
    for r in range(12): A(f"v_cvt_pk_bf16_f32 v{T+r}, v{RING+2*r}, v{RING+2*r+1}")
    A(f"v_lshlrev_b32 v2, 4, v{VR}")
    for j in range(3): A(f"ds_write_b128 v2, v[{T+4*j}:{T+4*j+3}] offset:{L_Q + 128*j}")
    A("s_branch L_b1")
    if al: A(f".p2align {al}")
    A(";padoff\nL_clear2:\ns_mul_i32 s13, s6, 18432\ns_waitcnt lgkmcnt(0)")
    if BA: A("s_barrier ; BA")
    if 'c' not in abl: clr(18)
    if B0: A("s_barrier ; B0")
    if 'a' not in abl: A(f"s_waitcnt vmcnt(0)\ns_mov_b64 exec, 1\nbuffer_atomic_add v{T+1}, v{T+2}, s[44:47], 0 offen offset:128 sc1\ns_mov_b64 exec, -1")
    clrstamp()
    A("s_branch L_idle2\nL_noclear:")
    if BA: A("s_barrier ; BA")
    if hop: A("; idle waves walk a chain of branches through one sixteenth of the code so that it is cached before it is needed\ns_lshl_b32 s8, s5, 1\ns_add_u32 s8, s8, s3\ns_and_b32 s8, s8, 15\ns_mov_b64 exec, 0\n;hopladder\nL_hopret:\ns_mov_b64 exec, -1")
    stamp(1); stamp(2)
    A("L_idle:")
    if B0: A("s_barrier ; B0")
    A("L_idle2:\n;padon")
    masks(A)
    A(f"v_mul_u32_u24 v{VO}, 48, v{VC}\nv_lshl_add_u32 v{VO}, v{VR}, 5, v{VO}\ns_waitcnt lgkmcnt(0)")
    if B02: A("s_barrier ; B02")
    A("s_cmp_eq_u32 s3, 2\ns_cbranch_scc0 L_b1")
    A(f"v_and_b32 v{T}, 3, v0\nv_lshlrev_b32 v{T}, 2, v{T}\nv_mov_b32 v{T+2}, {CS}\nv_mov_b32 v{T+3}, 1\nds_write2_b32 v{T}, v{T+2}, v{T+3} offset0:0 offset1:4".replace(f"v_lshlrev_b32 v{T}, 2, v{T}", f"v_lshlrev_b32 v{T}, 2, v{T}\nv_add_u32 v{T}, {L_PROG}, v{T}"))
    A(f"v_lshrrev_b32 v{T}, 2, v{VC}\nv_mov_b32 v{T+4}, -1\nds_write_b32 v{T}, v{T+4} offset:{L_ML}")
    A("L_b1:\ns_waitcnt lgkmcnt(0)")
    if stamps >= 2: stamp(3)
    A("s_barrier ; B1")
    if stamps == 1: stamp(3)
    if tv:
        A(f"s_cmp_eq_u32 s3, 2\ns_cbranch_scc0 L_notv\ns_mov_b32 s34, 100663296\ns_mov_b32 s35, 0x20000\ns_mul_i32 s8, s6, 3145728\nv_min_u32 v{T}, {(3145728 >> tv) - 1}, v0\nv_lshlrev_b32 v{T}, {tv}, v{T}")
        A(f"buffer_load_dword v{T+1}, v{T}, s[32:35], s8 offen\nL_notv:")
    A("s_and_b32 s8, s5, 3\ns_mul_i32 s58, s4, 3\ns_add_u32 s58, s58, s8\ns_cmp_lt_u32 s8, 3\ns_cselect_b32 s8, s3, 0\ns_cmp_eq_u32 s8, 1\ns_cbranch_scc0 L_noffn")
    srd(A, 28, 48, 1966080); srd(A, 32, 56, 1966080)
    A(f"v_mul_u32_u24 v{VQ}, 30720, v{VR}\nv_add_u32 v{VQ}, v{VQ}, v{VC}")
    A("s_mul_i32 s52, s7, 245760\ns_lshl_b32 s12, s58, 7\ns_add_u32 s52, s52, s12\ns_waitcnt lgkmcnt(0)")
    for g in range(10):
        for mtx in range(2):
            r = RING + 8 * g + 4 * mtx
            A(f"buffer_load_dwordx4 v[{r}:{r+3}], v{VQ}, s[{28+4*mtx}:{31+4*mtx}], s52 offen offset:{(g%2)*3072} {wpol}\ns_waitcnt vmcnt({RF-1})")
        if g % 2 and g < 9: A("s_add_u32 s52, s52, 6144")
    A("s_waitcnt vmcnt(0)")
    for g in range(10):
        abuild(A, AB + 4 * (g & 1), PK + g)
        for mtx in range(2): mfma(A, ACC + 4 * mtx, AB + 4 * (g & 1), RING + 8 * g + 4 * mtx, first=(g == 0))
    halfsum(8)
    A("s_movk_i32 s8, 128"); flagcheck("L_flag3", "s8", 32)
    A(f"s_lshl_b32 s8, s58, 3\ns_add_u32 s8, s8, s7\ns_lshl_b32 s8, s8, 9\ns_add_u32 s8, s8, {WS_F}")
    A(f"s_mov_b64 exec, 0x00ff00ff\nbuffer_store_dwordx4 v[{T}:{T+3}], v2, s[24:27], s8 offen sc1\nbuffer_store_dwordx4 v[{T+4}:{T+7}], v2, s[24:27], s8 offen offset:256 sc1".replace(" sc1", "" if 'F' in abl else " sc1"))
    A("s_mov_b64 exec, -1\nL_noffn:")
    srd(A, 36, 32, 7864320); srd(A, 40, 64, 1966080); srd(A, 48, 72, 1280)
    A(f"v_lshrrev_b32 v3, 5, v0\nv_lshl_add_u32 v3, s3, 1, v3\nv_and_b32 v{T}, 16, v0\nv_lshl_add_u32 v{T}, v{VC}, 1, v{T}\nv_lshl_add_u32 v{VY}, v3, 8, v{T}")
    VP = 3
    A(f"v_lshlrev_b32 v{VP}, 2, v0\nv_lshl_add_u32 v{VP}, s3, 8, v{VP}")
    def readP(base, stride):
        for r in range(4): A(f"ds_read2st64_b32 v[{T+2*r}:{T+2*r+1}], v{VP} offset0:{base//256 + 2*r*stride} offset1:{base//256 + (2*r+1)*stride}")
        A("s_waitcnt lgkmcnt(0)")
    A("s_mul_i32 s8, s5, 205\ns_lshr_b32 s8, s8, 11\ns_mul_i32 s9, s8, 10\ns_sub_u32 s62, s5, s9\ns_mul_i32 s63, s4, 3\ns_add_u32 s63, s63, s8")
    A("s_lshl_b32 s8, s63, 2\ns_add_u32 s8, s8, s3\ns_lshl_b32 s9, s62, 7")
    A("s_mul_i32 s10, s8, 81920\ns_add_u32 s10, s10, s9\ns_add_u32 s11, s10, 5120\ns_mul_i32 s12, s8, 20480\ns_add_u32 s12, s12, s9")
    A(f"s_lshl_b32 s13, s63, 12\ns_lshl_b32 s14, s3, 6\ns_add_u32 s13, s13, s14\ns_add_u32 s13, s13, {WS_F}")
    A(f"s_mul_i32 s14, s8, 43691\ns_lshr_b32 s14, s14, 17\ns_mul_i32 s15, s14, 3\ns_sub_u32 s15, s8, s15\ns_mul_i32 s14, s14, 6144\ns_lshl_b32 s15, s15, 8\ns_add_u32 s14, s14, s15\ns_add_u32 s14, s14, {WS_O}")
    A(f"s_mul_i32 s52, s62, 24\ns_add_u32 s52, s52, s63\ns_lshl_b32 s52, s52, 8\ns_add_u32 s52, s52, {WS_Y}")
    A("s_lshl_b32 s54, s6, 8\ns_lshl_b32 s53, s7, 2")
    VWO, VWD, VF, VML = 8, 9, 10, 12
    A(f"v_mul_u32_u24 v{VWO}, 10240, v{VR}\nv_add_u32 v{VWO}, v{VWO}, v{VC}\nv_mul_u32_u24 v{VWD}, 2560, v{VR}\nv_add_u32 v{VWD}, v{VWD}, v{VC}")
    A(f"v_lshlrev_b32 v{VF}, 3, v{VR}\nv_lshl_add_u32 v{VF}, v{VC}, 5, v{VF}")
    A(f"v_and_b32 v{VML}, 31, v0\nv_lshlrev_b32 v{VML}, 3, v{VML}")
    ML, FG, WD, WO, YA = 14, 16, 20, RING, ACC
    woload = lambda g: A(f"buffer_load_dwordx4 v[{WO+4*g}:{WO+4*g+3}], v{VWO}, s[36:39], {'s10' if g < 4 else 's11'} offen offset:{(g%4)*1280} {wpol}")
    A("s_waitcnt vmcnt(0) lgkmcnt(0)\ns_cmp_ge_u32 s5, 30\ns_cbranch_scc1 L_bm")
    def wdload(w):
        for g in range(2): A(f"buffer_load_dwordx4 v[{WD+4*g}:{WD+4*g+3}], v{VWD}, s[40:43], s12 offen offset:{g*1280} {wpol}" + ("\ns_waitcnt vmcnt(0)" if w else ""))
    if wdt == 0: wdload(1)
    for g in range(8 - NL): woload(g); A("s_waitcnt vmcnt(0)")
    def service(ph, stop):
        L = f"L_s{ph}"
        A(f"s_mul_i32 s8, s4, {CX}\ns_add_u32 s8, s8, {WS_C}\nv_mov_b32 v{T}, 0\nv_min_u32 v{T+3}, 32, v0\nv_lshlrev_b32 v{T+3}, 2, v{T+3}\nv_and_b32 v{T+10}, 3, v0\nv_lshlrev_b32 v{T+10}, 2, v{T+10}")
        A(f"s_cmp_eq_u32 s3, 3\ns_cbranch_scc0 {L}x\ns_lshl_b32 s9, s5, 2\ns_add_u32 s9, s9, s8")
        if ph == 1: A(f"s_mov_b32 s85, 0\ns_lshl_b32 s86, s7, 5\ns_add_u32 s86, s86, s54\nv_lshlrev_b32 v{T+8}, 1, v{T+10}")
        A(f"{L}c:\nds_read_b32 v{T+1}, v{T+10} offset:{L_PROG}")
        if ph == 1: A(f"ds_read_b64 v[{T+6}:{T+7}], v{T+8} offset:{L_ML}")
        A(f"s_waitcnt lgkmcnt(0)\nv_add_u32_dpp v{T+2}, v{T+1}, v{T+1} quad_perm:[1,0,3,2] {DPPM}\nv_add_u32_dpp v{T+2}, v{T+2}, v{T+2} quad_perm:[2,3,0,1] {DPPM}")
        if svc: A(f"s_mov_b64 exec, 1\nbuffer_store_dword v{T+2}, v{T}, s[24:27], s9 offen {cst}\ns_mov_b64 exec, -1")
        A(f"v_readfirstlane_b32 s61, v{T+2}")
        if ph == 1:
            A(f"s_cmp_eq_u32 s85, 1\ns_cbranch_scc1 {L}m\nv_max_u32 v{T+9}, v{T+6}, v{T+7}\nv_cmp_eq_u32 vcc, -1, v{T+9}\ns_cbranch_vccnz {L}n")
            A(f"s_mov_b64 exec, 15\nbuffer_store_dwordx2 v[{T+6}:{T+7}], v{T+8}, s[24:27], s86 offen sc1\ns_mov_b64 exec, -1\ns_mov_b32 s85, 1\n{L}m:")
        A(f"s_cmp_ge_u32 s61, {4*stop}\ns_cbranch_scc1 {L}d\n{L}n:")
        if not svc: A(f"s_branch {L}c")
        if cw: A("s_waitcnt vmcnt(0)")
        A(f"buffer_load_dword v{T+4}, v{T+3}, s[24:27], s8 offen {cld}\ns_waitcnt vmcnt(0)\nv_readlane_b32 s84, v{T+4}, 32\nv_max_i32 v{T+4}, {4*CS}, v{T+4}")
        if fr: A(f"ds_read_b32 v{T+1}, v{T+10} offset:{L_PROG}")
        red8(A, "v_add_u32", [T + 4]); redhi(A, "v_add_u32", T + 4, T + 5, (8, 16))
        if fr: A("s_waitcnt lgkmcnt(0)")
        A(f"v_lshlrev_b32 v{T+1}, 7, v{T+1}\nv_add_u32 v{T+4}, s84, v{T+4}\nv_sub_u32 v{T+4}, v{T+4}, v{T+1}")
        if ctl:
            A(f"v_cmp_lt_i32 vcc, {16*(TH+TB)}, v{T+4}\nv_cndmask_b32 v{T+2}, 1, 2, vcc\nv_cmp_gt_i32 vcc, {16*(TB-TH)}, v{T+4}\nv_cndmask_b32 v{T+2}, v{T+2}, 0, vcc")
            A(f"s_mov_b64 exec, 15\nds_write_b32 v{T+10}, v{T+2} offset:{L_MODE}\ns_mov_b64 exec, -1")
        A(f"s_branch {L}c\n{L}x:")
        if xc == 2:
            A(f"s_lshl_b32 s9, s5, 2\ns_add_u32 s9, s9, s3\ns_cmp_eq_u32 s9, 126\ns_cbranch_scc0 {L}d\ns_mov_b32 s9, {WS_G + 8192}")
            if ph == 1: A(f"v_mov_b32 v{RING}, {128*CS}")
            A(f"{L}g:\nds_read_b32 v{T+1}, v{T} offset:{L_PROG}\nbuffer_load_dword v{T+4}, v{T+3}, s[24:27], s8 offen sc1")
            A(f"s_waitcnt vmcnt(0) lgkmcnt(0)\nv_readfirstlane_b32 s61, v{T+1}\nv_max_i32 v{T+4}, {4*CS}, v{T+4}")
            red8(A, "v_add_u32", [T + 4]); redhi(A, "v_add_u32", T + 4, T + 5, (8, 16))
            A(f"v_sub_u32 v{T+6}, v{T+4}, v{RING}\nv_mov_b32 v{RING}, v{T+4}\nv_mov_b32 v{T+7}, v{T+6}")
            A(f"s_mov_b64 exec, 1\nbuffer_atomic_add v{T+6}, v{T}, s[24:27], s9 offen sc0 sc1\ns_waitcnt vmcnt(0)")
            A(f"v_add_u32 v{T+6}, v{T+6}, v{T+7}\nv_subrev_u32 v{T+4}, {128*CS}, v{T+4}\nv_lshlrev_b32 v{T+4}, 3, v{T+4}\nv_sub_u32 v{T+6}, v{T+6}, v{T+4}\nv_add_u32 v{T+6}, {128*TX}, v{T+6}")
            A(f"v_mul_i32_i24 v{T+6}, {XG}, v{T+6}\nv_ashrrev_i32 v{T+6}, 6, v{T+6}")
            A(f"buffer_store_dword v{T+6}, v{T}, s[24:27], s8 offen offset:128\ns_mov_b64 exec, -1\ns_cmp_lt_u32 s61, {stop-XE}\ns_cbranch_scc1 {L}g")
        if xc == 1:
            A(f"s_lshl_b32 s9, s5, 2\ns_add_u32 s9, s9, s3\ns_cmp_eq_u32 s9, 126\ns_cbranch_scc0 {L}d\ns_mul_i32 s9, s4, {GS}\ns_add_u32 s9, s9, {WS_G}")
            A(f"{L}g:\nds_read_b32 v{T+1}, v{T} offset:{L_PROG}\nbuffer_load_dword v{T+4}, v{T+3}, s[24:27], s8 offen sc1")
            A(f"s_waitcnt vmcnt(0) lgkmcnt(0)\nv_readfirstlane_b32 s61, v{T+1}\nv_max_i32 v{T+4}, {4*CS}, v{T+4}")
            red8(A, "v_add_u32", [T + 4]); redhi(A, "v_add_u32", T + 4, T + 5, (8, 16))
            A(f"s_mov_b64 exec, 1\nbuffer_store_dword v{T+4}, v{T}, s[24:27], s9 offen sc1\ns_mov_b64 exec, -1\nv_readfirstlane_b32 s85, v{T+4}\ns_cmp_ge_u32 s61, {stop-6}\ns_cbranch_scc1 {L}d")
            if xw: A("s_waitcnt vmcnt(0)")
            if GS == 4: A(f"s_load_dwordx8 s[88:95], s[24:25], {WS_G} glc")
            else:
                for e in range(8): A(f"s_load_dword s{88+e}, s[24:25], {WS_G + GS*e} glc")
            A(f"s_mul_i32 s85, s85, -8\ns_waitcnt lgkmcnt(0)")
            for e in range(8): A(f"s_max_i32 s{88+e}, s{88+e}, {128*CS}\ns_add_i32 s85, s85, s{88+e}")
            A(f"s_mul_i32 s85, s85, {XG}\ns_ashr_i32 s85, s85, 6\ns_add_i32 s85, s85, {16*TX}\nv_mov_b32 v{T+6}, s85")
            A(f"s_mov_b64 exec, 1\nbuffer_store_dword v{T+6}, v{T}, s[24:27], s8 offen offset:128\ns_mov_b64 exec, -1\ns_branch {L}g")
        A(f"{L}d:")
    A("L_bm:\ns_movk_i32 s8, 128"); flagcheck("L_flag2", "s8", 32)
    service(1, 192 - TM - 12)
    A("s_barrier ; BM")
    fload = f"buffer_load_dwordx2 v[{FG}:{FG+1}], v{VF}, s[24:27], s13 offen sc1\nbuffer_load_dwordx2 v[{FG+2}:{FG+3}], v{VF}, s[24:27], s13 offen offset:256 sc1"
    A("s_cmp_ge_u32 s5, 30\ns_cbranch_scc1 L_ml")
    if pt == 1: A(f"buffer_load_dwordx4 v[{G}:{G+3}], v{VO}, s[24:27], s14 offen sc1")
    if tw: A(f"s_mov_b64 exec, 1\nbuffer_load_dword v{G}, v{VWO}, s[36:39], s10 offen\nbuffer_load_dword v{G+1}, v{VWD}, s[40:43], s12 offen\ns_mov_b64 exec, -1")
    A(fload)
    A(f"s_mov_b32 s61, {SPIN}\ns_waitcnt vmcnt(0)\nL_fchk:")
    A(f"v_max3_u32 v{T}, v{FG}, v{FG+1}, v{FG+2}\nv_max_u32 v{T}, v{T}, v{FG+3}\nv_cmp_eq_u32 vcc, -1, v{T}\ns_cbranch_vccz L_fok")
    A(f"s_sub_u32 s61, s61, 1\ns_cbranch_scc1 L_fok\n{fload}\ns_waitcnt vmcnt(0)\ns_branch L_fchk\nL_fok:")
    red8(A, "v_add_f32", [FG, FG + 1, FG + 2, FG + 3])
    for r in range(4): rb(FG + r)
    for r in range(2):
        g_, t = FG + r, T + r
        A(f"v_mul_f32 v{t}, v{g_}, v{g_}\nv_mul_f32 v{t}, 0x3d372713, v{t}\nv_fma_f32 v{t}, v{t}, v{g_}, v{g_}\nv_mul_f32 v{t}, 0xc0135761, v{t}")
        A(f"v_exp_f32 v{t}, v{t}\nv_add_f32 v{t}, 1.0, v{t}\nv_rcp_f32 v{t}, v{t}\nv_mul_f32 v{t}, v{t}, v{g_}"); rb(t)
        A(f"v_mul_f32 v{t}, v{t}, v{FG+2+r}\nv_cvt_pk_bf16_f32 v{t}, v{t}, v{t}")
        abuild(A, AB + 4 * r, t)
    if wdt == 1: wdload(1)
    if wdt < 2:
        for g in range(2): mfma(A, YA, AB + 4 * g, WD + 4 * g, first=(g == 0))
    A(f"L_ml:\ns_cmp_lg_u32 s3, 0\ns_cbranch_scc1 L_noml\nbuffer_load_dwordx2 v[{ML}:{ML+1}], v{VML}, s[24:27], s54 offen sc1\ns_waitcnt vmcnt(0)")
    A(f"s_mov_b32 s61, {SPIN}\nL_mchk:\nv_max_u32 v{T}, v{ML}, v{ML+1}\nv_cmp_eq_u32 vcc, -1, v{T}\ns_cbranch_vccz L_mok")
    A(f"s_sub_u32 s61, s61, 1\ns_cbranch_scc1 L_mok\nbuffer_load_dwordx2 v[{ML}:{ML+1}], v{VML}, s[24:27], s54 offen sc1\ns_waitcnt vmcnt(0)\ns_branch L_mchk\nL_mok:")
    A(f"v_mov_b32 v{T}, v{ML}")
    red8(A, "v_max_f32", [T]); redhi(A, "v_max_f32", T, T + 1, (8, 16))
    A(f"v_sub_f32 v{T}, v{ML}, v{T}\nv_exp_f32 v{T}, v{T}\nv_mul_f32 v{T+2}, v{T}, v{ML+1}")
    red8(A, "v_add_f32", [T + 2]); redhi(A, "v_add_f32", T + 2, T + 1, (8, 16))
    A(f"v_rcp_f32 v{T+2}, v{T+2}\nv_mul_f32 v{T}, v{T}, v{T+2}")
    A(f"v_subrev_u32 v{T+1}, s53, v0\nv_cmp_gt_u32 vcc, 4, v{T+1}\nv_lshlrev_b32 v{T+1}, 2, v{T+1}\n;padoff\ns_and_saveexec_b64 s[8:9], vcc\nds_write_b32 v{T+1}, v{T} offset:{L_FS}\ns_mov_b64 exec, -1\n;padon\ns_waitcnt lgkmcnt(0)\nL_noml:")
    service(2, 192 - CE)
    A("s_barrier ; B15")
    stamp(4)
    A("s_cmp_ge_u32 s5, 30\ns_cbranch_scc1 L_nowo")
    if pt == 2: A(f"buffer_load_dwordx4 v[{G}:{G+3}], v{VO}, s[24:27], s14 offen sc1")
    if not pace:
        if wdt == 2: wdload(0)
        for g in range(8 - NL, 8): woload(g)
        A("L_nowo:")
    else:
        late = [lambda g=g: A(f"buffer_load_dwordx4 v[{WD+4*g}:{WD+4*g+3}], v{VWD}, s[40:43], s12 offen offset:{g*1280} {wpol}") for g in range(2) if wdt == 2] + [lambda g=g: woload(g) for g in range(8 - NL, 8)]
        p0, p1, p2 = [int(c) for c in str(pace)[-3:]]
        for f in late[:p0]: f()
        A("s_barrier ; BPa")
        for f in late[p0:p0+p1]: f()
        A("s_barrier ; BPb")
        for f in late[p0+p1:p0+p1+p2]: f()
        A("s_barrier ; B2")
        for f in late[p0+p1+p2:]: f()
        A("s_branch L_b2\nL_nowo:\ns_barrier ; BPa\ns_barrier ; BPb")
    A("s_barrier ; B2\nL_b2:")
    stamp(5)
    A("s_cmp_ge_u32 s5, 30\ns_cbranch_scc1 L_spare_b")
    gather("L_o", "s14", G, 1, alt=(WS_OB - WS_O) if fast else 0)
    stamp(6)
    if wdt == 2:
        for g in range(2): mfma(A, YA, AB + 4 * g, WD + 4 * g, first=(g == 0))
    red8(A, "v_add_f32", [G + r for r in range(8)])
    for r in range(8): A(f"v_cvt_pk_bf16_f32 v{G+r}, v{G+r}, v{G+r}")
    abuild(A, AB, G)
    for g in range(8):
        if g < 7: abuild(A, AB + 4 * ((g + 1) & 1), G + g + 1)
        mfma(A, YA, AB + 4 * (g & 1), WO + 4 * g)
    A("s_mov_b32 exec_lo, 0x00ff00ff\ns_mov_b32 exec_hi, 0xff00ff00")
    A(f"ds_write_b128 v{VY}, v[{YA}:{YA+3}] offset:{L_Y}\ns_mov_b64 exec, -1\ns_waitcnt lgkmcnt(0)\ns_barrier ; B3")
    A("s_cmp_lg_u32 s3, 0\ns_cbranch_scc1 L_end")
    readP(L_Y, 1)
    for r in range(4): A(f"v_add_f32 v{T+2*r}, v{T+2*r}, v{T+2*r+1}")
    A(f"v_add_f32 v{T}, v{T}, v{T+2}\nv_add_f32 v{T+4}, v{T+4}, v{T+6}\nv_add_f32 v{T}, v{T}, v{T+4}\nv_min_u32 v{T}, -2, v{T}")
    A(f"buffer_store_dword v{T}, v{VP}, s[24:27], s52 offen sc1")
    def putstamps():
        if stamps and stamps != 4: putst(RING)
    putstamps()
    A("s_endpgm")
    A(f"L_spare_b:\ns_cmp_lt_u32 s3, {4-yw}\ns_cbranch_scc1 L_end\ns_sub_u32 s8, s2, 240")
    A(f"s_cmp_ge_u32 s8, 10\ns_cbranch_scc1 {'L_st' if stamps else 'L_end'}")
    A(f"s_mul_i32 s9, s8, 6144\ns_add_u32 s9, s9, {WS_Y}\ns_add_u32 s10, s9, 3072\ns_lshl_b32 s11, s8, 7")
    A(f"v_lshlrev_b32 v1, 4, v0\nv_and_b32 v2, 15, v0\nv_lshlrev_b32 v2, 3, v2")
    A(f"buffer_load_dwordx2 v[{ML}:{ML+1}], v2, s[20:23], s11 offen")
    for e in range(gate):
        A(f"s_lshl_b32 s12, s4, 2\ns_add_u32 s12, s12, {3-e}\ns_mul_i32 s12, s12, 6144\ns_add_u32 s12, s12, {WS_O + 512}")
        gather(f"L_g{e}", "s12", G, 1, alt=(WS_OB - WS_O) if fast else 0)
    def yround(k):
        for e in range(6): A(f"buffer_load_dwordx4 v[{RING+24*(k+1)+4*e}:{RING+24*(k+1)+4*e+3}], v1, s[24:27], {'s9' if e < 3 else 's10'} offen offset:{(e%3)*1024} {yld}")
    A(f"s_mov_b32 s61, {SPIN}")
    for k in range(yp - 1): yround(k)
    A("L_ychk:")
    for k in range(yp):
        yround((k + yp - 1) % yp); Y = RING + 24 * (k + 1)
        A(f"s_waitcnt vmcnt({6*(yp-1)})")
        for e in range(8): A(f"v_max3_u32 v{T+e}, v{Y+3*e}, v{Y+3*e+1}, v{Y+3*e+2}")
        A(f"v_max3_u32 v{T}, v{T}, v{T+1}, v{T+2}\nv_max3_u32 v{T+3}, v{T+3}, v{T+4}, v{T+5}\nv_max3_u32 v{T}, v{T}, v{T+6}, v{T+7}\nv_max_u32 v{T}, v{T}, v{T+3}")
        A(f"v_cmp_eq_u32 vcc, -1, v{T}")
        for e in (0, 2, 4):
            for r in range(0, 4, 2): A(f"v_pk_add_f32 v[{RING+4*e+r}:{RING+4*e+r+1}], v[{Y+4*e+r}:{Y+4*e+r+1}], v[{Y+4*e+4+r}:{Y+4*e+4+r+1}]")
        A("s_cbranch_vccz L_yok")
    A("s_sub_u32 s61, s61, 1\ns_cbranch_scc0 L_ychk\nL_yok:")
    stamp(6)
    for e in (2, 4):
        for r in range(4): A(f"v_add_f32 v{RING+r}, v{RING+r}, v{RING+4*e+r}")
    for sw in (16, 32):
        for r in range(4): A(f"v_mov_b32 v{T+r}, v{RING+r}")
        for r in range(4): A(f"v_permlane{sw}_swap_b32 v{RING+r}, v{T+r}")
        for r in range(4): A(f"v_add_f32 v{RING+r}, v{RING+r}, v{T+r}")
    for e in range(2): A(f"v_lshlrev_b32 v{T+2*e}, 16, v{ML+e}\nv_and_b32 v{T+2*e+1}, s55, v{ML+e}")
    for r in range(4): A(f"v_add_f32 v{RING+r}, v{RING+r}, v{T+r}")
    A(f"v_cvt_pk_bf16_f32 v{T}, v{RING}, v{RING+1}\nv_cvt_pk_bf16_f32 v{T+1}, v{RING+2}, v{RING+3}")
    A(f"s_mov_b64 exec, 0xffff\nbuffer_store_dwordx2 v[{T}:{T+1}], v2, s[48:51], s11 offen {opol}")
    if stamps:
        A("s_mov_b64 exec, -1\ns_waitcnt vmcnt(0)\ns_branch L_st2\nL_st:"); stamp(6); A("L_st2:"); putstamps()
    A("s_endpgm")
    if al: A(f".p2align {al}")
    A(";padoff\nL_stream:\n; ---- stream waves 0..3: 256 keys each, K pass then V pass")
    A("s_mov_b32 s30, 100663296\ns_mov_b32 s31, 0x20000\ns_mov_b32 s34, 100663296\ns_mov_b32 s35, 0x20000")
    sw, ss, sc = {0: (98304, 393216, IC*3072), 1: (IC*3072, 393216, 4*IC*3072), 2: (IC*3072, 4*IC*3072, 32*IC*3072), 3: (786432, IC*3072, 8*IC*3072)}[il]
    goff = lambda g: (g // IC) * sc + (g % IC) * 3072
    A(f"s_mul_i32 s52, s6, 3145728\ns_lshl_b32 s8, s7, 2\ns_add_u32 s8, s8, s3\ns_mul_i32 s9, s7, {ss}\ns_add_u32 s52, s52, s9\ns_mul_i32 s9, s3, {sw}\ns_add_u32 s52, s52, s9")
    A("v_lshrrev_b32 v1, 3, v0\nv_mul_u32_u24 v1, 384, v1\nv_and_b32 v2, 7, v0\nv_lshl_add_u32 v1, v2, 4, v1")
    Q, ACC, AB, S, M, LS, T0, RING = 8, 20, 32, 40, 72, 73, 74, 76
    assert RING + 4 * RR <= 256
    vm = VM(A); N = 192
    st = dict(issued=0, consumed=0, ctl=0)
    slot = lambda i: RING + 4 * (i % RR)
    def nextoff(g):
        if rho: A(f"s_add_u32 s53, s59, {32*g}\ns_and_b32 s53, s53, 1023\ns_mul_i32 s53, s53, 3072\ns_add_u32 s53, s53, s60")
        else: A(f"s_add_u32 s53, s52, {goff(g)}")
    if rho: A(f"s_mul_i32 s59, s6, {rho}\ns_add_u32 s59, s59, s8\ns_mul_i32 s60, s6, 3145728")
    nextoff(0)
    def issue_to(n):
        if burst: n = n // 3 * 3
        n = min(n, N)
        while st["issued"] < n:
            i = st["issued"]
            assert i - RR < st["consumed"], (i, st)
            g, j = (i % 96) // 3, i % 3
            bs = 3 if burst else 1
            if st["ctl"] and (j == 0 or not burst):
                hb, hm, hs = [int(c, 36) for c in (WK if i < NK else WV)]
                hw = lambda h: (h + (i & 1)) // 2 - bs
                if hw(hb) < RB - bs: A(f"s_waitcnt vmcnt({hw(hb)})")
                A(f"s_cmp_eq_u32 s58, 2\ns_cbranch_scc1 L_i{i}\ns_waitcnt vmcnt({hw(hm)})\ns_cbranch_vccz L_i{i}\ns_waitcnt vmcnt({hw(hs)})\nL_i{i}:")
            vm.op(f"buffer_load_dwordx4 v[{slot(i)}:{slot(i)+3}], v1, s[{28 if i < 96 else 32}:{31 if i < 96 else 35}], s53 offen offset:{j*128} {kvpol}", i)
            st["issued"] += 1
            if j == 2: nextoff((g + 1) % 32)
            if st["issued"] == N:
                A(f"s_barrier ; B15: last V load issued\nv_mov_b32 v0, 0\nds_read_b128 v[{Q}:{Q+3}], v0 offset:{L_FS}")
                A(f"v_mbcnt_lo_u32_b32 v2, -1, 0\nv_mbcnt_hi_u32_b32 v2, -1, v2\nv_lshlrev_b32 v2, 2, v2\nv_lshl_add_u32 v2, s3, 8, v2")
                A(f"s_lshl_b32 s15, s6, 3\ns_add_u32 s15, s15, s7\ns_mul_i32 s15, s15, 768\ns_add_u32 s15, s15, {WS_O}")
    A("s_waitcnt lgkmcnt(0)")
    if prio: A(f"s_setprio {prio}")
    issue_to(R00)
    if BA: A("s_barrier")
    issue_to(R0)
    A(";padon")
    masks(A)
    for g in range(32): A(f"v_mov_b32 v{S+g}, 0")
    A(f"v_mov_b32 v{M}, 0xff800000")
    A("s_mov_b32 s56, 0x3d93cd3a\ns_mov_b32 s57, 0x3fb8aa3b")
    A(f"v_and_b32 v2, 7, v0\nv_lshlrev_b32 v2, 4, v2")
    A(f"v_lshrrev_b32 v3, 5, v0\nv_lshl_add_u32 v3, s3, 1, v3\nv_mul_u32_u24 v3, 768, v3\nv_lshl_add_u32 v3, v2, 1, v3\nv_and_b32 v{T0}, 16, v0\nv_add_u32 v3, v3, v{T0}")
    win = lambda i: R0 if i < N0 else (RB if st['ctl'] else (R2 if i >= N - T2 else R))
    def step(i):
        vm.wait(i); issue_to(i + 1 + win(i))
        if pace and i in (N - 5, N - 3): A("s_barrier ; BP")
        if i == N - TM:
            A("s_barrier ; BM")
        if i == CS: st["ctl"] = 1; A(f"s_mov_b32 s58, 1\ns_mov_b64 vcc, 0\ns_lshl_b32 s54, s3, 2\nv_mov_b32 v0, s54")
        if st["ctl"] and st["issued"] < N:
            if i % PS == 0: A(f"v_mov_b32 v2, {i}\nds_read_b32 v75, v0 offset:{L_MODE}\nds_write_b32 v0, v2 offset:{L_PROG}")
            if i % PS == 1 and i > CS + 1: A(f"s_waitcnt lgkmcnt(0)\nv_readfirstlane_b32 s58, v75\nv_cmp_eq_u32 vcc, 0, v75")
        if stamps == 4 and i in (0, 16, NB - 1, 95, 143): stamp({0: 1, 16: 2, NB - 1: 3, 95: 5, 143: 6}[i])
    def kgroups(gs):
        for e in range(12):
            for g in gs: A(f"v_dot2c_f32_bf16 v{S+g}, v{slot(3*g + e//4) + e%4}, v{Q+e}")
        st["consumed"] = 3 * gs[-1] + 3
        red8(A, "v_add_f32", [S + g for g in gs])
        if mimic:
            for g in gs: A(f"v_cvt_pk_bf16_f32 v{S+g}, v{S+g}, v{S+g}")
            for g in gs: A(f"v_and_b32 v{S+g}, s55, v{S+g}")
        for g in gs: A(f"v_mul_f32 v{S+g}, s56, v{S+g}")
        if mimic:
            for g in gs: A(f"v_cvt_pk_bf16_f32 v{S+g}, v{S+g}, v{S+g}")
            for g in gs: A(f"v_and_b32 v{S+g}, s55, v{S+g}")
        for g in gs: A(f"v_max_f32 v{M}, v{M}, v{S+g}")
    i = 0
    while i < NB:
        step(i); i += 1
        if B0 and i == B0: A("s_barrier ; B0")
        if B02 and i == B02: A("s_barrier ; B02")
    A("s_barrier ; B1: q ready")
    if stamps == 4: stamp(4)
    for j in range(3): A(f"ds_read_b128 v[{Q+4*j}:{Q+4*j+3}], v2 offset:{L_Q + 128*j}")
    A("s_waitcnt lgkmcnt(0)")
    gk = 0
    while gk < 32:
        avail = min(i, 96) // 3 - gk
        if avail > 0:
            n = min(avail, CU); kgroups(list(range(gk, gk + n))); gk += n
        if gk < 32 : step(i); i += 1
    redhi(A, "v_max_f32", M, T0)
    A(f"v_mul_f32 v{M}, s57, v{M}")
    step(i); i += 1
    for g in range(32): A(f"v_fma_f32 v{S+g}, v{S+g}, s57, -v{M}")
    for g in range(16): A(f"v_exp_f32 v{S+g}, v{S+g}")
    step(i); i += 1
    for g in range(16, 32): A(f"v_exp_f32 v{S+g}, v{S+g}")
    A(f"v_add_f32 v{LS}, v{S}, v{S+1}\nv_add_f32 v{T0}, v{S+2}, v{S+3}")
    for g in range(4, 32, 2): A(f"v_add_f32 v{LS}, v{LS}, v{S+g}\nv_add_f32 v{T0}, v{T0}, v{S+g+1}")
    A(f"v_add_f32 v{LS}, v{LS}, v{T0}")
    redhi(A, "v_add_f32", LS, T0)
    A(f"v_min_u32 v{M}, -2, v{M}\nv_min_u32 v{LS}, -2, v{LS}")
    A(f"s_lshl_b32 s54, s3, 3\nv_mov_b32 v{T0}, s54\nds_write_b64 v{T0}, v[{M}:{LS}] offset:{L_ML}")
    for g in range(32): A(f"v_cvt_pk_bf16_f32 v{S+g}, v{S+g}, v{S+g}")
    c = 96
    abuild(A, AB, S)
    while c < N:
        while c < i:
            g, j = (c - 96) // 3, c % 3
            mfma(A, ACC + 4 * j, AB + 4 * (g & 1), slot(c), first=(g == 0))
            c += 1; st["consumed"] = c
            if j == 0 and g < 31: abuild(A, AB + 4 * ((g + 1) & 1), S + g + 1)
        if i < N: step(i); i += 1
    A("s_mov_b32 exec_lo, 0x00ff00ff\ns_mov_b32 exec_hi, 0xff00ff00")
    for j in range(3): A(f"ds_write_b128 v3, v[{ACC+4*j}:{ACC+4*j+3}] offset:{L_P + 256*j}")
    A("s_waitcnt lgkmcnt(0)")
    if stamps == 4:
        A("s_mov_b64 exec, -1\ns_cmp_lg_u32 s3, 0\ns_cbranch_scc1 L_nost"); putst(RING); A("L_nost:")
    A("s_mov_b64 exec, -1\ns_cmp_eq_u32 s3, 3\ns_barrier ; B2\ns_cbranch_scc1 L_end")
    U = Q + 4
    for r in range(4): A(f"ds_read2st64_b32 v[{U+2*r}:{U+2*r+1}], v2 offset0:{L_P//256 + 6*r} offset1:{L_P//256 + 6*r + 3}")
    for r in range(4): A(f"s_waitcnt lgkmcnt({3-r})\nv_add_f32 v{U+2*r}, v{U+2*r}, v{U+2*r+1}\n" + (f"v_mul_f32 v{U}, v{Q}, v{U}" if r == 0 else f"v_fmac_f32 v{U}, v{Q+r}, v{U+2*r}"))
    A(f"v_min_u32 v{U}, -2, v{U}")
    if fast: A(f"buffer_store_dword v{U}, v2, s[24:27], s15 offen\ns_add_u32 s15, s15, {WS_OB - WS_O}")
    if 'o' not in abl: A(f"buffer_store_dword v{U}, v2, s[24:27], s15 offen sc1")
    A(f"s_cmp_ge_u32 s5, 30\ns_cbranch_scc1 L_end\ns_barrier ; B3")

    A(";padoff\nL_end:\ns_endpgm")
    if "e" in lst or "r" in lst:
        A(""".globl empty_kernel
.p2align 8
.type empty_kernel,@function
empty_kernel:
""" + (reporter(ri, rm, rk) if "r" in lst else "") + """
s_endpgm
.section .rodata,"a"
.p2align 6
.amdhsa_kernel empty_kernel
.amdhsa_next_free_vgpr 32
.amdhsa_next_free_sgpr 32
.amdhsa_accum_offset 32
.amdhsa_group_segment_fixed_size 0
.amdhsa_kernarg_size 96
.amdhsa_user_sgpr_count 2
.amdhsa_user_sgpr_kernarg_segment_ptr 1
.amdhsa_system_sgpr_workgroup_id_x 1
.end_amdhsa_kernel""")
    A(f""".section .rodata,"a"
.p2align 6
.amdhsa_kernel {NAME}_kernel
.amdhsa_next_free_vgpr 256
.amdhsa_next_free_sgpr 96
.amdhsa_accum_offset 256
.amdhsa_group_segment_fixed_size 0
.amdhsa_kernarg_size 96
.amdhsa_user_sgpr_count 2
.amdhsa_user_sgpr_kernarg_segment_ptr 1
.amdhsa_system_sgpr_workgroup_id_x 1
.amdhsa_float_denorm_mode_32 3
.end_amdhsa_kernel""")
    txt = A.finish()
    return HDR + (A.pads(txt, hop, 16) if hop else txt)
if __name__ == "__main__":
    for spec in sys.argv[1:]:
        kw = {}; out = None
        for p in spec.split(","):
            k, v = p.split("=")
            if k == "out": out = v; continue
            kw[k] = int(v) if v.lstrip("-").isdigit() else v.replace("+", " ").replace("none", "")
        fn = out or ("k_" + spec.replace(",", "_").replace("=", "").replace("+", "") + ".s")
        open(fn, "w").write(gen(**kw))
        print(fn)
```

```python
import sys
from asmlib import Asm
NAME = "parallel_sum__gqa_block_cached__glu_gated_geglu__decode"
HDR = open("cdna_kernels/" + NAME + ".s.ref").read().split("; Override launch")[0]
WS_E, WS_O, WS_F, WS_Y, WS_ML, WS_OB, WS_Q = 0, 8192, 204800, 303104, 376832, 393216, 589824
WS_USED = 786432
L_P, L_Q, L_Y = 0, 6144, 6656
L_PROG, L_MODE, L_ML, L_FS = 8704, 8720, 8736, 8768
WS_C = 364544
LDS_BYTES = 8784
WS_G = WS_C + 256
DPPM = "row_mask:0xf bank_mask:0xf"
SPIN = 1 << 22
def srd(A, r, off, size):
    A(f"s_load_dwordx2 s[{r}:{r+1}], s[0:1], {off}")
    A(f"s_mov_b32 s{r+2}, {size}\ns_mov_b32 s{r+3}, 0x20000")
def red8(A, op, rs):
    for mod in ("quad_perm:[1,0,3,2]", "quad_perm:[2,3,0,1]", "row_half_mirror"):
        for r in rs: A(f"{op}_dpp v{r}, v{r}, v{r} {mod} {DPPM}")
def redhi(A, op, r, t, steps=(8, 16, 32)):
    if 8 in steps: A(f"{op}_dpp v{r}, v{r}, v{r} row_ror:8 {DPPM}")
    if 16 in steps: A(f"v_mov_b32 v{t}, v{r}\nv_permlane16_swap_b32 v{r}, v{t}\n{op} v{r}, v{r}, v{t}")
    if 32 in steps: A(f"v_mov_b32 v{t}, v{r}\nv_permlane32_swap_b32 v{r}, v{t}\n{op} v{r}, v{r}, v{t}")
def masks(A):
    A("v_and_b32 v2, 1, v0\nv_lshlrev_b32 v2, 4, v2\nv_mov_b32 v3, 0xffff\nv_lshlrev_b32 v3, v2, v3\nv_bfe_u32 v2, v0, 1, 2")
    for w in range(4): A(f"v_cmp_eq_u32 vcc, {w}, v2\nv_cndmask_b32 v{4+w}, 0, v3, vcc")
def abuild(A, a, pk):
    for w in range(4): A(f"v_and_b32 v{a+w}, v{4+w}, v{pk}")
def mfma(A, d, a, b, first=False):
    c = "0" if first else f"v[{d}:{d+3}]"
    A(f"v_mfma_f32_16x16x32_bf16 v[{d}:{d+3}], v[{a}:{a+3}], v[{b}:{b+3}], {c}")
class VM:
    def __init__(s, A): s.A = A; s.n = 0; s.at = {}
    def op(s, text, key=None): s.A(text); s.at[key] = s.n; s.n += 1
    def wait(s, key): s.A(f"s_waitcnt vmcnt({s.n - 1 - s.at[key]})")

def reporter(ri, rm, rk):
    A = Asm()
    A("s_cmp_ge_u32 s2, 1\ns_cbranch_scc1 L_rend")
    srd(A, 8, 88, 402653184)
    A(f"v_lshlrev_b32 v1, 6, v0\ns_mov_b32 s12, {64<<20}\ns_waitcnt lgkmcnt(0)")
    for e in range(4):
        A(f"buffer_load_dword v{4+e}, v1, s[8:11], s12 offen\nbuffer_load_dword v{8+e}, v1, s[8:11], s12 offen offset:{8*ri}\ns_add_u32 s12, s12, 4096")
    A("s_waitcnt vmcnt(0)\nv_readfirstlane_b32 s13, v4\ns_sub_u32 s13, s13, 100000")
    for e in range(8): A(f"v_subrev_u32 v{4+e}, s13, v{4+e}")
    A("v_min_u32 v4, v4, v5\nv_min3_u32 v4, v4, v6, v7")
    red8(A, "v_min_u32", [4]); redhi(A, "v_min_u32", 4, 12)
    for e in range(4): A(f"v_sub_u32 v{8+e}, v{8+e}, v4")
    op = {"max": "v_max_u32", "min": "v_min_u32", "avg": "v_add_u32"}[rm]
    A(f"{op} v8, v8, v9\n{op} v10, v10, v11\n{op} v8, v8, v10")
    red8(A, op, [8]); redhi(A, op, 8, 12)
    A("v_readfirstlane_b32 s14, v8")
    if rm == "avg": A("s_lshr_b32 s14, s14, 8")
    A(f"s_mul_i32 s14, s14, {rk}\ns_min_u32 s14, s14, 100000\ns_memrealtime s[16:17]\ns_waitcnt lgkmcnt(0)")
    A("L_rs:\ns_memrealtime s[18:19]\ns_waitcnt lgkmcnt(0)\ns_sub_u32 s18, s18, s16\ns_cmp_lt_u32 s18, s14\ns_cbranch_scc1 L_rs\nL_rend:")
    return A.finish()
def gen(R=5, R0=5, RR=45, NB=38, N0=10, R2=10, T2=16, CU=3, SP=4, stamps=0, kvpol="nt", wqpol="nt", wpol="nt", prio=0, mimic=1, B02=12, fast=1, hop=0, al=0, FB=32, pt=0, yp=3, r4=1, cpol='sc1', opol='', gate=0, qf=0, abl='', yld='sc1', yw=1, BA=10, ff=1, R00=2, RF=2, TM=72, NL=8, ctl=1, RS=5, RB=8, TH=12, TB=-16, CE=21, cst="", cw=0, il=2, IC=1, burst=0, rho=616, CS=48, xc=0, TX=0, XG=8, XE=12, GS=3328, xw=1, CX=512, cld='sc1', svc=1, WK='ea9', WV='eba', tv=0, tw=0, pace=0, NK=96, wdt=2, fr=0, PS=3,  lst="", ri=7, rm="max", rk=2):
    A = Asm()
    def stamp(i):
        if stamps: A(f"s_memrealtime s[{64+2*i}:{65+2*i}]")
    def putst(base):
        stamp(7); A("s_waitcnt lgkmcnt(0)")
        for e in range(16): A(f"v_mov_b32 v{base+e}, s{64+e}")
        A(f"s_lshl_b32 s8, s2, 6\ns_add_u32 s8, s8, {64<<20}\nv_mov_b32 v1, 0")
        for e in range(4): A(f"buffer_store_dwordx4 v[{base+4*e}:{base+4*e+3}], v1, s[24:27], s8 offen offset:{16*e}")
    if not lst: A(f"; @launch grid=(256,1,1) block=(512,1,1) lds={LDS_BYTES}")
    for c in lst:
        if c == "m": A(f"; @launch kernel={NAME}_kernel grid=(256,1,1) block=(512,1,1) lds={LDS_BYTES}")
        else: A(f"; @launch kernel=empty_kernel grid=(1,1,1) block=(64,1,1) lds=0")
    A('.amdgcn_target "amdgcn-amd-amdhsa--gfx950"\n.text')
    A(f".globl {NAME}_kernel\n.p2align 8\n.type {NAME}_kernel,@function\n{NAME}_kernel:")
    for r, off in ((20, 0), (16, 24), (24, 88), (28, 8), (32, 16)): A(f"s_load_dwordx2 s[{r}:{r+1}], s[0:1], {off}")
    stamp(0)
    A("v_lshrrev_b32 v1, 6, v0\nv_and_b32 v0, 63, v0\ns_cmp_ge_u32 s2, 256\nv_readfirstlane_b32 s3, v1\ns_cbranch_scc1 L_end")
    A("s_and_b32 s4, s2, 7\ns_lshr_b32 s5, s2, 3\ns_lshl_b32 s6, s4, 2\ns_and_b32 s8, s5, 3\ns_add_u32 s6, s6, s8\ns_lshr_b32 s7, s5, 2")
    A(f"s_mov_b32 s26, {WS_USED if not stamps else 402653184}\ns_mov_b32 s27, 0x20000\ns_mov_b32 s55, 0xffff0000")
    A("s_cmp_lt_u32 s3, 4\ns_cbranch_scc1 L_stream")
    A("; ---- aux waves 4..7: layernorm, q projection, FFN, output projection, hand-offs")
    A("s_mov_b32 s18, 7864320\ns_mov_b32 s19, 0x20000\ns_movk_i32 s22, 1280\ns_mov_b32 s23, s19")
    A("s_sub_u32 s3, s3, 4")
    XS, X0, PK, ACC, AB, T, RING = 8, 14, 26, 48, 60, 68, 96
    VQ, VY, VC, VR, VO = 1, 45, 46, 47, 44
    G = 28
    A(f"v_lshrrev_b32 v{VR}, 3, v0\nv_and_b32 v{VC}, 7, v0\nv_lshlrev_b32 v{VC}, 4, v{VC}")
    A("s_cmp_lt_u32 s3, 2\ns_cbranch_scc1 L_q0")
    def eload(): A(f"s_load_dword s87, s[24:25], {WS_E}")
    def etags():
        A("s_add_u32 s87, s87, 0x07050301\ns_and_b32 s88, s87, 0xff\ns_bfe_u32 s89, s87, 0x80008\ns_bfe_u32 s90, s87, 0x80010\ns_lshr_b32 s91, s87, 24\ns_movk_i32 s92, 0xff")
    A("s_waitcnt lgkmcnt(0)"); eload()
    if BA: A("s_barrier ; BA")
    stamp(1); stamp(2)
    A("s_branch L_idle\nL_q0:")
    A(f"v_mul_u32_u24 v2, 20, v0\nv_mul_u32_u24 v3, 20, v{VR}\ns_mul_i32 s10, s7, 160")
    A(f"v_mul_u32_u24 v{VQ}, 122880, v{VR}\nv_add_u32 v{VQ}, v{VQ}, v{VC}")
    A("s_mul_i32 s52, s7, 983040\ns_mul_i32 s12, s6, 384\ns_add_u32 s52, s52, s12")
    def rb(r): A(f"v_cvt_pk_bf16_f32 v{r}, v{r}, v{r}\nv_and_b32 v{r}, s55, v{r}")
    A("s_waitcnt lgkmcnt(0)")
    A(f"buffer_load_dwordx4 v[{XS}:{XS+3}], v2, s[20:23], 0 offen\nbuffer_load_dword v{XS+4}, v2, s[20:23], 0 offen offset:16")
    A(f"buffer_load_dwordx4 v[{X0}:{X0+3}], v3, s[20:23], s10 offen\nbuffer_load_dword v{X0+4}, v3, s[20:23], s10 offen offset:16")
    eload()
    A("s_cmp_eq_u32 s3, 1\ns_cbranch_scc1 L_w1")
    for g in range(10):
        for j in range(3): A(f"buffer_load_dwordx4 v[{RING+12*g+4*j}:{RING+12*g+4*j+3}], v{VQ}, s[16:19], s52 offen offset:{128*j} {wqpol}")
        if g < 9: A("s_add_u32 s52, s52, 12288")
        if g == BA - 1: A("s_barrier ; BA")
    A("s_waitcnt vmcnt(30)\ns_branch L_ln\nL_w1:")
    if BA: A("s_barrier ; BA")
    A("s_waitcnt vmcnt(0)\nL_ln:\n;padon")
    stamp(1)
    for e in range(5): A(f"v_lshlrev_b32 v{T+2*e}, 16, v{XS+e}\nv_and_b32 v{T+2*e+1}, s55, v{XS+e}")
    SM, SV, TT = T + 10, T + 11, T + 12
    A(f"v_add_f32 v{SM}, v{T}, v{T+1}")
    for e in range(2, 10): A(f"v_add_f32 v{SM}, v{SM}, v{T+e}")
    red8(A, "v_add_f32", [SM]); redhi(A, "v_add_f32", SM, TT)
    A(f"v_mul_f32 v{SM}, 0x3acccccd, v{SM}")
    for e in range(10): A(f"v_sub_f32 v{T+e}, v{T+e}, v{SM}")
    A(f"v_mul_f32 v{SV}, v{T}, v{T}")
    for e in range(1, 10): A(f"v_fmac_f32 v{SV}, v{T+e}, v{T+e}")
    red8(A, "v_add_f32", [SV]); redhi(A, "v_add_f32", SV, TT)
    A(f"v_mul_f32 v{SV}, 0x3acccccd, v{SV}"); rb(SV); rb(SM)
    A(f"v_add_f32 v{SV}, 0x3727c5ac, v{SV}"); rb(SV)
    A(f"v_sqrt_f32 v{SV}, v{SV}"); rb(SV)
    A(f"v_rcp_f32 v{SV}, v{SV}")
    for e in range(5): A(f"v_lshlrev_b32 v{PK+2*e}, 16, v{X0+e}\nv_and_b32 v{PK+2*e+1}, s55, v{X0+e}")
    for e in range(10): A(f"v_sub_f32 v{PK+e}, v{PK+e}, v{SM}")
    for e in range(10): A(f"v_cvt_pk_bf16_f32 v{PK+e}, v{PK+e}, v{PK+e}")
    for e in range(10): A(f"v_and_b32 v{PK+e}, s55, v{PK+e}")
    for e in range(10): A(f"v_mul_f32 v{PK+e}, v{PK+e}, v{SV}")
    for e in range(10): A(f"v_cvt_pk_bf16_f32 v{PK+e}, v{PK+e}, v{PK+e}")
    A("s_cmp_eq_u32 s3, 1\ns_cbranch_scc1 L_idle")
    masks(A)
    def halfsum(n):
        for r in range(n): A(f"v_mov_b32 v{T+12+r}, v{ACC+r}")
        for r in range(n): A(f"v_permlane32_swap_b32 v{ACC+r}, v{T+12+r}")
        for r in range(n): A(f"v_add_f32_dpp v{T+r}, v{T+12+r}, v{ACC+r} row_ror:8 {DPPM}")
        A(f"v_mov_b32 v2, 0xff")
        for r in range(n): A(f"v_bfi_b32 v{T+r}, v2, s{88 + r%4}, v{T+r}")
        A(f"v_and_b32 v2, 16, v0\nv_lshl_add_u32 v2, v{VC}, 1, v2")
    abuild(A, AB, PK)
    for g in range(10):
        if g < 9: abuild(A, AB + 4 * ((g + 1) & 1), PK + g + 1)
        A(f"s_waitcnt vmcnt({27-3*g})")
        for j in range(3): mfma(A, ACC + 4 * j, AB + 4 * (g & 1), RING + 12 * g + 4 * j, first=(g == 0))
    A(f"v_mul_u32_u24 v{VO}, 48, v{VC}\nv_lshl_add_u32 v{VO}, v{VR}, 5, v{VO}")
    A(f"s_mul_i32 s13, s6, 6144\ns_add_u32 s13, s13, {WS_Q}\ns_mul_i32 s12, s7, 768\ns_add_u32 s12, s12, s13")
    A("s_waitcnt lgkmcnt(0)"); etags()
    halfsum(12)
    stamp(2)
    def qpub(pol):
        A("s_mov_b64 exec, 0x00ff00ff")
        for j in range(3): A(f"buffer_store_dwordx4 v[{T+4*j}:{T+4*j+3}], v2, s[24:27], s12 offen offset:{256*j} {pol}")
        A("s_mov_b64 exec, -1")
    qpub("sc1")
    def untag(rs, tags=None, t=None):
        for n, r in enumerate(rs): A(f"v_xor_b32 v{r}, {tags[n] if tags else 's%d' % (88 + n % 4)}, v{r}")
        t = t or T + 12
        while len(rs) > 1:
            if len(rs) == 2: A(f"v_or_b32 v{t}, v{rs[0]}, v{rs[1]}"); rs = [t]
            else: A(f"v_or3_b32 v{t}, v{rs[0]}, v{rs[1]}, v{rs[2]}"); rs = rs[3:] + [t]
            t += 1
        A(f"v_and_b32 v{rs[0]}, 0xff, v{rs[0]}\nv_cmp_ne_u32 vcc, 0, v{rs[0]}")
    def gather(lab, so, base, nj, alt=0):
        A(f"s_mov_b32 s61, {SPIN - 1}\n{lab}chk:")
        if alt:
            A(f"s_and_b32 s8, s61, {FB-1}\ns_cselect_b32 s8, 0, {alt}\ns_add_u32 s8, s8, {so}"); so = "s8"
        for j in range(nj):
            for e in range(2): A(f"buffer_load_dwordx4 v[{base+8*j+4*e}:{base+8*j+4*e+3}], v{VO}, s[24:27], {so} offen offset:{256*j+16*e} sc1")
        A(f"s_sub_u32 s61, s61, 1\ns_waitcnt vmcnt(0)\ns_cbranch_scc1 {lab}ok")
        untag([base + r for r in range(8 * nj)])
        A(f"s_cbranch_vccnz {lab}chk\n{lab}ok:")
    if B02: A("s_barrier ; B02")
    gather("L_q", "s13", RING, 3)
    red8(A, "v_add_f32", [RING + r for r in range(24)])
    for r in range(12): A(f"v_cvt_pk_bf16_f32 v{T+r}, v{RING+2*r}, v{RING+2*r+1}")
    A(f"v_lshlrev_b32 v2, 4, v{VR}")
    for j in range(3): A(f"ds_write_b128 v2, v[{T+4*j}:{T+4*j+3}] offset:{L_Q + 128*j}")
    A("s_branch L_b1")
    A("L_idle:")
    masks(A)
    A(f"v_mul_u32_u24 v{VO}, 48, v{VC}\nv_lshl_add_u32 v{VO}, v{VR}, 5, v{VO}\ns_waitcnt lgkmcnt(0)"); etags()
    if B02: A("s_barrier ; B02")
    A("s_cmp_eq_u32 s3, 2\ns_cbranch_scc0 L_b1")
    A(f"v_and_b32 v{T}, 3, v0\nv_lshlrev_b32 v{T}, 2, v{T}\nv_mov_b32 v{T+2}, {CS}\nv_mov_b32 v{T+3}, 1\nds_write2_b32 v{T}, v{T+2}, v{T+3} offset0:0 offset1:4".replace(f"v_lshlrev_b32 v{T}, 2, v{T}", f"v_lshlrev_b32 v{T}, 2, v{T}\nv_add_u32 v{T}, {L_PROG}, v{T}"))
    A(f"v_lshrrev_b32 v{T}, 2, v{VC}\nv_mov_b32 v{T+4}, -1\nds_write_b32 v{T}, v{T+4} offset:{L_ML}")
    A("L_b1:\ns_waitcnt lgkmcnt(0)")
    if stamps >= 2: stamp(3)
    A("s_barrier ; B1")
    if stamps == 1: stamp(3)
    if tv:
        A(f"s_cmp_eq_u32 s3, 2\ns_cbranch_scc0 L_notv\ns_mov_b32 s34, 100663296\ns_mov_b32 s35, 0x20000\ns_mul_i32 s8, s6, 3145728\nv_min_u32 v{T}, {(3145728 >> tv) - 1}, v0\nv_lshlrev_b32 v{T}, {tv}, v{T}")
        A(f"buffer_load_dword v{T+1}, v{T}, s[32:35], s8 offen\nL_notv:")
    A("s_and_b32 s8, s5, 3\ns_mul_i32 s58, s4, 3\ns_add_u32 s58, s58, s8\ns_cmp_lt_u32 s8, 3\ns_cselect_b32 s8, s3, 0\ns_cmp_eq_u32 s8, 1\ns_cbranch_scc0 L_noffn")
    srd(A, 28, 48, 1966080); srd(A, 32, 56, 1966080)
    A(f"v_mul_u32_u24 v{VQ}, 30720, v{VR}\nv_add_u32 v{VQ}, v{VQ}, v{VC}")
    A("s_mul_i32 s52, s7, 245760\ns_lshl_b32 s12, s58, 7\ns_add_u32 s52, s52, s12\ns_waitcnt lgkmcnt(0)")
    for g in range(10):
        for mtx in range(2):
            r = RING + 8 * g + 4 * mtx
            A(f"buffer_load_dwordx4 v[{r}:{r+3}], v{VQ}, s[{28+4*mtx}:{31+4*mtx}], s52 offen offset:{(g%2)*3072} {wpol}\ns_waitcnt vmcnt({RF-1})")
        if g % 2 and g < 9: A("s_add_u32 s52, s52, 6144")
    A("s_waitcnt vmcnt(0)")
    for g in range(10):
        abuild(A, AB + 4 * (g & 1), PK + g)
        for mtx in range(2): mfma(A, ACC + 4 * mtx, AB + 4 * (g & 1), RING + 8 * g + 4 * mtx, first=(g == 0))
    halfsum(8)
    A(f"s_lshl_b32 s8, s58, 3\ns_add_u32 s8, s8, s7\ns_lshl_b32 s8, s8, 9\ns_add_u32 s8, s8, {WS_F}")
    A(f"s_mov_b64 exec, 0x00ff00ff\nbuffer_store_dwordx4 v[{T}:{T+3}], v2, s[24:27], s8 offen sc1\nbuffer_store_dwordx4 v[{T+4}:{T+7}], v2, s[24:27], s8 offen offset:256 sc1")
    A("s_mov_b64 exec, -1\nL_noffn:")
    srd(A, 36, 32, 7864320); srd(A, 40, 64, 1966080); srd(A, 48, 72, 1280)
    A(f"v_lshrrev_b32 v3, 5, v0\nv_lshl_add_u32 v3, s3, 1, v3\nv_and_b32 v{T}, 16, v0\nv_lshl_add_u32 v{T}, v{VC}, 1, v{T}\nv_lshl_add_u32 v{VY}, v3, 8, v{T}")
    VP = 3
    A(f"v_lshlrev_b32 v{VP}, 2, v0\nv_lshl_add_u32 v{VP}, s3, 8, v{VP}")
    def readP(base, stride):
        for r in range(4): A(f"ds_read2st64_b32 v[{T+2*r}:{T+2*r+1}], v{VP} offset0:{base//256 + 2*r*stride} offset1:{base//256 + (2*r+1)*stride}")
        A("s_waitcnt lgkmcnt(0)")
    A("s_mul_i32 s8, s5, 205\ns_lshr_b32 s8, s8, 11\ns_mul_i32 s9, s8, 10\ns_sub_u32 s62, s5, s9\ns_mul_i32 s63, s4, 3\ns_add_u32 s63, s63, s8")
    A("s_lshl_b32 s8, s63, 2\ns_add_u32 s8, s8, s3\ns_lshl_b32 s9, s62, 7")
    A("s_mul_i32 s10, s8, 81920\ns_add_u32 s10, s10, s9\ns_add_u32 s11, s10, 5120\ns_mul_i32 s12, s8, 20480\ns_add_u32 s12, s12, s9")
    A(f"s_lshl_b32 s13, s63, 12\ns_lshl_b32 s14, s3, 6\ns_add_u32 s13, s13, s14\ns_add_u32 s13, s13, {WS_F}")
    A(f"s_mul_i32 s14, s8, 43691\ns_lshr_b32 s14, s14, 17\ns_mul_i32 s15, s14, 3\ns_sub_u32 s15, s8, s15\ns_mul_i32 s14, s14, 6144\ns_lshl_b32 s15, s15, 8\ns_add_u32 s14, s14, s15\ns_add_u32 s14, s14, {WS_O}")
    A(f"s_mul_i32 s52, s62, 24\ns_add_u32 s52, s52, s63\ns_lshl_b32 s52, s52, 8\ns_add_u32 s52, s52, {WS_Y}")
    A(f"s_lshl_b32 s54, s6, 9\ns_add_u32 s54, s54, {WS_ML}\ns_lshl_b32 s53, s7, 2")
    VWO, VWD, VF, VML = 8, 9, 10, 12
    A(f"v_mul_u32_u24 v{VWO}, 10240, v{VR}\nv_add_u32 v{VWO}, v{VWO}, v{VC}\nv_mul_u32_u24 v{VWD}, 2560, v{VR}\nv_add_u32 v{VWD}, v{VWD}, v{VC}")
    A(f"v_lshlrev_b32 v{VF}, 3, v{VR}\nv_lshl_add_u32 v{VF}, v{VC}, 5, v{VF}")
    A(f"v_and_b32 v{VML}, 31, v0\nv_lshlrev_b32 v{VML}, 4, v{VML}")
    ML, FG, WD, WO, YA = 14, 16, 20, RING, ACC
    woload = lambda g: A(f"buffer_load_dwordx4 v[{WO+4*g}:{WO+4*g+3}], v{VWO}, s[36:39], {'s10' if g < 4 else 's11'} offen offset:{(g%4)*1280} {wpol}")
    A("s_waitcnt vmcnt(0) lgkmcnt(0)\ns_cmp_ge_u32 s5, 30\ns_cbranch_scc1 L_bm")
    def wdload(w):
        for g in range(2): A(f"buffer_load_dwordx4 v[{WD+4*g}:{WD+4*g+3}], v{VWD}, s[40:43], s12 offen offset:{g*1280} {wpol}" + ("\ns_waitcnt vmcnt(0)" if w else ""))
    if wdt == 0: wdload(1)
    for g in range(8 - NL): woload(g); A("s_waitcnt vmcnt(0)")
    def service(ph, stop):
        L = f"L_s{ph}"
        A(f"s_mul_i32 s8, s4, {CX}\ns_add_u32 s8, s8, {WS_C}\nv_mov_b32 v{T}, 0\nv_and_b32 v{T+3}, 31, v0\nv_lshlrev_b32 v{T+3}, 2, v{T+3}\nv_and_b32 v{T+10}, 3, v0\nv_lshlrev_b32 v{T+10}, 2, v{T+10}")
        A(f"s_cmp_eq_u32 s3, 3\ns_cbranch_scc0 {L}x\ns_lshl_b32 s9, s5, 2\ns_add_u32 s9, s9, s8")
        if ph == 1: A(f"s_mov_b32 s85, 0\ns_lshl_b32 s86, s7, 6\ns_add_u32 s86, s86, s54\nv_lshlrev_b32 v{T+8}, 1, v{T+10}\nv_lshlrev_b32 v{T+11}, 2, v{T+10}\nv_mov_b32 v{T+13}, s87\nv_mov_b32 v{T+15}, s87")
        A(f"{L}c:\nds_read_b32 v{T+1}, v{T+10} offset:{L_PROG}")
        if ph == 1: A(f"ds_read_b64 v[{T+6}:{T+7}], v{T+8} offset:{L_ML}")
        A(f"s_waitcnt lgkmcnt(0)\nv_add_u32_dpp v{T+2}, v{T+1}, v{T+1} quad_perm:[1,0,3,2] {DPPM}\nv_add_u32_dpp v{T+2}, v{T+2}, v{T+2} quad_perm:[2,3,0,1] {DPPM}")
        A(f"v_xor_b32 v{T+5}, s87, v{T+2}\ns_mov_b64 exec, 1\nbuffer_store_dword v{T+5}, v{T}, s[24:27], s9 offen\ns_mov_b64 exec, -1")
        A(f"v_readfirstlane_b32 s61, v{T+2}")
        if ph == 1:
            A(f"s_cmp_eq_u32 s85, 1\ns_cbranch_scc1 {L}m\nv_max_u32 v{T+9}, v{T+6}, v{T+7}\nv_cmp_eq_u32 vcc, -1, v{T+9}\ns_cbranch_vccnz {L}n")
            A(f"v_mov_b32 v{T+12}, v{T+6}\nv_mov_b32 v{T+14}, v{T+7}\ns_mov_b64 exec, 15\nbuffer_store_dwordx4 v[{T+12}:{T+15}], v{T+11}, s[24:27], s86 offen sc1\ns_mov_b64 exec, -1\ns_mov_b32 s85, 1\n{L}m:")
        A(f"s_cmp_ge_u32 s61, {4*stop}\ns_cbranch_scc1 {L}d\n{L}n:")
        if cw: A("s_waitcnt vmcnt(0)")
        A(f"buffer_load_dword v{T+4}, v{T+3}, s[24:27], s8 offen {cld}\ns_waitcnt vmcnt(0)\nv_xor_b32 v{T+4}, s87, v{T+4}\nv_cmp_gt_u32 vcc, 0x400, v{T+4}\nv_cndmask_b32 v{T+4}, 0, v{T+4}, vcc\nv_max_i32 v{T+4}, {4*CS}, v{T+4}")
        if fr: A(f"ds_read_b32 v{T+1}, v{T+10} offset:{L_PROG}")
        red8(A, "v_add_u32", [T + 4]); redhi(A, "v_add_u32", T + 4, T + 5, (8, 16))
        if fr: A("s_waitcnt lgkmcnt(0)")
        A(f"v_lshlrev_b32 v{T+1}, 7, v{T+1}\nv_sub_u32 v{T+4}, v{T+4}, v{T+1}")
        if ctl:
            A(f"v_cmp_lt_i32 vcc, {16*(TH+TB)}, v{T+4}\nv_cndmask_b32 v{T+2}, 1, 2, vcc\nv_cmp_gt_i32 vcc, {16*(TB-TH)}, v{T+4}\nv_cndmask_b32 v{T+2}, v{T+2}, 0, vcc")
            A(f"s_mov_b64 exec, 15\nds_write_b32 v{T+10}, v{T+2} offset:{L_MODE}\ns_mov_b64 exec, -1")
        A(f"s_branch {L}c\n{L}x:")
        A(f"{L}d:")
    A("L_bm:")
    service(1, 192 - TM - 12)
    A("s_barrier ; BM")
    fload = f"buffer_load_dwordx2 v[{FG}:{FG+1}], v{VF}, s[24:27], s13 offen sc1\nbuffer_load_dwordx2 v[{FG+2}:{FG+3}], v{VF}, s[24:27], s13 offen offset:256 sc1"
    A("s_cmp_ge_u32 s5, 30\ns_cbranch_scc1 L_ml")
    A(f"v_and_b32 v{T}, 1, v{VR}\nv_lshlrev_b32 v{T}, 4, v{T}\nv_lshrrev_b32 v{T}, v{T}, s87\nv_bfe_u32 v{T+1}, v{T}, 8, 8\nv_and_b32 v{T}, 0xff, v{T}")
    A(f"s_mov_b32 s61, {SPIN}\nL_fchk:\n{fload}\ns_sub_u32 s61, s61, 1\ns_waitcnt vmcnt(0)\ns_cbranch_scc1 L_fok")
    untag([FG, FG + 1, FG + 2, FG + 3], [f"v{T}", f"v{T+1}"] * 2)
    A("s_cbranch_vccnz L_fchk\nL_fok:")
    red8(A, "v_add_f32", [FG, FG + 1, FG + 2, FG + 3])
    for r in range(4): rb(FG + r)
    for r in range(2):
        g_, t = FG + r, T + r
        A(f"v_mul_f32 v{t}, v{g_}, v{g_}\nv_mul_f32 v{t}, 0x3d372713, v{t}\nv_fma_f32 v{t}, v{t}, v{g_}, v{g_}\nv_mul_f32 v{t}, 0xc0135761, v{t}")
        A(f"v_exp_f32 v{t}, v{t}\nv_add_f32 v{t}, 1.0, v{t}\nv_rcp_f32 v{t}, v{t}\nv_mul_f32 v{t}, v{t}, v{g_}"); rb(t)
        A(f"v_mul_f32 v{t}, v{t}, v{FG+2+r}\nv_cvt_pk_bf16_f32 v{t}, v{t}, v{t}")
        abuild(A, AB + 4 * r, t)
    if wdt == 1: wdload(1)
    if wdt < 2:
        for g in range(2): mfma(A, YA, AB + 4 * g, WD + 4 * g, first=(g == 0))
    A(f"L_ml:\ns_cmp_lg_u32 s3, 0\ns_cbranch_scc1 L_noml\ns_mov_b32 s61, {SPIN}")
    A(f"L_mchk:\nbuffer_load_dwordx4 v[{G}:{G+3}], v{VML}, s[24:27], s54 offen sc1\ns_sub_u32 s61, s61, 1\ns_waitcnt vmcnt(0)\ns_cbranch_scc1 L_mok")
    A(f"v_xor_b32 v{G+1}, s87, v{G+1}\nv_xor_b32 v{G+3}, s87, v{G+3}\nv_or_b32 v{G+1}, v{G+1}, v{G+3}\nv_cmp_ne_u32 vcc, 0, v{G+1}\ns_cbranch_vccnz L_mchk\nL_mok:")
    A(f"v_mov_b32 v{ML}, v{G}\nv_mov_b32 v{ML+1}, v{G+2}")
    A(f"v_mov_b32 v{T}, v{ML}")
    red8(A, "v_max_f32", [T]); redhi(A, "v_max_f32", T, T + 1, (8, 16))
    A(f"v_sub_f32 v{T}, v{ML}, v{T}\nv_exp_f32 v{T}, v{T}\nv_mul_f32 v{T+2}, v{T}, v{ML+1}")
    red8(A, "v_add_f32", [T + 2]); redhi(A, "v_add_f32", T + 2, T + 1, (8, 16))
    A(f"v_rcp_f32 v{T+2}, v{T+2}\nv_mul_f32 v{T}, v{T}, v{T+2}")
    A(f"v_subrev_u32 v{T+1}, s53, v0\nv_cmp_gt_u32 vcc, 4, v{T+1}\nv_lshlrev_b32 v{T+1}, 2, v{T+1}\n;padoff\ns_and_saveexec_b64 s[8:9], vcc\nds_write_b32 v{T+1}, v{T} offset:{L_FS}\ns_mov_b64 exec, -1\n;padon\ns_waitcnt lgkmcnt(0)\nL_noml:")
    service(2, 192 - CE)
    A(f"v_and_b32 v13, 3, v0\nv_lshlrev_b32 v13, 3, v13\nv_lshrrev_b32 v13, v13, s87")
    A("s_barrier ; B15")
    stamp(4)
    A("s_cmp_ge_u32 s5, 30\ns_cbranch_scc1 L_nowo")
    if not pace:
        if wdt == 2: wdload(0)
        for g in range(8 - NL, 8): woload(g)
        A("L_nowo:")
    else:
        late = [lambda g=g: A(f"buffer_load_dwordx4 v[{WD+4*g}:{WD+4*g+3}], v{VWD}, s[40:43], s12 offen offset:{g*1280} {wpol}") for g in range(2) if wdt == 2] + [lambda g=g: woload(g) for g in range(8 - NL, 8)]
        p0, p1, p2 = [int(c) for c in str(pace)[-3:]]
        for f in late[:p0]: f()
        A("s_barrier ; BPa")
        for f in late[p0:p0+p1]: f()
        A("s_barrier ; BPb")
        for f in late[p0+p1:p0+p1+p2]: f()
        A("s_barrier ; B2")
        for f in late[p0+p1+p2:]: f()
        A("s_branch L_b2\nL_nowo:\ns_barrier ; BPa\ns_barrier ; BPb")
    A("s_barrier ; B2\nL_b2:")
    stamp(5)
    A("s_cmp_ge_u32 s5, 30\ns_cbranch_scc1 L_spare_b")
    gather("L_o", "s14", G, 1, alt=(WS_OB - WS_O) if fast else 0)
    stamp(6)
    if wdt == 2:
        for g in range(2): mfma(A, YA, AB + 4 * g, WD + 4 * g, first=(g == 0))
    red8(A, "v_add_f32", [G + r for r in range(8)])
    for r in range(8): A(f"v_cvt_pk_bf16_f32 v{G+r}, v{G+r}, v{G+r}")
    abuild(A, AB, G)
    for g in range(8):
        if g < 7: abuild(A, AB + 4 * ((g + 1) & 1), G + g + 1)
        mfma(A, YA, AB + 4 * (g & 1), WO + 4 * g)
    A("s_mov_b32 exec_lo, 0x00ff00ff\ns_mov_b32 exec_hi, 0xff00ff00")
    A(f"ds_write_b128 v{VY}, v[{YA}:{YA+3}] offset:{L_Y}\ns_mov_b64 exec, -1\ns_waitcnt lgkmcnt(0)\ns_barrier ; B3")
    A("s_cmp_lg_u32 s3, 0\ns_cbranch_scc1 L_end")
    for r in range(4): A(f"ds_read2st64_b32 v[{T+2*r}:{T+2*r+1}], v{VP} offset0:{L_Y//256 + 2*r} offset1:{L_Y//256 + 2*r + 1}")
    for r in range(1, 4): A(f"s_waitcnt lgkmcnt({3-r})\nv_pk_add_f32 v[{T}:{T+1}], v[{T}:{T+1}], v[{T+2*r}:{T+2*r+1}]")
    A(f"v_add_f32 v{T}, v{T}, v{T+1}\nv_bfi_b32 v{T}, s92, v13, v{T}")
    A(f"buffer_store_dword v{T}, v{VP}, s[24:27], s52 offen sc1")
    def putstamps():
        if stamps and stamps != 4: putst(RING)
    putstamps()
    A("s_endpgm")
    if r4:
        A("L_spare_b:\ns_sub_u32 s8, s2, 240")
        A(f"s_cmp_ge_u32 s8, 10\ns_cbranch_scc1 {'L_st' if stamps else 'L_end'}")
        A(f"s_mul_i32 s9, s8, 6144\ns_lshl_b32 s10, s3, 6\ns_add_u32 s9, s9, s10\ns_add_u32 s9, s9, {WS_Y}\ns_lshl_b32 s11, s8, 7\ns_lshl_b32 s10, s3, 5\ns_add_u32 s11, s11, s10\ns_add_u32 s10, s9, 3072")
        A(f"v_and_b32 v2, 15, v0\nv_lshrrev_b32 v1, 4, v0\nv_lshlrev_b32 v1, 8, v1\nv_lshl_add_u32 v1, v2, 2, v1\nv_lshlrev_b32 v2, 1, v2\nv_and_b32 v13, 0xff, v13")
        A(f"buffer_load_ushort v{ML}, v2, s[20:23], s11 offen")
        def yround(k):
            for e in range(6): A(f"buffer_load_dword v{RING+8*(k+1)+e}, v1, s[24:27], {'s9' if e < 3 else 's10'} offen offset:{(e%3)*1024} {yld}")
        A(f"s_mov_b32 s61, {SPIN}\ns_waitcnt vmcnt(0)\nv_lshlrev_b32 v{ML}, 16, v{ML}")
        for k in range(yp - 1): yround(k)
        A("L_ychk:")
        for k in range(yp):
            yround((k + yp - 1) % yp); Y = RING + 8 * (k + 1)
            A(f"s_waitcnt vmcnt({6*(yp-1)})")
            untag([Y + e for e in range(6)], ["v13"] * 6, t=T)
            A(f"v_pk_add_f32 v[{RING}:{RING+1}], v[{Y}:{Y+1}], v[{Y+2}:{Y+3}]\nv_pk_add_f32 v[{RING}:{RING+1}], v[{RING}:{RING+1}], v[{Y+4}:{Y+5}]")
            A("s_cbranch_vccz L_yok")
        A("s_sub_u32 s61, s61, 1\ns_cbranch_scc0 L_ychk\nL_yok:")
        stamp(6)
        A(f"v_add_f32 v{RING}, v{RING}, v{RING+1}")
        redhi(A, "v_add_f32", RING, RING + 1, (16, 32))
        A(f"v_add_f32 v{RING}, v{RING}, v{ML}\nv_cvt_pk_bf16_f32 v{RING}, v{RING}, v{RING}\ns_mov_b64 exec, 0xffff")
        A(f"buffer_store_short v{RING}, v2, s[48:51], s11 offen {opol}")
    else:
        A(f"L_spare_b:\ns_cmp_lt_u32 s3, {4-yw}\ns_cbranch_scc1 L_end\ns_sub_u32 s8, s2, 240")
        A(f"s_cmp_ge_u32 s8, 10\ns_cbranch_scc1 {'L_st' if stamps else 'L_end'}")
        A(f"s_mul_i32 s9, s8, 6144\ns_add_u32 s9, s9, {WS_Y}\ns_add_u32 s10, s9, 3072\ns_lshl_b32 s11, s8, 7")
        A(f"v_lshlrev_b32 v1, 4, v0\nv_and_b32 v2, 15, v0\nv_lshlrev_b32 v2, 3, v2\nv_lshrrev_b32 v3, 4, v0\nv_lshl_add_u32 v2, v3, 1, v2")
        A(f"buffer_load_ushort v{ML}, v2, s[20:23], s11 offen")
        for e in range(gate):
            A(f"s_lshl_b32 s12, s4, 2\ns_add_u32 s12, s12, {3-e}\ns_mul_i32 s12, s12, 6144\ns_add_u32 s12, s12, {WS_O + 512}")
            gather(f"L_g{e}", "s12", G, 1, alt=(WS_OB - WS_O) if fast else 0)
        def yround(k):
            for e in range(6): A(f"buffer_load_dwordx4 v[{RING+24*(k+1)+4*e}:{RING+24*(k+1)+4*e+3}], v1, s[24:27], {'s9' if e < 3 else 's10'} offen offset:{(e%3)*1024} {yld}")
        A(f"s_mov_b32 s61, {SPIN}")
        for k in range(yp - 1): yround(k)
        A("L_ychk:")
        for k in range(yp):
            yround((k + yp - 1) % yp); Y = RING + 24 * (k + 1)
            A(f"s_waitcnt vmcnt({6*(yp-1)})")
            untag([Y + e for e in range(24)], t=T)
            for e in (0, 2, 4):
                for r in range(0, 4, 2): A(f"v_pk_add_f32 v[{RING+4*e+r}:{RING+4*e+r+1}], v[{Y+4*e+r}:{Y+4*e+r+1}], v[{Y+4*e+4+r}:{Y+4*e+4+r+1}]")
            A("s_cbranch_vccz L_yok")
        A("s_sub_u32 s61, s61, 1\ns_cbranch_scc0 L_ychk\nL_yok:")
        stamp(6)
        for e in (2, 4):
            for r in (0, 2): A(f"v_pk_add_f32 v[{RING+r}:{RING+r+1}], v[{RING+r}:{RING+r+1}], v[{RING+4*e+r}:{RING+4*e+r+1}]")
        A(f"v_lshlrev_b32 v{ML}, 16, v{ML}\nv_permlane16_swap_b32 v{RING}, v{RING+1}\nv_permlane16_swap_b32 v{RING+2}, v{RING+3}")
        A(f"v_add_f32 v{RING}, v{RING}, v{RING+1}\nv_add_f32 v{RING+2}, v{RING+2}, v{RING+3}\nv_permlane32_swap_b32 v{RING}, v{RING+2}")
        A(f"v_add_f32 v{RING}, v{RING}, v{ML}\nv_add_f32 v{RING}, v{RING}, v{RING+2}\nv_cvt_pk_bf16_f32 v{RING}, v{RING}, v{RING}")
        A(f"buffer_store_short v{RING}, v2, s[48:51], s11 offen {opol}")
    A(f"; every workgroup has read the old tag long ago (this result depends on all of them): leave the new one\ns_lshl_b32 s8, s2, 2\ns_add_u32 s8, s8, s3\ns_cmp_lg_u32 s8, 963\ns_cbranch_scc1 L_fin\nv_mov_b32 v2, {WS_E}\nv_mov_b32 v3, s87\ns_mov_b64 exec, 1\nbuffer_store_dword v3, v2, s[24:27], 0 offen\nL_fin:")
    if stamps:
        A("s_mov_b64 exec, -1\ns_waitcnt vmcnt(0)\ns_branch L_st2\nL_st:"); stamp(6); A("L_st2:"); putstamps()
    A("s_endpgm")
    if al: A(f".p2align {al}")
    A(";padoff\nL_stream:\n; ---- stream waves 0..3: 256 keys each, K pass then V pass")
    A("s_mov_b32 s30, 100663296\ns_mov_b32 s31, 0x20000\ns_mov_b32 s34, 100663296\ns_mov_b32 s35, 0x20000")
    sw, ss, sc = {0: (98304, 393216, IC*3072), 1: (IC*3072, 393216, 4*IC*3072), 2: (IC*3072, 4*IC*3072, 32*IC*3072), 3: (786432, IC*3072, 8*IC*3072)}[il]
    goff = lambda g: (g // IC) * sc + (g % IC) * 3072
    A(f"s_mul_i32 s52, s6, 3145728\ns_lshl_b32 s8, s7, 2\ns_add_u32 s8, s8, s3\ns_mul_i32 s9, s7, {ss}\ns_add_u32 s52, s52, s9\ns_mul_i32 s9, s3, {sw}\ns_add_u32 s52, s52, s9")
    A("v_lshrrev_b32 v1, 3, v0\nv_mul_u32_u24 v1, 384, v1\nv_and_b32 v2, 7, v0\nv_lshl_add_u32 v1, v2, 4, v1")
    Q, ACC, AB, S, M, LS, T0, RING = 8, 20, 32, 40, 72, 73, 74, 76
    assert RING + 4 * RR <= 256
    vm = VM(A); N = 192
    st = dict(issued=0, consumed=0, ctl=0)
    slot = lambda i: RING + 4 * (i % RR)
    def nextoff(g):
        if rho: A(f"s_add_u32 s53, s59, {32*g}\ns_and_b32 s53, s53, 1023\ns_mul_i32 s53, s53, 3072\ns_add_u32 s53, s53, s60")
        else: A(f"s_add_u32 s53, s52, {goff(g)}")
    if rho: A(f"s_mul_i32 s59, s6, {rho}\ns_add_u32 s59, s59, s8\ns_mul_i32 s60, s6, 3145728")
    nextoff(0)
    def issue_to(n):
        if burst: n = n // 3 * 3
        n = min(n, N)
        while st["issued"] < n:
            i = st["issued"]
            assert i - RR < st["consumed"], (i, st)
            g, j = (i % 96) // 3, i % 3
            bs = 3 if burst else 1
            if st["ctl"] and (j == 0 or not burst):
                hb, hm, hs = [int(c, 36) for c in (WK if i < NK else WV)]
                hw = lambda h: (h + (i & 1)) // 2 - bs
                if hw(hb) < RB - bs: A(f"s_waitcnt vmcnt({hw(hb)})")
                A(f"s_cmp_eq_u32 s58, 2\ns_cbranch_scc1 L_i{i}\ns_waitcnt vmcnt({hw(hm)})\ns_cbranch_vccz L_i{i}\ns_waitcnt vmcnt({hw(hs)})\nL_i{i}:")
            vm.op(f"buffer_load_dwordx4 v[{slot(i)}:{slot(i)+3}], v1, s[{28 if i < 96 else 32}:{31 if i < 96 else 35}], s53 offen offset:{j*128} {kvpol}", i)
            st["issued"] += 1
            if j == 2: nextoff((g + 1) % 32)
            if st["issued"] == N:
                A(f"s_barrier ; B15: last V load issued\nv_mov_b32 v0, 0\nds_read_b128 v[{Q}:{Q+3}], v0 offset:{L_FS}")
                A(f"v_mbcnt_lo_u32_b32 v2, -1, 0\nv_mbcnt_hi_u32_b32 v2, -1, v2\ns_add_u32 s87, s87, 0x07050301\ns_movk_i32 s92, 0xff\nv_and_b32 v72, 3, v2\nv_lshlrev_b32 v72, 3, v72\nv_lshrrev_b32 v72, v72, s87\nv_lshlrev_b32 v2, 2, v2\nv_lshl_add_u32 v2, s3, 8, v2")
                A(f"s_lshl_b32 s15, s6, 3\ns_add_u32 s15, s15, s7\ns_mul_i32 s15, s15, 768\ns_add_u32 s15, s15, {WS_O}")
    A("s_waitcnt lgkmcnt(0)")
    if prio: A(f"s_setprio {prio}")
    issue_to(R00)
    if BA: A("s_barrier")
    issue_to(R0)
    eload()
    masks(A)
    for g in range(32): A(f"v_mov_b32 v{S+g}, 0")
    A(f"v_mov_b32 v{M}, 0xff800000")
    A("s_mov_b32 s56, 0x3d93cd3a\ns_mov_b32 s57, 0x3fb8aa3b")
    A(f"v_and_b32 v2, 7, v0\nv_lshlrev_b32 v2, 4, v2")
    A(f"v_lshrrev_b32 v3, 5, v0\nv_lshl_add_u32 v3, s3, 1, v3\nv_mul_u32_u24 v3, 768, v3\nv_lshl_add_u32 v3, v2, 1, v3\nv_and_b32 v{T0}, 16, v0\nv_add_u32 v3, v3, v{T0}")
    win = lambda i: R0 if i < N0 else (RB if st['ctl'] else (R2 if i >= N - T2 else R))
    def step(i):
        vm.wait(i); issue_to(i + 1 + win(i))
        if pace and i in (N - 5, N - 3): A("s_barrier ; BP")
        if i == N - TM:
            A("s_barrier ; BM")
        if i == CS: st["ctl"] = 1; A(f"s_mov_b32 s58, 1\ns_mov_b64 vcc, 0\ns_lshl_b32 s54, s3, 2\nv_mov_b32 v0, s54")
        if st["ctl"] and st["issued"] < N:
            if i % PS == 0: A(f"v_mov_b32 v2, {i}\nds_read_b32 v75, v0 offset:{L_MODE}\nds_write_b32 v0, v2 offset:{L_PROG}")
            if i % PS == 1 and i > CS + 1: A(f"s_waitcnt lgkmcnt(0)\nv_readfirstlane_b32 s58, v75\nv_cmp_eq_u32 vcc, 0, v75")
        if stamps == 4 and i in (0, 16, NB - 1, 95, 143): stamp({0: 1, 16: 2, NB - 1: 3, 95: 5, 143: 6}[i])
    def kgroups(gs):
        for e in range(12):
            for g in gs: A(f"v_dot2c_f32_bf16 v{S+g}, v{slot(3*g + e//4) + e%4}, v{Q+e}")
        st["consumed"] = 3 * gs[-1] + 3
        red8(A, "v_add_f32", [S + g for g in gs])
        if mimic:
            for g in gs: A(f"v_cvt_pk_bf16_f32 v{S+g}, v{S+g}, v{S+g}")
            for g in gs: A(f"v_and_b32 v{S+g}, s55, v{S+g}")
        for g in gs: A(f"v_mul_f32 v{S+g}, s56, v{S+g}")
        if mimic:
            for g in gs: A(f"v_cvt_pk_bf16_f32 v{S+g}, v{S+g}, v{S+g}")
            for g in gs: A(f"v_and_b32 v{S+g}, s55, v{S+g}")
        for g in gs: A(f"v_max_f32 v{M}, v{M}, v{S+g}")
    i = 0
    while i < NB:
        step(i); i += 1
        if B02 and i == B02: A("s_barrier ; B02")
    A("s_barrier ; B1: q ready")
    if stamps == 4: stamp(4)
    for j in range(3): A(f"ds_read_b128 v[{Q+4*j}:{Q+4*j+3}], v2 offset:{L_Q + 128*j}")
    A("s_waitcnt lgkmcnt(0)")
    gk = 0
    while gk < 32:
        avail = min(i, 96) // 3 - gk
        if avail > 0:
            n = min(avail, CU); kgroups(list(range(gk, gk + n))); gk += n
        if gk < 32 : step(i); i += 1
    redhi(A, "v_max_f32", M, T0)
    A(f"v_mul_f32 v{M}, s57, v{M}")
    for q4 in range(SP):
        step(i); i += 1
        gs = range(32 * q4 // SP, 32 * (q4 + 1) // SP)
        for g in gs: A(f"v_fma_f32 v{S+g}, v{S+g}, s57, -v{M}")
        for g in gs: A(f"v_exp_f32 v{S+g}, v{S+g}")
        for g in gs:
            if g == 1: A(f"v_add_f32 v{LS}, v{S}, v{S+1}")
            elif g > 1: A(f"v_add_f32 v{LS}, v{LS}, v{S+g}")
    step(i); i += 1
    redhi(A, "v_add_f32", LS, T0)
    A(f"v_min_u32 v{M}, -2, v{M}\nv_min_u32 v{LS}, -2, v{LS}")
    A(f"s_lshl_b32 s54, s3, 3\nv_mov_b32 v{T0}, s54\nds_write_b64 v{T0}, v[{M}:{LS}] offset:{L_ML}")
    def pbuild(a, r): A(f"v_cvt_pk_bf16_f32 v{r}, v{r}, v{r}"); abuild(A, a, r)
    c = 96
    pbuild(AB, S)
    while c < N:
        while c < i:
            g, j = (c - 96) // 3, c % 3
            mfma(A, ACC + 4 * j, AB + 4 * (g & 1), slot(c), first=(g == 0))
            c += 1; st["consumed"] = c
            if j == 0 and g < 31: pbuild(AB + 4 * ((g + 1) & 1), S + g + 1)
        if i < N: step(i); i += 1
    A("s_mov_b32 exec_lo, 0x00ff00ff\ns_mov_b32 exec_hi, 0xff00ff00")
    for j in range(3): A(f"ds_write_b128 v3, v[{ACC+4*j}:{ACC+4*j+3}] offset:{L_P + 256*j}")
    A("s_waitcnt lgkmcnt(0)")
    if stamps == 4:
        A("s_mov_b64 exec, -1\ns_cmp_lg_u32 s3, 0\ns_cbranch_scc1 L_nost"); putst(RING); A("L_nost:")
    A("s_mov_b64 exec, -1\ns_cmp_eq_u32 s3, 3\ns_barrier ; B2\ns_cbranch_scc1 L_end")
    U = Q + 4
    for r in range(4): A(f"ds_read2st64_b32 v[{U+2*r}:{U+2*r+1}], v2 offset0:{L_P//256 + 6*r} offset1:{L_P//256 + 6*r + 3}")
    for r in range(4): A(f"s_waitcnt lgkmcnt({3-r})\nv_add_f32 v{U+2*r}, v{U+2*r}, v{U+2*r+1}\n" + (f"v_mul_f32 v{U}, v{Q}, v{U}" if r == 0 else f"v_fmac_f32 v{U}, v{Q+r}, v{U+2*r}"))
    A(f"v_bfi_b32 v{U}, s92, v72, v{U}")
    if fast: A(f"buffer_store_dword v{U}, v2, s[24:27], s15 offen\ns_add_u32 s15, s15, {WS_OB - WS_O}")
    A(f"buffer_store_dword v{U}, v2, s[24:27], s15 offen sc1")
    A(f"s_cmp_ge_u32 s5, 30\ns_cbranch_scc1 L_end\ns_barrier ; B3")

    A(";padoff\nL_end:\ns_endpgm")
    if "e" in lst or "r" in lst:
        A(""".globl empty_kernel
.p2align 8
.type empty_kernel,@function
empty_kernel:
""" + (reporter(ri, rm, rk) if "r" in lst else "") + """
s_endpgm
.section .rodata,"a"
.p2align 6
.amdhsa_kernel empty_kernel
.amdhsa_next_free_vgpr 32
.amdhsa_next_free_sgpr 32
.amdhsa_accum_offset 32
.amdhsa_group_segment_fixed_size 0
.amdhsa_kernarg_size 96
.amdhsa_user_sgpr_count 2
.amdhsa_user_sgpr_kernarg_segment_ptr 1
.amdhsa_system_sgpr_workgroup_id_x 1
.end_amdhsa_kernel""")
    A(f""".section .rodata,"a"
.p2align 6
.amdhsa_kernel {NAME}_kernel
.amdhsa_next_free_vgpr 256
.amdhsa_next_free_sgpr 96
.amdhsa_accum_offset 256
.amdhsa_group_segment_fixed_size 0
.amdhsa_kernarg_size 96
.amdhsa_user_sgpr_count 2
.amdhsa_user_sgpr_kernarg_segment_ptr 1
.amdhsa_system_sgpr_workgroup_id_x 1
.amdhsa_float_denorm_mode_32 3
.end_amdhsa_kernel""")
    txt = A.finish()
    return HDR + (A.pads(txt, hop, 16) if hop else txt)
if __name__ == "__main__":
    for spec in sys.argv[1:]:
        kw = {}; out = None
        for p in spec.split(","):
            k, v = p.split("=")
            if k == "out": out = v; continue
            kw[k] = int(v) if v.lstrip("-").isdigit() else v.replace("+", " ").replace("none", "")
        fn = out or ("k_" + spec.replace(",", "_").replace("=", "").replace("+", "") + ".s")
        open(fn, "w").write(gen(**kw))
        print(fn)
```

```python
import sys
from asmlib import Asm
NAME = "parallel_sum__gqa_block_cached__glu_gated_geglu__decode"
HDR = open("cdna_kernels/" + NAME + ".s.ref").read().split("; Override launch")[0]
WS_E, WS_O, WS_F, WS_Y, WS_ML, WS_OB, WS_Q = 0, 8192, 204800, 303104, 376832, 393216, 589824
WS_USED = 851968
L_P, L_Q, L_Y = 0, 6144, 6656
L_PROG, L_MODE, L_ML, L_FS = 8704, 8720, 8736, 8768
WS_C = 364544
LDS_BYTES = 8784
WS_G = WS_C + 256
DPPM = "row_mask:0xf bank_mask:0xf"
SPIN = 1 << 22
def srd(A, r, off, size):
    A(f"s_load_dwordx2 s[{r}:{r+1}], s[0:1], {off}")
    A(f"s_mov_b32 s{r+2}, {size}\ns_mov_b32 s{r+3}, 0x20000")
def red8(A, op, rs):
    for mod in ("quad_perm:[1,0,3,2]", "quad_perm:[2,3,0,1]", "row_half_mirror"):
        for r in rs: A(f"{op}_dpp v{r}, v{r}, v{r} {mod} {DPPM}")
def redhi(A, op, r, t, steps=(8, 16, 32)):
    if 8 in steps: A(f"{op}_dpp v{r}, v{r}, v{r} row_ror:8 {DPPM}")
    if 16 in steps: A(f"v_mov_b32 v{t}, v{r}\nv_permlane16_swap_b32 v{r}, v{t}\n{op} v{r}, v{r}, v{t}")
    if 32 in steps: A(f"v_mov_b32 v{t}, v{r}\nv_permlane32_swap_b32 v{r}, v{t}\n{op} v{r}, v{r}, v{t}")
def masks(A):
    A("v_and_b32 v2, 1, v0\nv_lshlrev_b32 v2, 4, v2\nv_mov_b32 v3, 0xffff\nv_lshlrev_b32 v3, v2, v3\nv_bfe_u32 v2, v0, 1, 2")
    for w in range(4): A(f"v_cmp_eq_u32 vcc, {w}, v2\nv_cndmask_b32 v{4+w}, 0, v3, vcc")
def abuild(A, a, pk):
    for w in range(4): A(f"v_and_b32 v{a+w}, v{4+w}, v{pk}")
def mfma(A, d, a, b, first=False):
    c = "0" if first else f"v[{d}:{d+3}]"
    A(f"v_mfma_f32_16x16x32_bf16 v[{d}:{d+3}], v[{a}:{a+3}], v[{b}:{b+3}], {c}")
class VM:
    def __init__(s, A): s.A = A; s.n = 0; s.at = {}
    def op(s, text, key=None): s.A(text); s.at[key] = s.n; s.n += 1
    def wait(s, key): s.A(f"s_waitcnt vmcnt({s.n - 1 - s.at[key]})")

def reporter(ri, rm, rk):
    A = Asm()
    A("s_cmp_ge_u32 s2, 1\ns_cbranch_scc1 L_rend")
    srd(A, 8, 88, 402653184)
    A(f"v_lshlrev_b32 v1, 6, v0\ns_mov_b32 s12, {64<<20}\ns_waitcnt lgkmcnt(0)")
    for e in range(4):
        A(f"buffer_load_dword v{4+e}, v1, s[8:11], s12 offen\nbuffer_load_dword v{8+e}, v1, s[8:11], s12 offen offset:{8*ri}\ns_add_u32 s12, s12, 4096")
    A("s_waitcnt vmcnt(0)\nv_readfirstlane_b32 s13, v4\ns_sub_u32 s13, s13, 100000")
    for e in range(8): A(f"v_subrev_u32 v{4+e}, s13, v{4+e}")
    A("v_min_u32 v4, v4, v5\nv_min3_u32 v4, v4, v6, v7")
    red8(A, "v_min_u32", [4]); redhi(A, "v_min_u32", 4, 12)
    for e in range(4): A(f"v_sub_u32 v{8+e}, v{8+e}, v4")
    op = {"max": "v_max_u32", "min": "v_min_u32", "avg": "v_add_u32"}[rm]
    A(f"{op} v8, v8, v9\n{op} v10, v10, v11\n{op} v8, v8, v10")
    red8(A, op, [8]); redhi(A, op, 8, 12)
    A("v_readfirstlane_b32 s14, v8")
    if rm == "avg": A("s_lshr_b32 s14, s14, 8")
    A(f"s_mul_i32 s14, s14, {rk}\ns_min_u32 s14, s14, 100000\ns_memrealtime s[16:17]\ns_waitcnt lgkmcnt(0)")
    A("L_rs:\ns_memrealtime s[18:19]\ns_waitcnt lgkmcnt(0)\ns_sub_u32 s18, s18, s16\ns_cmp_lt_u32 s18, s14\ns_cbranch_scc1 L_rs\nL_rend:")
    return A.finish()
def gen(R=5, R0=5, RR=45, NB=38, N0=10, R2=10, T2=16, CU=3, SP=4, stamps=0, kvpol="nt", wqpol="nt", wpol="nt", prio=0, mimic=1, B02=12, fast=1, hop=0, al=0, FB=32, pt=0, yp=3, r4=1, cpol='sc1', opol='', gate=0, qf=0, abl='', yld='sc1', yw=1, BA=10, ff=1, R00=2, RF=2, TM=72, NL=8, ctl=1, RS=5, RB=8, TH=12, TB=-16, CE=21, cst="", cw=0, il=2, IC=1, burst=0, rho=616, CS=48, xc=0, TX=0, XG=8, XE=12, GS=3328, xw=1, CX=512, cld='sc1', svc=1, WK='ea9', WV='eba', tv=0, tw=0, pace=0, NK=96, wdt=2, fr=0, PS=3,  lst="", ri=7, rm="max", rk=2):
    A = Asm()
    def stamp(i):
        if stamps: A(f"s_memrealtime s[{64+2*i}:{65+2*i}]")
    def putst(base):
        stamp(7); A("s_waitcnt lgkmcnt(0)")
        for e in range(16): A(f"v_mov_b32 v{base+e}, s{64+e}")
        A(f"s_lshl_b32 s8, s2, 6\ns_add_u32 s8, s8, {64<<20}\nv_mov_b32 v1, 0")
        for e in range(4): A(f"buffer_store_dwordx4 v[{base+4*e}:{base+4*e+3}], v1, s[24:27], s8 offen offset:{16*e}")
    if not lst: A(f"; @launch grid=(256,1,1) block=(512,1,1) lds={LDS_BYTES}")
    for c in lst:
        if c == "m": A(f"; @launch kernel={NAME}_kernel grid=(256,1,1) block=(512,1,1) lds={LDS_BYTES}")
        else: A(f"; @launch kernel=empty_kernel grid=(1,1,1) block=(64,1,1) lds=0")
    A('.amdgcn_target "amdgcn-amd-amdhsa--gfx950"\n.text')
    A(f".globl {NAME}_kernel\n.p2align 8\n.type {NAME}_kernel,@function\n{NAME}_kernel:")
    for r, off in ((20, 0), (16, 24), (24, 88), (28, 8), (32, 16)): A(f"s_load_dwordx2 s[{r}:{r+1}], s[0:1], {off}")
    stamp(0)
    A("v_lshrrev_b32 v1, 6, v0\nv_and_b32 v0, 63, v0\ns_cmp_ge_u32 s2, 256\nv_readfirstlane_b32 s3, v1\ns_cbranch_scc1 L_end")
    A("s_and_b32 s4, s2, 7\ns_lshr_b32 s5, s2, 3\ns_lshl_b32 s6, s4, 2\ns_and_b32 s8, s5, 3\ns_add_u32 s6, s6, s8\ns_lshr_b32 s7, s5, 2")
    A(f"s_mov_b32 s26, {WS_USED if not stamps else 402653184}\ns_mov_b32 s27, 0x20000\ns_mov_b32 s55, 0xffff0000")
    A("s_cmp_lt_u32 s3, 4\ns_cbranch_scc1 L_stream")
    A("; ---- aux waves 4..7: layernorm, q projection, FFN, output projection, hand-offs")
    A("s_mov_b32 s18, 7864320\ns_mov_b32 s19, 0x20000\ns_movk_i32 s22, 1280\ns_mov_b32 s23, s19")
    A("s_sub_u32 s3, s3, 4")
    XS, X0, PK, ACC, AB, T, RING = 8, 14, 26, 48, 60, 68, 96
    VQ, VY, VC, VR, VO = 1, 45, 46, 47, 44
    G = 28
    A(f"v_lshrrev_b32 v{VR}, 3, v0\nv_and_b32 v{VC}, 7, v0\nv_lshlrev_b32 v{VC}, 4, v{VC}")
    A("s_cmp_lt_u32 s3, 2\ns_cbranch_scc1 L_q0")
    def eload(): A(f"s_load_dword s87, s[24:25], {WS_E}")
    def etags():
        A("s_add_u32 s87, s87, 0x07050301\ns_and_b32 s88, s87, 0xff\ns_bfe_u32 s89, s87, 0x80008\ns_bfe_u32 s90, s87, 0x80010\ns_lshr_b32 s91, s87, 24\ns_movk_i32 s92, 0xff")
    A("s_waitcnt lgkmcnt(0)"); eload()
    if BA: A("s_barrier ; BA")
    stamp(1); stamp(2)
    A("s_branch L_idle\nL_q0:")
    A(f"v_mul_u32_u24 v2, 20, v0\nv_mul_u32_u24 v3, 20, v{VR}\ns_mul_i32 s10, s7, 160")
    A(f"v_mul_u32_u24 v{VQ}, 122880, v{VR}\nv_add_u32 v{VQ}, v{VQ}, v{VC}")
    A("s_mul_i32 s52, s7, 983040\ns_mul_i32 s12, s6, 384\ns_add_u32 s52, s52, s12")
    def rb(r): A(f"v_cvt_pk_bf16_f32 v{r}, v{r}, v{r}\nv_and_b32 v{r}, s55, v{r}")
    A("s_waitcnt lgkmcnt(0)")
    A(f"buffer_load_dwordx4 v[{XS}:{XS+3}], v2, s[20:23], 0 offen\nbuffer_load_dword v{XS+4}, v2, s[20:23], 0 offen offset:16")
    A(f"buffer_load_dwordx4 v[{X0}:{X0+3}], v3, s[20:23], s10 offen\nbuffer_load_dword v{X0+4}, v3, s[20:23], s10 offen offset:16")
    eload()
    A("s_cmp_eq_u32 s3, 1\ns_cbranch_scc1 L_w1")
    for g in range(10):
        for j in range(3): A(f"buffer_load_dwordx4 v[{RING+12*g+4*j}:{RING+12*g+4*j+3}], v{VQ}, s[16:19], s52 offen offset:{128*j} {wqpol}")
        if g < 9: A("s_add_u32 s52, s52, 12288")
        if g == BA - 1: A("s_barrier ; BA")
    A("s_waitcnt vmcnt(30)\ns_branch L_ln\nL_w1:")
    if BA: A("s_barrier ; BA")
    A("s_waitcnt vmcnt(0)\nL_ln:\n;padon")
    stamp(1)
    for e in range(5): A(f"v_lshlrev_b32 v{T+2*e}, 16, v{XS+e}\nv_and_b32 v{T+2*e+1}, s55, v{XS+e}")
    SM, SV, TT = T + 10, T + 11, T + 12
    A(f"v_add_f32 v{SM}, v{T}, v{T+1}")
    for e in range(2, 10): A(f"v_add_f32 v{SM}, v{SM}, v{T+e}")
    red8(A, "v_add_f32", [SM]); redhi(A, "v_add_f32", SM, TT)
    A(f"v_mul_f32 v{SM}, 0x3acccccd, v{SM}")
    for e in range(10): A(f"v_sub_f32 v{T+e}, v{T+e}, v{SM}")
    A(f"v_mul_f32 v{SV}, v{T}, v{T}")
    for e in range(1, 10): A(f"v_fmac_f32 v{SV}, v{T+e}, v{T+e}")
    red8(A, "v_add_f32", [SV]); redhi(A, "v_add_f32", SV, TT)
    A(f"v_mul_f32 v{SV}, 0x3acccccd, v{SV}"); rb(SV); rb(SM)
    A(f"v_add_f32 v{SV}, 0x3727c5ac, v{SV}"); rb(SV)
    A(f"v_sqrt_f32 v{SV}, v{SV}"); rb(SV)
    A(f"v_rcp_f32 v{SV}, v{SV}")
    for e in range(5): A(f"v_lshlrev_b32 v{PK+2*e}, 16, v{X0+e}\nv_and_b32 v{PK+2*e+1}, s55, v{X0+e}")
    for e in range(10): A(f"v_sub_f32 v{PK+e}, v{PK+e}, v{SM}")
    for e in range(10): A(f"v_cvt_pk_bf16_f32 v{PK+e}, v{PK+e}, v{PK+e}")
    for e in range(10): A(f"v_and_b32 v{PK+e}, s55, v{PK+e}")
    for e in range(10): A(f"v_mul_f32 v{PK+e}, v{PK+e}, v{SV}")
    for e in range(10): A(f"v_cvt_pk_bf16_f32 v{PK+e}, v{PK+e}, v{PK+e}")
    A("s_cmp_eq_u32 s3, 1\ns_cbranch_scc1 L_idle")
    masks(A)
    def halfsum(n, dst):
        for r in range(n): A(f"v_mov_b32 v{T+16+r}, v{ACC+r}")
        for r in range(n): A(f"v_permlane32_swap_b32 v{ACC+r}, v{T+16+r}")
        for r in range(n): A(f"v_add_f32_dpp v{dst(r)}, v{T+16+r}, v{ACC+r} row_ror:8 {DPPM}")
        A(f"v_and_b32 v2, 16, v0\nv_lshl_add_u32 v2, v{VC}, 1, v2")
    abuild(A, AB, PK)
    for g in range(10):
        if g < 9: abuild(A, AB + 4 * ((g + 1) & 1), PK + g + 1)
        A(f"s_waitcnt vmcnt({27-3*g})")
        for j in range(3): mfma(A, ACC + 4 * j, AB + 4 * (g & 1), RING + 12 * g + 4 * j, first=(g == 0))
    A(f"v_mul_u32_u24 v{VO}, 48, v{VC}\nv_lshl_add_u32 v{VO}, v{VR}, 5, v{VO}")
    A(f"s_lshl_b32 s13, s6, 13\ns_add_u32 s13, s13, {WS_Q}\ns_lshl_b32 s12, s7, 10\ns_add_u32 s12, s12, s13\nv_lshlrev_b32 v3, 5, v{VR}\nv_lshl_add_u32 v3, v{VC}, 6, v3")
    A("s_waitcnt lgkmcnt(0)"); etags()
    for r in range(4): A(f"v_mov_b32 v{T+4*r+3}, s87")
    halfsum(12, lambda r: T + 4 * (r % 4) + r // 4)
    stamp(2)
    A("s_mov_b64 exec, 0x00ff00ff")
    for r in range(4): A(f"buffer_store_dwordx4 v[{T+4*r}:{T+4*r+3}], v2, s[24:27], s12 offen offset:{256*r} sc1")
    A("s_mov_b64 exec, -1")
    def untag(rs, tags=None, t=None):
        for n, r in enumerate(rs): A(f"v_xor_b32 v{r}, {tags[n] if tags else 's%d' % (88 + n % 4)}, v{r}")
        t = t or T + 12
        while len(rs) > 1:
            if len(rs) == 2: A(f"v_or_b32 v{t}, v{rs[0]}, v{rs[1]}"); rs = [t]
            else: A(f"v_or3_b32 v{t}, v{rs[0]}, v{rs[1]}, v{rs[2]}"); rs = rs[3:] + [t]
            t += 1
        A(f"v_and_b32 v{rs[0]}, 0xff, v{rs[0]}\nv_cmp_ne_u32 vcc, 0, v{rs[0]}")
    def gather(lab, so, base, nj, alt=0):
        A(f"s_mov_b32 s61, {SPIN - 1}\n{lab}chk:")
        if alt:
            A(f"s_and_b32 s8, s61, {FB-1}\ns_cselect_b32 s8, 0, {alt}\ns_add_u32 s8, s8, {so}"); so = "s8"
        for j in range(nj):
            for e in range(2): A(f"buffer_load_dwordx4 v[{base+8*j+4*e}:{base+8*j+4*e+3}], v{VO}, s[24:27], {so} offen offset:{256*j+16*e} sc1")
        A(f"s_sub_u32 s61, s61, 1\ns_waitcnt vmcnt(0)\ns_cbranch_scc1 {lab}ok")
        untag([base + r for r in range(8 * nj)])
        A(f"s_cbranch_vccnz {lab}chk\n{lab}ok:")
    if B02: A("s_barrier ; B02")
    A(f"s_mov_b32 s61, {SPIN}\nL_qchk:")
    for e in range(8): A(f"buffer_load_dwordx4 v[{RING+4*e}:{RING+4*e+3}], v3, s[24:27], s13 offen offset:{256*(e%4) + 16*(e//4)} sc1")
    A("s_sub_u32 s61, s61, 1\ns_waitcnt vmcnt(0)\ns_cbranch_scc1 L_qok")
    for e in range(8): A(f"v_xor_b32 v{RING+4*e+3}, s87, v{RING+4*e+3}")
    A(f"v_or3_b32 v{RING+3}, v{RING+3}, v{RING+7}, v{RING+11}\nv_or3_b32 v{RING+15}, v{RING+15}, v{RING+19}, v{RING+23}\nv_or3_b32 v{RING+3}, v{RING+3}, v{RING+27}, v{RING+31}")
    A(f"v_or_b32 v{RING+3}, v{RING+3}, v{RING+15}\nv_cmp_ne_u32 vcc, 0, v{RING+3}\ns_cbranch_vccnz L_qchk\nL_qok:")
    red8(A, "v_add_f32", [RING + 4 * e + j for e in range(8) for j in range(3)])
    for j in range(3):
        for e in range(0, 8, 2): A(f"v_cvt_pk_bf16_f32 v{T+4*j+e//2}, v{RING+4*e+j}, v{RING+4*e+4+j}")
    A(f"v_lshlrev_b32 v2, 4, v{VR}")
    for j in range(3): A(f"ds_write_b128 v2, v[{T+4*j}:{T+4*j+3}] offset:{L_Q + 128*j}")
    A("s_branch L_b1")
    A("L_idle:")
    masks(A)
    A(f"v_mul_u32_u24 v{VO}, 48, v{VC}\nv_lshl_add_u32 v{VO}, v{VR}, 5, v{VO}\ns_waitcnt lgkmcnt(0)"); etags()
    if B02: A("s_barrier ; B02")
    A("s_cmp_eq_u32 s3, 2\ns_cbranch_scc0 L_b1")
    A(f"v_and_b32 v{T}, 3, v0\nv_lshlrev_b32 v{T}, 2, v{T}\nv_mov_b32 v{T+2}, {CS}\nv_mov_b32 v{T+3}, 1\nds_write2_b32 v{T}, v{T+2}, v{T+3} offset0:0 offset1:4".replace(f"v_lshlrev_b32 v{T}, 2, v{T}", f"v_lshlrev_b32 v{T}, 2, v{T}\nv_add_u32 v{T}, {L_PROG}, v{T}"))
    A(f"v_lshrrev_b32 v{T}, 2, v{VC}\nv_mov_b32 v{T+4}, -1\nds_write_b32 v{T}, v{T+4} offset:{L_ML}")
    A("L_b1:\ns_waitcnt lgkmcnt(0)")
    if stamps >= 2: stamp(3)
    A("s_barrier ; B1")
    if stamps == 1: stamp(3)
    if tv:
        A(f"s_cmp_eq_u32 s3, 2\ns_cbranch_scc0 L_notv\ns_mov_b32 s34, 100663296\ns_mov_b32 s35, 0x20000\ns_mul_i32 s8, s6, 3145728\nv_min_u32 v{T}, {(3145728 >> tv) - 1}, v0\nv_lshlrev_b32 v{T}, {tv}, v{T}")
        A(f"buffer_load_dword v{T+1}, v{T}, s[32:35], s8 offen\nL_notv:")
    A("s_and_b32 s8, s5, 3\ns_mul_i32 s58, s4, 3\ns_add_u32 s58, s58, s8\ns_cmp_lt_u32 s8, 3\ns_cselect_b32 s8, s3, 0\ns_cmp_eq_u32 s8, 1\ns_cbranch_scc0 L_noffn")
    srd(A, 28, 48, 1966080); srd(A, 32, 56, 1966080)
    A(f"v_mul_u32_u24 v{VQ}, 30720, v{VR}\nv_add_u32 v{VQ}, v{VQ}, v{VC}")
    A("s_mul_i32 s52, s7, 245760\ns_lshl_b32 s12, s58, 7\ns_add_u32 s52, s52, s12\ns_waitcnt lgkmcnt(0)")
    for g in range(10):
        for mtx in range(2):
            r = RING + 8 * g + 4 * mtx
            A(f"buffer_load_dwordx4 v[{r}:{r+3}], v{VQ}, s[{28+4*mtx}:{31+4*mtx}], s52 offen offset:{(g%2)*3072} {wpol}\ns_waitcnt vmcnt({RF-1})")
        if g % 2 and g < 9: A("s_add_u32 s52, s52, 6144")
    A("s_waitcnt vmcnt(0)")
    for g in range(10):
        abuild(A, AB + 4 * (g & 1), PK + g)
        for mtx in range(2): mfma(A, ACC + 4 * mtx, AB + 4 * (g & 1), RING + 8 * g + 4 * mtx, first=(g == 0))
    halfsum(8, lambda r: T + r)
    A("v_mov_b32 v3, 0xff")
    for r in range(8): A(f"v_bfi_b32 v{T+r}, v3, s{88 + r%4}, v{T+r}")
    A(f"s_lshl_b32 s8, s58, 3\ns_add_u32 s8, s8, s7\ns_lshl_b32 s8, s8, 9\ns_add_u32 s8, s8, {WS_F}")
    A(f"s_mov_b64 exec, 0x00ff00ff\nbuffer_store_dwordx4 v[{T}:{T+3}], v2, s[24:27], s8 offen sc1\nbuffer_store_dwordx4 v[{T+4}:{T+7}], v2, s[24:27], s8 offen offset:256 sc1")
    A("s_mov_b64 exec, -1\nL_noffn:")
    srd(A, 36, 32, 7864320); srd(A, 40, 64, 1966080); srd(A, 48, 72, 1280)
    A(f"v_lshrrev_b32 v3, 5, v0\nv_lshl_add_u32 v3, s3, 1, v3\nv_and_b32 v{T}, 16, v0\nv_lshl_add_u32 v{T}, v{VC}, 1, v{T}\nv_lshl_add_u32 v{VY}, v3, 8, v{T}")
    VP = 3
    A(f"v_lshlrev_b32 v{VP}, 2, v0\nv_lshl_add_u32 v{VP}, s3, 8, v{VP}")
    def readP(base, stride):
        for r in range(4): A(f"ds_read2st64_b32 v[{T+2*r}:{T+2*r+1}], v{VP} offset0:{base//256 + 2*r*stride} offset1:{base//256 + (2*r+1)*stride}")
        A("s_waitcnt lgkmcnt(0)")
    A("s_mul_i32 s8, s5, 205\ns_lshr_b32 s8, s8, 11\ns_mul_i32 s9, s8, 10\ns_sub_u32 s62, s5, s9\ns_mul_i32 s63, s4, 3\ns_add_u32 s63, s63, s8")
    A("s_lshl_b32 s8, s63, 2\ns_add_u32 s8, s8, s3\ns_lshl_b32 s9, s62, 7")
    A("s_mul_i32 s10, s8, 81920\ns_add_u32 s10, s10, s9\ns_add_u32 s11, s10, 5120\ns_mul_i32 s12, s8, 20480\ns_add_u32 s12, s12, s9")
    A(f"s_lshl_b32 s13, s63, 12\ns_lshl_b32 s14, s3, 6\ns_add_u32 s13, s13, s14\ns_add_u32 s13, s13, {WS_F}")
    A(f"s_mul_i32 s14, s8, 43691\ns_lshr_b32 s14, s14, 17\ns_mul_i32 s15, s14, 3\ns_sub_u32 s15, s8, s15\ns_mul_i32 s14, s14, 6144\ns_lshl_b32 s15, s15, 8\ns_add_u32 s14, s14, s15\ns_add_u32 s14, s14, {WS_O}")
    A(f"s_mul_i32 s52, s62, 24\ns_add_u32 s52, s52, s63\ns_lshl_b32 s52, s52, 8\ns_add_u32 s52, s52, {WS_Y}")
    A(f"s_lshl_b32 s54, s6, 9\ns_add_u32 s54, s54, {WS_ML}\ns_lshl_b32 s53, s7, 2")
    VWO, VWD, VF, VML = 8, 9, 10, 12
    A(f"v_mul_u32_u24 v{VWO}, 10240, v{VR}\nv_add_u32 v{VWO}, v{VWO}, v{VC}\nv_mul_u32_u24 v{VWD}, 2560, v{VR}\nv_add_u32 v{VWD}, v{VWD}, v{VC}")
    A(f"v_lshlrev_b32 v{VF}, 3, v{VR}\nv_lshl_add_u32 v{VF}, v{VC}, 5, v{VF}")
    A(f"v_and_b32 v{VML}, 31, v0\nv_lshlrev_b32 v{VML}, 4, v{VML}")
    ML, FG, WD, WO, YA = 14, 16, 20, RING, ACC
    woload = lambda g: A(f"buffer_load_dwordx4 v[{WO+4*g}:{WO+4*g+3}], v{VWO}, s[36:39], {'s10' if g < 4 else 's11'} offen offset:{(g%4)*1280} {wpol}")
    A("s_waitcnt vmcnt(0) lgkmcnt(0)\ns_cmp_ge_u32 s5, 30\ns_cbranch_scc1 L_bm")
    def wdload(w):
        for g in range(2): A(f"buffer_load_dwordx4 v[{WD+4*g}:{WD+4*g+3}], v{VWD}, s[40:43], s12 offen offset:{g*1280} {wpol}" + ("\ns_waitcnt vmcnt(0)" if w else ""))
    if wdt == 0: wdload(1)
    for g in range(8 - NL): woload(g); A("s_waitcnt vmcnt(0)")
    def service(ph, stop):
        L = f"L_s{ph}"
        A(f"s_mul_i32 s8, s4, {CX}\ns_add_u32 s8, s8, {WS_C}\nv_mov_b32 v{T}, 0\nv_and_b32 v{T+3}, 31, v0\nv_lshlrev_b32 v{T+3}, 2, v{T+3}\nv_and_b32 v{T+10}, 3, v0\nv_lshlrev_b32 v{T+10}, 2, v{T+10}")
        A(f"s_cmp_eq_u32 s3, 3\ns_cbranch_scc0 {L}x\ns_lshl_b32 s9, s5, 2\ns_add_u32 s9, s9, s8")
        if ph == 1: A(f"s_mov_b32 s85, 0\ns_lshl_b32 s86, s7, 6\ns_add_u32 s86, s86, s54\nv_lshlrev_b32 v{T+8}, 1, v{T+10}\nv_lshlrev_b32 v{T+11}, 2, v{T+10}\nv_mov_b32 v{T+13}, s87\nv_mov_b32 v{T+15}, s87")
        A(f"{L}c:\nds_read_b32 v{T+1}, v{T+10} offset:{L_PROG}")
        if ph == 1: A(f"ds_read_b64 v[{T+6}:{T+7}], v{T+8} offset:{L_ML}")
        A(f"s_waitcnt lgkmcnt(0)\nv_add_u32_dpp v{T+2}, v{T+1}, v{T+1} quad_perm:[1,0,3,2] {DPPM}\nv_add_u32_dpp v{T+2}, v{T+2}, v{T+2} quad_perm:[2,3,0,1] {DPPM}")
        A(f"v_xor_b32 v{T+5}, s87, v{T+2}\ns_mov_b64 exec, 1\nbuffer_store_dword v{T+5}, v{T}, s[24:27], s9 offen\ns_mov_b64 exec, -1")
        A(f"v_readfirstlane_b32 s61, v{T+2}")
        if ph == 1:
            A(f"s_cmp_eq_u32 s85, 1\ns_cbranch_scc1 {L}m\nv_max_u32 v{T+9}, v{T+6}, v{T+7}\nv_cmp_eq_u32 vcc, -1, v{T+9}\ns_cbranch_vccnz {L}n")
            A(f"v_mov_b32 v{T+12}, v{T+6}\nv_mov_b32 v{T+14}, v{T+7}\ns_mov_b64 exec, 15\nbuffer_store_dwordx4 v[{T+12}:{T+15}], v{T+11}, s[24:27], s86 offen sc1\ns_mov_b64 exec, -1\ns_mov_b32 s85, 1\n{L}m:")
        A(f"s_cmp_ge_u32 s61, {4*stop}\ns_cbranch_scc1 {L}d\n{L}n:")
        if cw: A("s_waitcnt vmcnt(0)")
        A(f"buffer_load_dword v{T+4}, v{T+3}, s[24:27], s8 offen {cld}\ns_waitcnt vmcnt(0)\nv_xor_b32 v{T+4}, s87, v{T+4}\nv_cmp_gt_u32 vcc, 0x400, v{T+4}\nv_cndmask_b32 v{T+4}, 0, v{T+4}, vcc\nv_max_i32 v{T+4}, {4*CS}, v{T+4}")
        if fr: A(f"ds_read_b32 v{T+1}, v{T+10} offset:{L_PROG}")
        red8(A, "v_add_u32", [T + 4]); redhi(A, "v_add_u32", T + 4, T + 5, (8, 16))
        if fr: A("s_waitcnt lgkmcnt(0)")
        A(f"v_lshlrev_b32 v{T+1}, 7, v{T+1}\nv_sub_u32 v{T+4}, v{T+4}, v{T+1}")
        if ctl:
            A(f"v_cmp_lt_i32 vcc, {16*(TH+TB)}, v{T+4}\nv_cndmask_b32 v{T+2}, 1, 2, vcc\nv_cmp_gt_i32 vcc, {16*(TB-TH)}, v{T+4}\nv_cndmask_b32 v{T+2}, v{T+2}, 0, vcc")
            A(f"s_mov_b64 exec, 15\nds_write_b32 v{T+10}, v{T+2} offset:{L_MODE}\ns_mov_b64 exec, -1")
        A(f"s_branch {L}c\n{L}x:")
        A(f"{L}d:")
    A("L_bm:")
    service(1, 192 - TM - 12)
    A("s_barrier ; BM")
    fload = f"buffer_load_dwordx2 v[{FG}:{FG+1}], v{VF}, s[24:27], s13 offen sc1\nbuffer_load_dwordx2 v[{FG+2}:{FG+3}], v{VF}, s[24:27], s13 offen offset:256 sc1"
    A("s_cmp_ge_u32 s5, 30\ns_cbranch_scc1 L_ml")
    A(f"v_and_b32 v{T}, 1, v{VR}\nv_lshlrev_b32 v{T}, 4, v{T}\nv_lshrrev_b32 v{T}, v{T}, s87\nv_bfe_u32 v{T+1}, v{T}, 8, 8\nv_and_b32 v{T}, 0xff, v{T}")
    A(f"s_mov_b32 s61, {SPIN}\nL_fchk:\n{fload}\ns_sub_u32 s61, s61, 1\ns_waitcnt vmcnt(0)\ns_cbranch_scc1 L_fok")
    untag([FG, FG + 1, FG + 2, FG + 3], [f"v{T}", f"v{T+1}"] * 2)
    A("s_cbranch_vccnz L_fchk\nL_fok:")
    red8(A, "v_add_f32", [FG, FG + 1, FG + 2, FG + 3])
    for r in range(4): rb(FG + r)
    for r in range(2):
        g_, t = FG + r, T + r
        A(f"v_mul_f32 v{t}, v{g_}, v{g_}\nv_mul_f32 v{t}, 0x3d372713, v{t}\nv_fma_f32 v{t}, v{t}, v{g_}, v{g_}\nv_mul_f32 v{t}, 0xc0135761, v{t}")
        A(f"v_exp_f32 v{t}, v{t}\nv_add_f32 v{t}, 1.0, v{t}\nv_rcp_f32 v{t}, v{t}\nv_mul_f32 v{t}, v{t}, v{g_}"); rb(t)
        A(f"v_mul_f32 v{t}, v{t}, v{FG+2+r}\nv_cvt_pk_bf16_f32 v{t}, v{t}, v{t}")
        abuild(A, AB + 4 * r, t)
    if wdt == 1: wdload(1)
    if wdt < 2:
        for g in range(2): mfma(A, YA, AB + 4 * g, WD + 4 * g, first=(g == 0))
    A(f"L_ml:\ns_cmp_lg_u32 s3, 0\ns_cbranch_scc1 L_noml\ns_mov_b32 s61, {SPIN}")
    A(f"L_mchk:\nbuffer_load_dwordx4 v[{G}:{G+3}], v{VML}, s[24:27], s54 offen sc1\ns_sub_u32 s61, s61, 1\ns_waitcnt vmcnt(0)\ns_cbranch_scc1 L_mok")
    A(f"v_xor_b32 v{G+1}, s87, v{G+1}\nv_xor_b32 v{G+3}, s87, v{G+3}\nv_or_b32 v{G+1}, v{G+1}, v{G+3}\nv_cmp_ne_u32 vcc, 0, v{G+1}\ns_cbranch_vccnz L_mchk\nL_mok:")
    A(f"v_mov_b32 v{ML}, v{G}\nv_mov_b32 v{ML+1}, v{G+2}")
    A(f"v_mov_b32 v{T}, v{ML}")
    red8(A, "v_max_f32", [T]); redhi(A, "v_max_f32", T, T + 1, (8, 16))
    A(f"v_sub_f32 v{T}, v{ML}, v{T}\nv_exp_f32 v{T}, v{T}\nv_mul_f32 v{T+2}, v{T}, v{ML+1}")
    red8(A, "v_add_f32", [T + 2]); redhi(A, "v_add_f32", T + 2, T + 1, (8, 16))
    A(f"v_rcp_f32 v{T+2}, v{T+2}\nv_mul_f32 v{T}, v{T}, v{T+2}")
    A(f"v_subrev_u32 v{T+1}, s53, v0\nv_cmp_gt_u32 vcc, 4, v{T+1}\nv_lshlrev_b32 v{T+1}, 2, v{T+1}\n;padoff\ns_and_saveexec_b64 s[8:9], vcc\nds_write_b32 v{T+1}, v{T} offset:{L_FS}\ns_mov_b64 exec, -1\n;padon\ns_waitcnt lgkmcnt(0)\nL_noml:")
    service(2, 192 - CE)
    A(f"v_and_b32 v13, 3, v0\nv_lshlrev_b32 v13, 3, v13\nv_lshrrev_b32 v13, v13, s87")
    A("s_barrier ; B15")
    stamp(4)
    A("s_cmp_ge_u32 s5, 30\ns_cbranch_scc1 L_nowo")
    if not pace:
        if wdt == 2: wdload(0)
        for g in range(8 - NL, 8): woload(g)
        A("L_nowo:")
    else:
        late = [lambda g=g: A(f"buffer_load_dwordx4 v[{WD+4*g}:{WD+4*g+3}], v{VWD}, s[40:43], s12 offen offset:{g*1280} {wpol}") for g in range(2) if wdt == 2] + [lambda g=g: woload(g) for g in range(8 - NL, 8)]
        p0, p1, p2 = [int(c) for c in str(pace)[-3:]]
        for f in late[:p0]: f()
        A("s_barrier ; BPa")
        for f in late[p0:p0+p1]: f()
        A("s_barrier ; BPb")
        for f in late[p0+p1:p0+p1+p2]: f()
        A("s_barrier ; B2")
        for f in late[p0+p1+p2:]: f()
        A("s_branch L_b2\nL_nowo:\ns_barrier ; BPa\ns_barrier ; BPb")
    A("s_barrier ; B2\nL_b2:")
    stamp(5)
    A("s_cmp_ge_u32 s5, 30\ns_cbranch_scc1 L_spare_b")
    gather("L_o", "s14", G, 1, alt=(WS_OB - WS_O) if fast else 0)
    stamp(6)
    if wdt == 2:
        for g in range(2): mfma(A, YA, AB + 4 * g, WD + 4 * g, first=(g == 0))
    red8(A, "v_add_f32", [G + r for r in range(8)])
    for r in range(8): A(f"v_cvt_pk_bf16_f32 v{G+r}, v{G+r}, v{G+r}")
    abuild(A, AB, G)
    for g in range(8):
        if g < 7: abuild(A, AB + 4 * ((g + 1) & 1), G + g + 1)
        mfma(A, YA, AB + 4 * (g & 1), WO + 4 * g)
    A("s_mov_b32 exec_lo, 0x00ff00ff\ns_mov_b32 exec_hi, 0xff00ff00")
    A(f"ds_write_b128 v{VY}, v[{YA}:{YA+3}] offset:{L_Y}\ns_mov_b64 exec, -1\ns_waitcnt lgkmcnt(0)\ns_barrier ; B3")
    A("s_cmp_lg_u32 s3, 0\ns_cbranch_scc1 L_end")
    for r in range(4): A(f"ds_read2st64_b32 v[{T+2*r}:{T+2*r+1}], v{VP} offset0:{L_Y//256 + 2*r} offset1:{L_Y//256 + 2*r + 1}")
    for r in range(1, 4): A(f"s_waitcnt lgkmcnt({3-r})\nv_pk_add_f32 v[{T}:{T+1}], v[{T}:{T+1}], v[{T+2*r}:{T+2*r+1}]")
    A(f"v_add_f32 v{T}, v{T}, v{T+1}\nv_bfi_b32 v{T}, s92, v13, v{T}")
    A(f"buffer_store_dword v{T}, v{VP}, s[24:27], s52 offen sc1")
    def putstamps():
        if stamps and stamps != 4: putst(RING)
    putstamps()
    A("s_endpgm")
    if r4:
        A("L_spare_b:\ns_sub_u32 s8, s2, 240")
        A(f"s_cmp_ge_u32 s8, 10\ns_cbranch_scc1 {'L_st' if stamps else 'L_end'}")
        A(f"s_mul_i32 s9, s8, 6144\ns_lshl_b32 s10, s3, 6\ns_add_u32 s9, s9, s10\ns_add_u32 s9, s9, {WS_Y}\ns_lshl_b32 s11, s8, 7\ns_lshl_b32 s10, s3, 5\ns_add_u32 s11, s11, s10\ns_add_u32 s10, s9, 3072")
        A(f"v_and_b32 v2, 15, v0\nv_lshrrev_b32 v1, 4, v0\nv_lshlrev_b32 v1, 8, v1\nv_lshl_add_u32 v1, v2, 2, v1\nv_lshlrev_b32 v2, 1, v2\nv_and_b32 v13, 0xff, v13")
        A(f"buffer_load_ushort v{ML}, v2, s[20:23], s11 offen")
        def yround(k):
            for e in range(6): A(f"buffer_load_dword v{RING+8*(k+1)+e}, v1, s[24:27], {'s9' if e < 3 else 's10'} offen offset:{(e%3)*1024} {yld}")
        A(f"s_mov_b32 s61, {SPIN}\ns_waitcnt vmcnt(0)\nv_lshlrev_b32 v{ML}, 16, v{ML}")
        for k in range(yp - 1): yround(k)
        A("L_ychk:")
        for k in range(yp):
            yround((k + yp - 1) % yp); Y = RING + 8 * (k + 1)
            A(f"s_waitcnt vmcnt({6*(yp-1)})")
            untag([Y + e for e in range(6)], ["v13"] * 6, t=T)
            A(f"v_pk_add_f32 v[{RING}:{RING+1}], v[{Y}:{Y+1}], v[{Y+2}:{Y+3}]\nv_pk_add_f32 v[{RING}:{RING+1}], v[{RING}:{RING+1}], v[{Y+4}:{Y+5}]")
            A("s_cbranch_vccz L_yok")
        A("s_sub_u32 s61, s61, 1\ns_cbranch_scc0 L_ychk\nL_yok:")
        stamp(6)
        A(f"v_add_f32 v{RING}, v{RING}, v{RING+1}")
        redhi(A, "v_add_f32", RING, RING + 1, (16, 32))
        A(f"v_add_f32 v{RING}, v{RING}, v{ML}\nv_cvt_pk_bf16_f32 v{RING}, v{RING}, v{RING}\ns_mov_b64 exec, 0xffff")
        A(f"buffer_store_short v{RING}, v2, s[48:51], s11 offen {opol}")
    else:
        A(f"L_spare_b:\ns_cmp_lt_u32 s3, {4-yw}\ns_cbranch_scc1 L_end\ns_sub_u32 s8, s2, 240")
        A(f"s_cmp_ge_u32 s8, 10\ns_cbranch_scc1 {'L_st' if stamps else 'L_end'}")
        A(f"s_mul_i32 s9, s8, 6144\ns_add_u32 s9, s9, {WS_Y}\ns_add_u32 s10, s9, 3072\ns_lshl_b32 s11, s8, 7")
        A(f"v_lshlrev_b32 v1, 4, v0\nv_and_b32 v2, 15, v0\nv_lshlrev_b32 v2, 3, v2\nv_lshrrev_b32 v3, 4, v0\nv_lshl_add_u32 v2, v3, 1, v2")
        A(f"buffer_load_ushort v{ML}, v2, s[20:23], s11 offen")
        for e in range(gate):
            A(f"s_lshl_b32 s12, s4, 2\ns_add_u32 s12, s12, {3-e}\ns_mul_i32 s12, s12, 6144\ns_add_u32 s12, s12, {WS_O + 512}")
            gather(f"L_g{e}", "s12", G, 1, alt=(WS_OB - WS_O) if fast else 0)
        def yround(k):
            for e in range(6): A(f"buffer_load_dwordx4 v[{RING+24*(k+1)+4*e}:{RING+24*(k+1)+4*e+3}], v1, s[24:27], {'s9' if e < 3 else 's10'} offen offset:{(e%3)*1024} {yld}")
        A(f"s_mov_b32 s61, {SPIN}")
        for k in range(yp - 1): yround(k)
        A("L_ychk:")
        for k in range(yp):
            yround((k + yp - 1) % yp); Y = RING + 24 * (k + 1)
            A(f"s_waitcnt vmcnt({6*(yp-1)})")
            untag([Y + e for e in range(24)], t=T)
            for e in (0, 2, 4):
                for r in range(0, 4, 2): A(f"v_pk_add_f32 v[{RING+4*e+r}:{RING+4*e+r+1}], v[{Y+4*e+r}:{Y+4*e+r+1}], v[{Y+4*e+4+r}:{Y+4*e+4+r+1}]")
            A("s_cbranch_vccz L_yok")
        A("s_sub_u32 s61, s61, 1\ns_cbranch_scc0 L_ychk\nL_yok:")
        stamp(6)
        for e in (2, 4):
            for r in (0, 2): A(f"v_pk_add_f32 v[{RING+r}:{RING+r+1}], v[{RING+r}:{RING+r+1}], v[{RING+4*e+r}:{RING+4*e+r+1}]")
        A(f"v_lshlrev_b32 v{ML}, 16, v{ML}\nv_permlane16_swap_b32 v{RING}, v{RING+1}\nv_permlane16_swap_b32 v{RING+2}, v{RING+3}")
        A(f"v_add_f32 v{RING}, v{RING}, v{RING+1}\nv_add_f32 v{RING+2}, v{RING+2}, v{RING+3}\nv_permlane32_swap_b32 v{RING}, v{RING+2}")
        A(f"v_add_f32 v{RING}, v{RING}, v{ML}\nv_add_f32 v{RING}, v{RING}, v{RING+2}\nv_cvt_pk_bf16_f32 v{RING}, v{RING}, v{RING}")
        A(f"buffer_store_short v{RING}, v2, s[48:51], s11 offen {opol}")
    A(f"; every workgroup has read the old tag long ago (this result depends on all of them): leave the new one\ns_lshl_b32 s8, s2, 2\ns_add_u32 s8, s8, s3\ns_cmp_lg_u32 s8, 963\ns_cbranch_scc1 L_fin\nv_mov_b32 v2, {WS_E}\nv_mov_b32 v3, s87\ns_mov_b64 exec, 1\nbuffer_store_dword v3, v2, s[24:27], 0 offen\nL_fin:")
    if stamps:
        A("s_mov_b64 exec, -1\ns_waitcnt vmcnt(0)\ns_branch L_st2\nL_st:"); stamp(6); A("L_st2:"); putstamps()
    A("s_endpgm")
    if al: A(f".p2align {al}")
    A(";padoff\nL_stream:\n; ---- stream waves 0..3: 256 keys each, K pass then V pass")
    A("s_mov_b32 s30, 100663296\ns_mov_b32 s31, 0x20000\ns_mov_b32 s34, 100663296\ns_mov_b32 s35, 0x20000")
    sw, ss, sc = {0: (98304, 393216, IC*3072), 1: (IC*3072, 393216, 4*IC*3072), 2: (IC*3072, 4*IC*3072, 32*IC*3072), 3: (786432, IC*3072, 8*IC*3072)}[il]
    goff = lambda g: (g // IC) * sc + (g % IC) * 3072
    A(f"s_mul_i32 s52, s6, 3145728\ns_lshl_b32 s8, s7, 2\ns_add_u32 s8, s8, s3\ns_mul_i32 s9, s7, {ss}\ns_add_u32 s52, s52, s9\ns_mul_i32 s9, s3, {sw}\ns_add_u32 s52, s52, s9")
    A("v_lshrrev_b32 v1, 3, v0\nv_mul_u32_u24 v1, 384, v1\nv_and_b32 v2, 7, v0\nv_lshl_add_u32 v1, v2, 4, v1")
    Q, ACC, AB, S, M, LS, T0, RING = 8, 20, 32, 40, 72, 73, 74, 76
    assert RING + 4 * RR <= 256
    vm = VM(A); N = 192
    st = dict(issued=0, consumed=0, ctl=0)
    slot = lambda i: RING + 4 * (i % RR)
    def nextoff(g):
        if rho: A(f"s_add_u32 s53, s59, {32*g}\ns_and_b32 s53, s53, 1023\ns_mul_i32 s53, s53, 3072\ns_add_u32 s53, s53, s60")
        else: A(f"s_add_u32 s53, s52, {goff(g)}")
    if rho: A(f"s_mul_i32 s59, s6, {rho}\ns_add_u32 s59, s59, s8\ns_mul_i32 s60, s6, 3145728")
    nextoff(0)
    def issue_to(n):
        if burst: n = n // 3 * 3
        n = min(n, N)
        while st["issued"] < n:
            i = st["issued"]
            assert i - RR < st["consumed"], (i, st)
            g, j = (i % 96) // 3, i % 3
            bs = 3 if burst else 1
            if st["ctl"] and (j == 0 or not burst):
                hb, hm, hs = [int(c, 36) for c in (WK if i < NK else WV)]
                hw = lambda h: (h + (i & 1)) // 2 - bs
                if hw(hb) < RB - bs: A(f"s_waitcnt vmcnt({hw(hb)})")
                A(f"s_cmp_eq_u32 s58, 2\ns_cbranch_scc1 L_i{i}\ns_waitcnt vmcnt({hw(hm)})\ns_cbranch_vccz L_i{i}\ns_waitcnt vmcnt({hw(hs)})\nL_i{i}:")
            vm.op(f"buffer_load_dwordx4 v[{slot(i)}:{slot(i)+3}], v1, s[{28 if i < 96 else 32}:{31 if i < 96 else 35}], s53 offen offset:{j*128} {kvpol}", i)
            st["issued"] += 1
            if j == 2: nextoff((g + 1) % 32)
            if st["issued"] == N:
                A(f"s_barrier ; B15: last V load issued\nv_mov_b32 v0, 0\nds_read_b128 v[{Q}:{Q+3}], v0 offset:{L_FS}")
                A(f"v_mbcnt_lo_u32_b32 v2, -1, 0\nv_mbcnt_hi_u32_b32 v2, -1, v2\ns_add_u32 s87, s87, 0x07050301\ns_movk_i32 s92, 0xff\nv_and_b32 v72, 3, v2\nv_lshlrev_b32 v72, 3, v72\nv_lshrrev_b32 v72, v72, s87\nv_lshlrev_b32 v2, 2, v2\nv_lshl_add_u32 v2, s3, 8, v2")
                A(f"s_lshl_b32 s15, s6, 3\ns_add_u32 s15, s15, s7\ns_mul_i32 s15, s15, 768\ns_add_u32 s15, s15, {WS_O}")
    A("s_waitcnt lgkmcnt(0)")
    if prio: A(f"s_setprio {prio}")
    issue_to(R00)
    if BA: A("s_barrier")
    issue_to(R0)
    eload()
    masks(A)
    for g in range(32): A(f"v_mov_b32 v{S+g}, 0")
    A(f"v_mov_b32 v{M}, 0xff800000")
    A("s_mov_b32 s56, 0x3d93cd3a\ns_mov_b32 s57, 0x3fb8aa3b")
    A(f"v_and_b32 v2, 7, v0\nv_lshlrev_b32 v2, 4, v2")
    A(f"v_lshrrev_b32 v3, 5, v0\nv_lshl_add_u32 v3, s3, 1, v3\nv_mul_u32_u24 v3, 768, v3\nv_lshl_add_u32 v3, v2, 1, v3\nv_and_b32 v{T0}, 16, v0\nv_add_u32 v3, v3, v{T0}")
    win = lambda i: R0 if i < N0 else (RB if st['ctl'] else (R2 if i >= N - T2 else R))
    def step(i):
        vm.wait(i); issue_to(i + 1 + win(i))
        if pace and i in (N - 5, N - 3): A("s_barrier ; BP")
        if i == N - TM:
            A("s_barrier ; BM")
        if i == CS: st["ctl"] = 1; A(f"s_mov_b32 s58, 1\ns_mov_b64 vcc, 0\ns_lshl_b32 s54, s3, 2\nv_mov_b32 v0, s54")
        if st["ctl"] and st["issued"] < N:
            if i % PS == 0: A(f"v_mov_b32 v2, {i}\nds_read_b32 v75, v0 offset:{L_MODE}\nds_write_b32 v0, v2 offset:{L_PROG}")
            if i % PS == 1 and i > CS + 1: A(f"s_waitcnt lgkmcnt(0)\nv_readfirstlane_b32 s58, v75\nv_cmp_eq_u32 vcc, 0, v75")
        if stamps == 4 and i in (0, 16, NB - 1, 95, 143): stamp({0: 1, 16: 2, NB - 1: 3, 95: 5, 143: 6}[i])
    def kgroups(gs):
        for e in range(12):
            for g in gs: A(f"v_dot2c_f32_bf16 v{S+g}, v{slot(3*g + e//4) + e%4}, v{Q+e}")
        st["consumed"] = 3 * gs[-1] + 3
        red8(A, "v_add_f32", [S + g for g in gs])
        if mimic:
            for g in gs: A(f"v_cvt_pk_bf16_f32 v{S+g}, v{S+g}, v{S+g}")
            for g in gs: A(f"v_and_b32 v{S+g}, s55, v{S+g}")
        for g in gs: A(f"v_mul_f32 v{S+g}, s56, v{S+g}")
        if mimic:
            for g in gs: A(f"v_cvt_pk_bf16_f32 v{S+g}, v{S+g}, v{S+g}")
            for g in gs: A(f"v_and_b32 v{S+g}, s55, v{S+g}")
        for g in gs: A(f"v_max_f32 v{M}, v{M}, v{S+g}")
    i = 0
    while i < NB:
        step(i); i += 1
        if B02 and i == B02: A("s_barrier ; B02")
    A("s_barrier ; B1: q ready")
    if stamps == 4: stamp(4)
    for j in range(3): A(f"ds_read_b128 v[{Q+4*j}:{Q+4*j+3}], v2 offset:{L_Q + 128*j}")
    A("s_waitcnt lgkmcnt(0)")
    gk = 0
    while gk < 32:
        avail = min(i, 96) // 3 - gk
        if avail > 0:
            n = min(avail, CU); kgroups(list(range(gk, gk + n))); gk += n
        if gk < 32 : step(i); i += 1
    redhi(A, "v_max_f32", M, T0)
    A(f"v_mul_f32 v{M}, s57, v{M}")
    for q4 in range(SP):
        step(i); i += 1
        gs = range(32 * q4 // SP, 32 * (q4 + 1) // SP)
        for g in gs: A(f"v_fma_f32 v{S+g}, v{S+g}, s57, -v{M}")
        for g in gs: A(f"v_exp_f32 v{S+g}, v{S+g}")
        for g in gs:
            if g == 1: A(f"v_add_f32 v{LS}, v{S}, v{S+1}")
            elif g > 1: A(f"v_add_f32 v{LS}, v{LS}, v{S+g}")
    step(i); i += 1
    redhi(A, "v_add_f32", LS, T0)
    A(f"v_min_u32 v{M}, -2, v{M}\nv_min_u32 v{LS}, -2, v{LS}")
    A(f"s_lshl_b32 s54, s3, 3\nv_mov_b32 v{T0}, s54\nds_write_b64 v{T0}, v[{M}:{LS}] offset:{L_ML}")
    def pbuild(a, r): A(f"v_cvt_pk_bf16_f32 v{r}, v{r}, v{r}"); abuild(A, a, r)
    c = 96
    pbuild(AB, S)
    while c < N:
        while c < i:
            g, j = (c - 96) // 3, c % 3
            mfma(A, ACC + 4 * j, AB + 4 * (g & 1), slot(c), first=(g == 0))
            c += 1; st["consumed"] = c
            if j == 0 and g < 31: pbuild(AB + 4 * ((g + 1) & 1), S + g + 1)
        if i < N: step(i); i += 1
    A("s_mov_b32 exec_lo, 0x00ff00ff\ns_mov_b32 exec_hi, 0xff00ff00")
    for j in range(3): A(f"ds_write_b128 v3, v[{ACC+4*j}:{ACC+4*j+3}] offset:{L_P + 256*j}")
    A("s_waitcnt lgkmcnt(0)")
    if stamps == 4:
        A("s_mov_b64 exec, -1\ns_cmp_lg_u32 s3, 0\ns_cbranch_scc1 L_nost"); putst(RING); A("L_nost:")
    A("s_mov_b64 exec, -1\ns_cmp_eq_u32 s3, 3\ns_barrier ; B2\ns_cbranch_scc1 L_end")
    U = Q + 4
    for r in range(4): A(f"ds_read2st64_b32 v[{U+2*r}:{U+2*r+1}], v2 offset0:{L_P//256 + 6*r} offset1:{L_P//256 + 6*r + 3}")
    for r in range(4): A(f"s_waitcnt lgkmcnt({3-r})\nv_add_f32 v{U+2*r}, v{U+2*r}, v{U+2*r+1}\n" + (f"v_mul_f32 v{U}, v{Q}, v{U}" if r == 0 else f"v_fmac_f32 v{U}, v{Q+r}, v{U+2*r}"))
    A(f"v_bfi_b32 v{U}, s92, v72, v{U}")
    if fast: A(f"buffer_store_dword v{U}, v2, s[24:27], s15 offen\ns_add_u32 s15, s15, {WS_OB - WS_O}")
    A(f"buffer_store_dword v{U}, v2, s[24:27], s15 offen sc1")
    A(f"s_cmp_ge_u32 s5, 30\ns_cbranch_scc1 L_end\ns_barrier ; B3")

    A(";padoff\nL_end:\ns_endpgm")
    if "e" in lst or "r" in lst:
        A(""".globl empty_kernel
.p2align 8
.type empty_kernel,@function
empty_kernel:
""" + (reporter(ri, rm, rk) if "r" in lst else "") + """
s_endpgm
.section .rodata,"a"
.p2align 6
.amdhsa_kernel empty_kernel
.amdhsa_next_free_vgpr 32
.amdhsa_next_free_sgpr 32
.amdhsa_accum_offset 32
.amdhsa_group_segment_fixed_size 0
.amdhsa_kernarg_size 96
.amdhsa_user_sgpr_count 2
.amdhsa_user_sgpr_kernarg_segment_ptr 1
.amdhsa_system_sgpr_workgroup_id_x 1
.end_amdhsa_kernel""")
    A(f""".section .rodata,"a"
.p2align 6
.amdhsa_kernel {NAME}_kernel
.amdhsa_next_free_vgpr 256
.amdhsa_next_free_sgpr 96
.amdhsa_accum_offset 256
.amdhsa_group_segment_fixed_size 0
.amdhsa_kernarg_size 96
.amdhsa_user_sgpr_count 2
.amdhsa_user_sgpr_kernarg_segment_ptr 1
.amdhsa_system_sgpr_workgroup_id_x 1
.amdhsa_float_denorm_mode_32 3
.end_amdhsa_kernel""")
    txt = A.finish()
    return HDR + (A.pads(txt, hop, 16) if hop else txt)
if __name__ == "__main__":
    for spec in sys.argv[1:]:
        kw = {}; out = None
        for p in spec.split(","):
            k, v = p.split("=")
            if k == "out": out = v; continue
            kw[k] = int(v) if v.lstrip("-").isdigit() else v.replace("+", " ").replace("none", "")
        fn = out or ("k_" + spec.replace(",", "_").replace("=", "").replace("+", "") + ".s")
        open(fn, "w").write(gen(**kw))
        print(fn)
```

```python
import sys
from asmlib import Asm
NAME = "parallel_sum__gqa_block_cached__glu_gated_geglu__decode"
HDR = open("cdna_kernels/" + NAME + ".s.ref").read().split("; Override launch")[0]
WS_ML, WS_O, WS_F, WS_Y, WS_OB, WS_Q = 0, 8192, 204800, 303104, 393216, 589824
WS_USED = 786432
L_P, L_Q, L_Y = 0, 6144, 6656
L_PROG, L_MODE, L_ML, L_FS = 8704, 8720, 8736, 8768
WS_C = 364544
LDS_BYTES = 8784
WS_G = WS_C + 256
DPPM = "row_mask:0xf bank_mask:0xf"
SPIN = 1 << 22
def srd(A, r, off, size):
    A(f"s_load_dwordx2 s[{r}:{r+1}], s[0:1], {off}")
    A(f"s_mov_b32 s{r+2}, {size}\ns_mov_b32 s{r+3}, 0x20000")
def red8(A, op, rs):
    for mod in ("quad_perm:[1,0,3,2]", "quad_perm:[2,3,0,1]", "row_half_mirror"):
        for r in rs: A(f"{op}_dpp v{r}, v{r}, v{r} {mod} {DPPM}")
def redhi(A, op, r, t, steps=(8, 16, 32)):
    if 8 in steps: A(f"{op}_dpp v{r}, v{r}, v{r} row_ror:8 {DPPM}")
    if 16 in steps: A(f"v_mov_b32 v{t}, v{r}\nv_permlane16_swap_b32 v{r}, v{t}\n{op} v{r}, v{r}, v{t}")
    if 32 in steps: A(f"v_mov_b32 v{t}, v{r}\nv_permlane32_swap_b32 v{r}, v{t}\n{op} v{r}, v{r}, v{t}")
def masks(A):
    A("v_and_b32 v2, 1, v0\nv_lshlrev_b32 v2, 4, v2\nv_mov_b32 v3, 0xffff\nv_lshlrev_b32 v3, v2, v3\nv_bfe_u32 v2, v0, 1, 2")
    for w in range(4): A(f"v_cmp_eq_u32 vcc, {w}, v2\nv_cndmask_b32 v{4+w}, 0, v3, vcc")
def abuild(A, a, pk):
    for w in range(4): A(f"v_and_b32 v{a+w}, v{4+w}, v{pk}")
def mfma(A, d, a, b, first=False):
    c = "0" if first else f"v[{d}:{d+3}]"
    A(f"v_mfma_f32_16x16x32_bf16 v[{d}:{d+3}], v[{a}:{a+3}], v[{b}:{b+3}], {c}")
class VM:
    def __init__(s, A): s.A = A; s.n = 0; s.at = {}
    def op(s, text, key=None): s.A(text); s.at[key] = s.n; s.n += 1
    def wait(s, key): s.A(f"s_waitcnt vmcnt({s.n - 1 - s.at[key]})")

def reporter(ri, rm, rk):
    A = Asm()
    A("s_cmp_ge_u32 s2, 1\ns_cbranch_scc1 L_rend")
    srd(A, 8, 88, 402653184)
    A(f"v_lshlrev_b32 v1, 6, v0\ns_mov_b32 s12, {64<<20}\ns_waitcnt lgkmcnt(0)")
    for e in range(4):
        A(f"buffer_load_dword v{4+e}, v1, s[8:11], s12 offen\nbuffer_load_dword v{8+e}, v1, s[8:11], s12 offen offset:{8*ri}\ns_add_u32 s12, s12, 4096")
    A("s_waitcnt vmcnt(0)\nv_readfirstlane_b32 s13, v4\ns_sub_u32 s13, s13, 100000")
    for e in range(8): A(f"v_subrev_u32 v{4+e}, s13, v{4+e}")
    A("v_min_u32 v4, v4, v5\nv_min3_u32 v4, v4, v6, v7")
    red8(A, "v_min_u32", [4]); redhi(A, "v_min_u32", 4, 12)
    for e in range(4): A(f"v_sub_u32 v{8+e}, v{8+e}, v4")
    op = {"max": "v_max_u32", "min": "v_min_u32", "avg": "v_add_u32"}[rm]
    A(f"{op} v8, v8, v9\n{op} v10, v10, v11\n{op} v8, v8, v10")
    red8(A, op, [8]); redhi(A, op, 8, 12)
    A("v_readfirstlane_b32 s14, v8")
    if rm == "avg": A("s_lshr_b32 s14, s14, 8")
    A(f"s_mul_i32 s14, s14, {rk}\ns_min_u32 s14, s14, 100000\ns_memrealtime s[16:17]\ns_waitcnt lgkmcnt(0)")
    A("L_rs:\ns_memrealtime s[18:19]\ns_waitcnt lgkmcnt(0)\ns_sub_u32 s18, s18, s16\ns_cmp_lt_u32 s18, s14\ns_cbranch_scc1 L_rs\nL_rend:")
    return A.finish()
def gen(R=5, R0=5, RR=45, NB=38, N0=10, R2=10, T2=16, CU=3, SP=4, stamps=0, kvpol="nt", wqpol="nt", wpol="nt", prio=0, mimic=1, B0=6, B02=16, fast=1, hop=0, al=0, FB=32, pt=0, yp=3, cpol='sc1', opol='', gate=0, qf=0, abl='', yld='sc1', yw=1, BA=10, ff=1, R00=2, RF=2, TM=72, NL=8, ctl=1, RS=5, RB=8, TH=12, TB=-16, CE=21, cst="", cw=0, il=2, IC=1, burst=0, rho=616, CS=48, xc=0, TX=0, XG=8, XE=12, GS=3328, xw=1, CX=512, cld='sc1', svc=1, WK='ea9', WV='eba', tv=0, tw=0, pace=0, NK=96, wdt=2, fr=0, PS=3,  lst="", ri=7, rm="max", rk=2):
    A = Asm()
    def stamp(i):
        if stamps: A(f"s_memrealtime s[{64+2*i}:{65+2*i}]")
    def putst(base):
        stamp(7); A("s_waitcnt lgkmcnt(0)")
        for e in range(16): A(f"v_mov_b32 v{base+e}, s{64+e}")
        A(f"s_lshl_b32 s8, s2, 6\ns_add_u32 s8, s8, {64<<20}\nv_mov_b32 v1, 0")
        for e in range(4): A(f"buffer_store_dwordx4 v[{base+4*e}:{base+4*e+3}], v1, s[24:27], s8 offen offset:{16*e}")
    if not lst: A(f"; @launch grid=(256,1,1) block=(512,1,1) lds={LDS_BYTES}")
    for c in lst:
        if c == "m": A(f"; @launch kernel={NAME}_kernel grid=(256,1,1) block=(512,1,1) lds={LDS_BYTES}")
        else: A(f"; @launch kernel=empty_kernel grid=(1,1,1) block=(64,1,1) lds=0")
    A('.amdgcn_target "amdgcn-amd-amdhsa--gfx950"\n.text')
    A(f".globl {NAME}_kernel\n.p2align 8\n.type {NAME}_kernel,@function\n{NAME}_kernel:")
    for r, off in ((20, 0), (16, 24), (24, 88), (28, 8), (44, 80), (32, 16)): A(f"s_load_dwordx2 s[{r}:{r+1}], s[0:1], {off}")
    stamp(0)
    A("v_lshrrev_b32 v1, 6, v0\nv_and_b32 v0, 63, v0\ns_cmp_ge_u32 s2, 256\nv_readfirstlane_b32 s3, v1\ns_cbranch_scc1 L_end")
    A("s_and_b32 s4, s2, 7\ns_lshr_b32 s5, s2, 3\ns_lshl_b32 s6, s4, 2\ns_and_b32 s8, s5, 3\ns_add_u32 s6, s6, s8\ns_lshr_b32 s7, s5, 2")
    A(f"s_mov_b32 s26, {WS_USED if not stamps else 402653184}\ns_mov_b32 s27, 0x20000\ns_mov_b32 s55, 0xffff0000")
    A("s_cmp_lt_u32 s3, 4\ns_cbranch_scc1 L_stream")
    A("; ---- aux waves 4..7: layernorm, q projection, FFN, output projection, hand-offs")
    A("s_mov_b32 s18, 7864320\ns_mov_b32 s19, 0x20000\ns_movk_i32 s22, 1280\ns_mov_b32 s23, s19\ns_movk_i32 s46, 256\ns_mov_b32 s47, s19")
    A("s_sub_u32 s3, s3, 4")
    XS, X0, PK, ACC, AB, T, RING = 8, 14, 26, 48, 60, 68, 96
    VQ, VY, VC, VR, VO = 1, 45, 46, 47, 44
    G = 28
    A(f"v_lshrrev_b32 v{VR}, 3, v0\nv_and_b32 v{VC}, 7, v0\nv_lshlrev_b32 v{VC}, 4, v{VC}")
    A("s_cmp_lt_u32 s3, 2\ns_cbranch_scc1 L_q0")
    A(f"s_cmp_lt_u32 s7, 2\ns_cselect_b32 s8, s3, 0\ns_cmp_eq_u32 s8, 3\ns_cbranch_scc0 L_noclear")
    A(f"v_lshlrev_b32 v{T}, 4, v0\nv_mov_b32 v{T+2}, 0\nv_mov_b32 v{T+1}, 1")
    for r in range(4): A(f"v_mov_b32 v{T+4+r}, -1")
    def clr(n):
        for e in range(n):
            A(f"buffer_store_dwordx4 v[{T+4}:{T+7}], v{T}, s[24:27], s13 offen offset:{(e%3)*1024} {cpol}")
            if e % 3 == 2 and e < n - 1: A("s_add_u32 s13, s13, 3072")
    def clrstamp():
        if not stamps: return
        A(f"s_memrealtime s[80:81]\ns_waitcnt vmcnt(0)\ns_memrealtime s[82:83]\ns_waitcnt lgkmcnt(0)")
        for e in range(4): A(f"v_mov_b32 v{T+4+e}, s{80+e}")
        A(f"s_lshl_b32 s8, s2, 4\ns_add_u32 s8, s8, {66<<20}\nbuffer_store_dwordx4 v[{T+4}:{T+7}], v{T+2}, s[24:27], s8 offen")
    A(f"s_cmp_eq_u32 s7, 1\ns_cbranch_scc1 L_clear2\ns_mul_i32 s13, s6, 6144\ns_add_u32 s13, s13, {WS_Q}\ns_lshl_b32 s14, s6, 2\ns_waitcnt lgkmcnt(0)")
    if 'u' not in abl: clr(6)
    if BA and not ff: A("s_barrier ; BA")
    if 'f' not in abl: A(f"s_waitcnt vmcnt(0)\ns_mov_b64 exec, 1\nbuffer_store_dword v{T+1}, v{T+2}, s[44:47], s14 offen sc1\ns_mov_b64 exec, -1")
    if BA and ff: A("s_barrier ; BA")
    clrstamp()
    A("s_branch L_idle\nL_q0:")
    A(f"v_mul_u32_u24 v2, 20, v0\nv_mul_u32_u24 v3, 20, v{VR}\ns_mul_i32 s10, s7, 160")
    A(f"v_mul_u32_u24 v{VQ}, 122880, v{VR}\nv_add_u32 v{VQ}, v{VQ}, v{VC}")
    A("s_mul_i32 s52, s7, 983040\ns_mul_i32 s12, s6, 384\ns_add_u32 s52, s52, s12")
    def rb(r): A(f"v_cvt_pk_bf16_f32 v{r}, v{r}, v{r}\nv_and_b32 v{r}, s55, v{r}")
    A("s_waitcnt lgkmcnt(0)")
    A(f"buffer_load_dwordx4 v[{XS}:{XS+3}], v2, s[20:23], 0 offen\nbuffer_load_dword v{XS+4}, v2, s[20:23], 0 offen offset:16")
    A(f"buffer_load_dwordx4 v[{X0}:{X0+3}], v3, s[20:23], s10 offen\nbuffer_load_dword v{X0+4}, v3, s[20:23], s10 offen offset:16")
    A("s_cmp_eq_u32 s3, 1\ns_cbranch_scc1 L_w1")
    for g in range(10):
        for j in range(3): A(f"buffer_load_dwordx4 v[{RING+12*g+4*j}:{RING+12*g+4*j+3}], v{VQ}, s[16:19], s52 offen offset:{128*j} {wqpol}")
        if g < 9: A("s_add_u32 s52, s52, 12288")
        if g == BA - 1: A("s_barrier ; BA")
    A("s_waitcnt vmcnt(30)\ns_branch L_ln\nL_w1:")
    if BA: A("s_barrier ; BA")
    A("s_waitcnt vmcnt(0)\nL_ln:\n;padon")
    stamp(1)
    for e in range(5): A(f"v_lshlrev_b32 v{T+2*e}, 16, v{XS+e}\nv_and_b32 v{T+2*e+1}, s55, v{XS+e}")
    SM, SV, TT = T + 10, T + 11, T + 12
    A(f"v_add_f32 v{SM}, v{T}, v{T+1}")
    for e in range(2, 10): A(f"v_add_f32 v{SM}, v{SM}, v{T+e}")
    red8(A, "v_add_f32", [SM]); redhi(A, "v_add_f32", SM, TT)
    A(f"v_mul_f32 v{SM}, 0x3acccccd, v{SM}")
    for e in range(10): A(f"v_sub_f32 v{T+e}, v{T+e}, v{SM}")
    A(f"v_mul_f32 v{SV}, v{T}, v{T}")
    for e in range(1, 10): A(f"v_fmac_f32 v{SV}, v{T+e}, v{T+e}")
    red8(A, "v_add_f32", [SV]); redhi(A, "v_add_f32", SV, TT)
    A(f"v_mul_f32 v{SV}, 0x3acccccd, v{SV}"); rb(SV); rb(SM)
    A(f"v_add_f32 v{SV}, 0x3727c5ac, v{SV}"); rb(SV)
    A(f"v_sqrt_f32 v{SV}, v{SV}"); rb(SV)
    A(f"v_rcp_f32 v{SV}, v{SV}")
    for e in range(5): A(f"v_lshlrev_b32 v{PK+2*e}, 16, v{X0+e}\nv_and_b32 v{PK+2*e+1}, s55, v{X0+e}")
    for e in range(10): A(f"v_sub_f32 v{PK+e}, v{PK+e}, v{SM}")
    for e in range(10): A(f"v_cvt_pk_bf16_f32 v{PK+e}, v{PK+e}, v{PK+e}")
    for e in range(10): A(f"v_and_b32 v{PK+e}, s55, v{PK+e}")
    for e in range(10): A(f"v_mul_f32 v{PK+e}, v{PK+e}, v{SV}")
    for e in range(10): A(f"v_cvt_pk_bf16_f32 v{PK+e}, v{PK+e}, v{PK+e}")
    A("s_cmp_eq_u32 s3, 1\ns_cbranch_scc1 L_idle")
    masks(A)
    def halfsum(n):
        for r in range(n): A(f"v_mov_b32 v{T+12+r}, v{ACC+r}")
        for r in range(n): A(f"v_permlane32_swap_b32 v{ACC+r}, v{T+12+r}")
        for r in range(n): A(f"v_add_f32_dpp v{T+r}, v{T+12+r}, v{ACC+r} row_ror:8 {DPPM}")
        for r in range(n): A(f"v_min_u32 v{T+r}, -2, v{T+r}")
        A(f"v_and_b32 v2, 16, v0\nv_lshl_add_u32 v2, v{VC}, 1, v2")
    abuild(A, AB, PK)
    for g in range(10):
        if g < 9: abuild(A, AB + 4 * ((g + 1) & 1), PK + g + 1)
        A(f"s_waitcnt vmcnt({27-3*g})")
        for j in range(3): mfma(A, ACC + 4 * j, AB + 4 * (g & 1), RING + 12 * g + 4 * j, first=(g == 0))
    A(f"v_mul_u32_u24 v{VO}, 48, v{VC}\nv_lshl_add_u32 v{VO}, v{VR}, 5, v{VO}")
    A(f"s_mul_i32 s13, s6, 6144\ns_add_u32 s13, s13, {WS_Q}\ns_mul_i32 s12, s7, 768\ns_add_u32 s12, s12, s13")
    halfsum(12)
    if stamps == 3: stamp(2)
    if B0: A("s_barrier ; B0")
    def flagcheck(lab, so, n):
        if ('f' in abl and n == 1) or ('a' in abl and n > 1): return
        A(f"s_load_dword s60, s[44:45], {so}\ns_waitcnt lgkmcnt(0)")
        A(f"s_cmp_ge_u32 s60, {n}\ns_cbranch_scc1 {lab}_ok\ns_mov_b32 s61, {SPIN}\nv_mov_b32 v{T+12}, 0")
        A(f"{lab}:\nbuffer_load_dword v{T+13}, v{T+12}, s[44:47], {so} offen sc1\ns_waitcnt vmcnt(0)\nv_readfirstlane_b32 s60, v{T+13}")
        A(f"s_sub_u32 s61, s61, 1\ns_cbranch_scc1 {lab}_ok\ns_cmp_lt_u32 s60, {n}\ns_cbranch_scc1 {lab}\n{lab}_ok:")
    A("s_lshl_b32 s14, s6, 2")
    flagcheck("L_flag", "s14", 1)
    if stamps != 3: stamp(2)
    def qpub(pol):
        A("s_mov_b64 exec, 0x00ff00ff")
        for j in range(3): A(f"buffer_store_dwordx4 v[{T+4*j}:{T+4*j+3}], v2, s[24:27], s12 offen offset:{256*j} {pol}")
        A("s_mov_b64 exec, -1")
    if 'p' not in abl: qpub("" if (qf or 'q' in abl) else "sc1")
    def gather(lab, so, base, nj, alt=0, after=None):
        A(f"s_mov_b32 s61, {SPIN - 1}\n{lab}chk:")
        if alt:
            A(f"s_and_b32 s8, s61, {FB-1}\ns_cselect_b32 s8, 0, {alt}\ns_add_u32 s8, s8, {so}"); so = "s8"
        for j in range(nj):
            for e in range(2): A(f"buffer_load_dwordx4 v[{base+8*j+4*e}:{base+8*j+4*e+3}], v{VO}, s[24:27], {so} offen offset:{256*j+16*e} sc1")
        A(f"s_sub_u32 s61, s61, 1\ns_waitcnt vmcnt(0)\ns_cbranch_scc1 {lab}ok")
        if after:
            A(f"s_cmp_eq_u32 s61, {SPIN - 2}\ns_cbranch_scc0 {lab}na"); after(); A(f"{lab}na:")
        rs = [base + r for r in range(8 * nj)]; t = T + 12
        while len(rs) > 1:
            if len(rs) == 2: A(f"v_max_u32 v{t}, v{rs[0]}, v{rs[1]}"); rs = [t]
            else: A(f"v_max3_u32 v{t}, v{rs[0]}, v{rs[1]}, v{rs[2]}"); rs = rs[3:] + [t]
            t += 1
        A(f"v_cmp_eq_u32 vcc, -1, v{rs[0]}\ns_cbranch_vccnz {lab}chk\n{lab}ok:")
    if B02: A("s_barrier ; B02")
    if 'g' not in abl: gather("L_q", "s13", RING, 3, after=(lambda: qpub("sc1")) if qf else None)
    red8(A, "v_add_f32", [RING + r for r in range(24)])
    for r in range(12): A(f"v_cvt_pk_bf16_f32 v{T+r}, v{RING+2*r}, v{RING+2*r+1}")
    A(f"v_lshlrev_b32 v2, 4, v{VR}")
    for j in range(3): A(f"ds_write_b128 v2, v[{T+4*j}:{T+4*j+3}] offset:{L_Q + 128*j}")
    A("s_branch L_b1")
    if al: A(f".p2align {al}")
    A(";padoff\nL_clear2:\ns_mul_i32 s13, s6, 18432\ns_waitcnt lgkmcnt(0)")
    if BA: A("s_barrier ; BA")
    if 'c' not in abl: clr(18)
    if B0: A("s_barrier ; B0")
    if 'a' not in abl: A(f"s_waitcnt vmcnt(0)\ns_mov_b64 exec, 1\nbuffer_atomic_add v{T+1}, v{T+2}, s[44:47], 0 offen offset:128 sc1\ns_mov_b64 exec, -1")
    clrstamp()
    A("s_branch L_idle2\nL_noclear:")
    if BA: A("s_barrier ; BA")
    if hop: A("; idle waves walk a chain of branches through one sixteenth of the code so that it is cached before it is needed\ns_lshl_b32 s8, s5, 1\ns_add_u32 s8, s8, s3\ns_and_b32 s8, s8, 15\ns_mov_b64 exec, 0\n;hopladder\nL_hopret:\ns_mov_b64 exec, -1")
    stamp(1); stamp(2)
    A("L_idle:")
    if B0: A("s_barrier ; B0")
    A("L_idle2:\n;padon")
    masks(A)
    A(f"v_mul_u32_u24 v{VO}, 48, v{VC}\nv_lshl_add_u32 v{VO}, v{VR}, 5, v{VO}\ns_waitcnt lgkmcnt(0)")
    if B02: A("s_barrier ; B02")
    A("s_cmp_eq_u32 s3, 2\ns_cbranch_scc0 L_b1")
    A(f"v_and_b32 v{T}, 3, v0\nv_lshlrev_b32 v{T}, 2, v{T}\nv_mov_b32 v{T+2}, {CS}\nv_mov_b32 v{T+3}, 1\nds_write2_b32 v{T}, v{T+2}, v{T+3} offset0:0 offset1:4".replace(f"v_lshlrev_b32 v{T}, 2, v{T}", f"v_lshlrev_b32 v{T}, 2, v{T}\nv_add_u32 v{T}, {L_PROG}, v{T}"))
    A(f"v_lshrrev_b32 v{T}, 2, v{VC}\nv_mov_b32 v{T+4}, -1\nds_write_b32 v{T}, v{T+4} offset:{L_ML}")
    A("L_b1:\ns_waitcnt lgkmcnt(0)")
    if stamps >= 2: stamp(3)
    A("s_barrier ; B1")
    if stamps == 1: stamp(3)
    if tv:
        A(f"s_cmp_eq_u32 s3, 2\ns_cbranch_scc0 L_notv\ns_mov_b32 s34, 100663296\ns_mov_b32 s35, 0x20000\ns_mul_i32 s8, s6, 3145728\nv_min_u32 v{T}, {(3145728 >> tv) - 1}, v0\nv_lshlrev_b32 v{T}, {tv}, v{T}")
        A(f"buffer_load_dword v{T+1}, v{T}, s[32:35], s8 offen\nL_notv:")
    A("s_and_b32 s8, s5, 3\ns_mul_i32 s58, s4, 3\ns_add_u32 s58, s58, s8\ns_cmp_lt_u32 s8, 3\ns_cselect_b32 s8, s3, 0\ns_cmp_eq_u32 s8, 1\ns_cbranch_scc0 L_noffn")
    srd(A, 28, 48, 1966080); srd(A, 32, 56, 1966080)
    A(f"v_mul_u32_u24 v{VQ}, 30720, v{VR}\nv_add_u32 v{VQ}, v{VQ}, v{VC}")
    A("s_mul_i32 s52, s7, 245760\ns_lshl_b32 s12, s58, 7\ns_add_u32 s52, s52, s12\ns_waitcnt lgkmcnt(0)")
    for g in range(10):
        for mtx in range(2):
            r = RING + 8 * g + 4 * mtx
            A(f"buffer_load_dwordx4 v[{r}:{r+3}], v{VQ}, s[{28+4*mtx}:{31+4*mtx}], s52 offen offset:{(g%2)*3072} {wpol}\ns_waitcnt vmcnt({RF-1})")
        if g % 2 and g < 9: A("s_add_u32 s52, s52, 6144")
    A("s_waitcnt vmcnt(0)")
    for g in range(10):
        abuild(A, AB + 4 * (g & 1), PK + g)
        for mtx in range(2): mfma(A, ACC + 4 * mtx, AB + 4 * (g & 1), RING + 8 * g + 4 * mtx, first=(g == 0))
    halfsum(8)
    A("s_movk_i32 s8, 128"); flagcheck("L_flag3", "s8", 32)
    A(f"s_lshl_b32 s8, s58, 3\ns_add_u32 s8, s8, s7\ns_lshl_b32 s8, s8, 9\ns_add_u32 s8, s8, {WS_F}")
    A(f"s_mov_b64 exec, 0x00ff00ff\nbuffer_store_dwordx4 v[{T}:{T+3}], v2, s[24:27], s8 offen sc1\nbuffer_store_dwordx4 v[{T+4}:{T+7}], v2, s[24:27], s8 offen offset:256 sc1".replace(" sc1", "" if 'F' in abl else " sc1"))
    A("s_mov_b64 exec, -1\nL_noffn:")
    srd(A, 36, 32, 7864320); srd(A, 40, 64, 1966080); srd(A, 48, 72, 1280)
    A(f"v_lshrrev_b32 v3, 5, v0\nv_lshl_add_u32 v3, s3, 1, v3\nv_and_b32 v{T}, 16, v0\nv_lshl_add_u32 v{T}, v{VC}, 1, v{T}\nv_lshl_add_u32 v{VY}, v3, 8, v{T}")
    VP = 3
    A(f"v_lshlrev_b32 v{VP}, 2, v0\nv_lshl_add_u32 v{VP}, s3, 8, v{VP}")
    def readP(base, stride):
        for r in range(4): A(f"ds_read2st64_b32 v[{T+2*r}:{T+2*r+1}], v{VP} offset0:{base//256 + 2*r*stride} offset1:{base//256 + (2*r+1)*stride}")
        A("s_waitcnt lgkmcnt(0)")
    A("s_mul_i32 s8, s5, 205\ns_lshr_b32 s8, s8, 11\ns_mul_i32 s9, s8, 10\ns_sub_u32 s62, s5, s9\ns_mul_i32 s63, s4, 3\ns_add_u32 s63, s63, s8")
    A("s_lshl_b32 s8, s63, 2\ns_add_u32 s8, s8, s3\ns_lshl_b32 s9, s62, 7")
    A("s_mul_i32 s10, s8, 81920\ns_add_u32 s10, s10, s9\ns_add_u32 s11, s10, 5120\ns_mul_i32 s12, s8, 20480\ns_add_u32 s12, s12, s9")
    A(f"s_lshl_b32 s13, s63, 12\ns_lshl_b32 s14, s3, 6\ns_add_u32 s13, s13, s14\ns_add_u32 s13, s13, {WS_F}")
    A(f"s_mul_i32 s14, s8, 43691\ns_lshr_b32 s14, s14, 17\ns_mul_i32 s15, s14, 3\ns_sub_u32 s15, s8, s15\ns_mul_i32 s14, s14, 6144\ns_lshl_b32 s15, s15, 8\ns_add_u32 s14, s14, s15\ns_add_u32 s14, s14, {WS_O}")
    A(f"s_mul_i32 s52, s62, 24\ns_add_u32 s52, s52, s63\ns_lshl_b32 s52, s52, 8\ns_add_u32 s52, s52, {WS_Y}")
    A("s_lshl_b32 s54, s6, 8\ns_lshl_b32 s53, s7, 2")
    VWO, VWD, VF, VML = 8, 9, 10, 12
    A(f"v_mul_u32_u24 v{VWO}, 10240, v{VR}\nv_add_u32 v{VWO}, v{VWO}, v{VC}\nv_mul_u32_u24 v{VWD}, 2560, v{VR}\nv_add_u32 v{VWD}, v{VWD}, v{VC}")
    A(f"v_lshlrev_b32 v{VF}, 3, v{VR}\nv_lshl_add_u32 v{VF}, v{VC}, 5, v{VF}")
    A(f"v_and_b32 v{VML}, 31, v0\nv_lshlrev_b32 v{VML}, 3, v{VML}")
    ML, FG, WD, WO, YA = 14, 16, 20, RING, ACC
    woload = lambda g: A(f"buffer_load_dwordx4 v[{WO+4*g}:{WO+4*g+3}], v{VWO}, s[36:39], {'s10' if g < 4 else 's11'} offen offset:{(g%4)*1280} {wpol}")
    A("s_waitcnt vmcnt(0) lgkmcnt(0)\ns_cmp_ge_u32 s5, 30\ns_cbranch_scc1 L_bm")
    def wdload(w):
        for g in range(2): A(f"buffer_load_dwordx4 v[{WD+4*g}:{WD+4*g+3}], v{VWD}, s[40:43], s12 offen offset:{g*1280} {wpol}" + ("\ns_waitcnt vmcnt(0)" if w else ""))
    if wdt == 0: wdload(1)
    for g in range(8 - NL): woload(g); A("s_waitcnt vmcnt(0)")
    def service(ph, stop):
        L = f"L_s{ph}"
        A(f"s_mul_i32 s8, s4, {CX}\ns_add_u32 s8, s8, {WS_C}\nv_mov_b32 v{T}, 0\nv_min_u32 v{T+3}, 32, v0\nv_lshlrev_b32 v{T+3}, 2, v{T+3}\nv_and_b32 v{T+10}, 3, v0\nv_lshlrev_b32 v{T+10}, 2, v{T+10}")
        A(f"s_cmp_eq_u32 s3, 3\ns_cbranch_scc0 {L}x\ns_lshl_b32 s9, s5, 2\ns_add_u32 s9, s9, s8")
        if ph == 1: A(f"s_mov_b32 s85, 0\ns_lshl_b32 s86, s7, 5\ns_add_u32 s86, s86, s54\nv_lshlrev_b32 v{T+8}, 1, v{T+10}")
        A(f"{L}c:\nds_read_b32 v{T+1}, v{T+10} offset:{L_PROG}")
        if ph == 1: A(f"ds_read_b64 v[{T+6}:{T+7}], v{T+8} offset:{L_ML}")
        A(f"s_waitcnt lgkmcnt(0)\nv_add_u32_dpp v{T+2}, v{T+1}, v{T+1} quad_perm:[1,0,3,2] {DPPM}\nv_add_u32_dpp v{T+2}, v{T+2}, v{T+2} quad_perm:[2,3,0,1] {DPPM}")
        if svc: A(f"s_mov_b64 exec, 1\nbuffer_store_dword v{T+2}, v{T}, s[24:27], s9 offen {cst}\ns_mov_b64 exec, -1")
        A(f"v_readfirstlane_b32 s61, v{T+2}")
        if ph == 1:
            A(f"s_cmp_eq_u32 s85, 1\ns_cbranch_scc1 {L}m\nv_max_u32 v{T+9}, v{T+6}, v{T+7}\nv_cmp_eq_u32 vcc, -1, v{T+9}\ns_cbranch_vccnz {L}n")
            A(f"s_mov_b64 exec, 15\nbuffer_store_dwordx2 v[{T+6}:{T+7}], v{T+8}, s[24:27], s86 offen sc1\ns_mov_b64 exec, -1\ns_mov_b32 s85, 1\n{L}m:")
        A(f"s_cmp_ge_u32 s61, {4*stop}\ns_cbranch_scc1 {L}d\n{L}n:")
        if not svc: A(f"s_branch {L}c")
        if cw: A("s_waitcnt vmcnt(0)")
        A(f"buffer_load_dword v{T+4}, v{T+3}, s[24:27], s8 offen {cld}\ns_waitcnt vmcnt(0)\nv_readlane_b32 s84, v{T+4}, 32\nv_max_i32 v{T+4}, {4*CS}, v{T+4}")
        if fr: A(f"ds_read_b32 v{T+1}, v{T+10} offset:{L_PROG}")
        red8(A, "v_add_u32", [T + 4]); redhi(A, "v_add_u32", T + 4, T + 5, (8, 16))
        if fr: A("s_waitcnt lgkmcnt(0)")
        A(f"v_lshlrev_b32 v{T+1}, 7, v{T+1}\nv_add_u32 v{T+4}, s84, v{T+4}\nv_sub_u32 v{T+4}, v{T+4}, v{T+1}")
        if ctl:
            A(f"v_cmp_lt_i32 vcc, {16*(TH+TB)}, v{T+4}\nv_cndmask_b32 v{T+2}, 1, 2, vcc\nv_cmp_gt_i32 vcc, {16*(TB-TH)}, v{T+4}\nv_cndmask_b32 v{T+2}, v{T+2}, 0, vcc")
            A(f"s_mov_b64 exec, 15\nds_write_b32 v{T+10}, v{T+2} offset:{L_MODE}\ns_mov_b64 exec, -1")
        A(f"s_branch {L}c\n{L}x:")
        if xc == 2:
            A(f"s_lshl_b32 s9, s5, 2\ns_add_u32 s9, s9, s3\ns_cmp_eq_u32 s9, 126\ns_cbranch_scc0 {L}d\ns_mov_b32 s9, {WS_G + 8192}")
            if ph == 1: A(f"v_mov_b32 v{RING}, {128*CS}")
            A(f"{L}g:\nds_read_b32 v{T+1}, v{T} offset:{L_PROG}\nbuffer_load_dword v{T+4}, v{T+3}, s[24:27], s8 offen sc1")
            A(f"s_waitcnt vmcnt(0) lgkmcnt(0)\nv_readfirstlane_b32 s61, v{T+1}\nv_max_i32 v{T+4}, {4*CS}, v{T+4}")
            red8(A, "v_add_u32", [T + 4]); redhi(A, "v_add_u32", T + 4, T + 5, (8, 16))
            A(f"v_sub_u32 v{T+6}, v{T+4}, v{RING}\nv_mov_b32 v{RING}, v{T+4}\nv_mov_b32 v{T+7}, v{T+6}")
            A(f"s_mov_b64 exec, 1\nbuffer_atomic_add v{T+6}, v{T}, s[24:27], s9 offen sc0 sc1\ns_waitcnt vmcnt(0)")
            A(f"v_add_u32 v{T+6}, v{T+6}, v{T+7}\nv_subrev_u32 v{T+4}, {128*CS}, v{T+4}\nv_lshlrev_b32 v{T+4}, 3, v{T+4}\nv_sub_u32 v{T+6}, v{T+6}, v{T+4}\nv_add_u32 v{T+6}, {128*TX}, v{T+6}")
            A(f"v_mul_i32_i24 v{T+6}, {XG}, v{T+6}\nv_ashrrev_i32 v{T+6}, 6, v{T+6}")
            A(f"buffer_store_dword v{T+6}, v{T}, s[24:27], s8 offen offset:128\ns_mov_b64 exec, -1\ns_cmp_lt_u32 s61, {stop-XE}\ns_cbranch_scc1 {L}g")
        if xc == 1:
            A(f"s_lshl_b32 s9, s5, 2\ns_add_u32 s9, s9, s3\ns_cmp_eq_u32 s9, 126\ns_cbranch_scc0 {L}d\ns_mul_i32 s9, s4, {GS}\ns_add_u32 s9, s9, {WS_G}")
            A(f"{L}g:\nds_read_b32 v{T+1}, v{T} offset:{L_PROG}\nbuffer_load_dword v{T+4}, v{T+3}, s[24:27], s8 offen sc1")
            A(f"s_waitcnt vmcnt(0) lgkmcnt(0)\nv_readfirstlane_b32 s61, v{T+1}\nv_max_i32 v{T+4}, {4*CS}, v{T+4}")
            red8(A, "v_add_u32", [T + 4]); redhi(A, "v_add_u32", T + 4, T + 5, (8, 16))
            A(f"s_mov_b64 exec, 1\nbuffer_store_dword v{T+4}, v{T}, s[24:27], s9 offen sc1\ns_mov_b64 exec, -1\nv_readfirstlane_b32 s85, v{T+4}\ns_cmp_ge_u32 s61, {stop-6}\ns_cbranch_scc1 {L}d")
            if xw: A("s_waitcnt vmcnt(0)")
            if GS == 4: A(f"s_load_dwordx8 s[88:95], s[24:25], {WS_G} glc")
            else:
                for e in range(8): A(f"s_load_dword s{88+e}, s[24:25], {WS_G + GS*e} glc")
            A(f"s_mul_i32 s85, s85, -8\ns_waitcnt lgkmcnt(0)")
            for e in range(8): A(f"s_max_i32 s{88+e}, s{88+e}, {128*CS}\ns_add_i32 s85, s85, s{88+e}")
            A(f"s_mul_i32 s85, s85, {XG}\ns_ashr_i32 s85, s85, 6\ns_add_i32 s85, s85, {16*TX}\nv_mov_b32 v{T+6}, s85")
            A(f"s_mov_b64 exec, 1\nbuffer_store_dword v{T+6}, v{T}, s[24:27], s8 offen offset:128\ns_mov_b64 exec, -1\ns_branch {L}g")
        A(f"{L}d:")
    A("L_bm:\ns_movk_i32 s8, 128"); flagcheck("L_flag2", "s8", 32)
    service(1, 192 - TM - 12)
    A("s_barrier ; BM")
    fload = f"buffer_load_dwordx2 v[{FG}:{FG+1}], v{VF}, s[24:27], s13 offen sc1\nbuffer_load_dwordx2 v[{FG+2}:{FG+3}], v{VF}, s[24:27], s13 offen offset:256 sc1"
    A("s_cmp_ge_u32 s5, 30\ns_cbranch_scc1 L_ml")
    if pt == 1: A(f"buffer_load_dwordx4 v[{G}:{G+3}], v{VO}, s[24:27], s14 offen sc1")
    if tw: A(f"s_mov_b64 exec, 1\nbuffer_load_dword v{G}, v{VWO}, s[36:39], s10 offen\nbuffer_load_dword v{G+1}, v{VWD}, s[40:43], s12 offen\ns_mov_b64 exec, -1")
    A(fload)
    A(f"s_mov_b32 s61, {SPIN}\ns_waitcnt vmcnt(0)\nL_fchk:")
    A(f"v_max3_u32 v{T}, v{FG}, v{FG+1}, v{FG+2}\nv_max_u32 v{T}, v{T}, v{FG+3}\nv_cmp_eq_u32 vcc, -1, v{T}\ns_cbranch_vccz L_fok")
    A(f"s_sub_u32 s61, s61, 1\ns_cbranch_scc1 L_fok\n{fload}\ns_waitcnt vmcnt(0)\ns_branch L_fchk\nL_fok:")
    red8(A, "v_add_f32", [FG, FG + 1, FG + 2, FG + 3])
    for r in range(4): rb(FG + r)
    for r in range(2):
        g_, t = FG + r, T + r
        A(f"v_mul_f32 v{t}, v{g_}, v{g_}\nv_mul_f32 v{t}, 0x3d372713, v{t}\nv_fma_f32 v{t}, v{t}, v{g_}, v{g_}\nv_mul_f32 v{t}, 0xc0135761, v{t}")
        A(f"v_exp_f32 v{t}, v{t}\nv_add_f32 v{t}, 1.0, v{t}\nv_rcp_f32 v{t}, v{t}\nv_mul_f32 v{t}, v{t}, v{g_}"); rb(t)
        A(f"v_mul_f32 v{t}, v{t}, v{FG+2+r}\nv_cvt_pk_bf16_f32 v{t}, v{t}, v{t}")
        abuild(A, AB + 4 * r, t)
    if wdt == 1: wdload(1)
    if wdt < 2:
        for g in range(2): mfma(A, YA, AB + 4 * g, WD + 4 * g, first=(g == 0))
    A(f"L_ml:\ns_cmp_lg_u32 s3, 0\ns_cbranch_scc1 L_noml\nbuffer_load_dwordx2 v[{ML}:{ML+1}], v{VML}, s[24:27], s54 offen sc1\ns_waitcnt vmcnt(0)")
    A(f"s_mov_b32 s61, {SPIN}\nL_mchk:\nv_max_u32 v{T}, v{ML}, v{ML+1}\nv_cmp_eq_u32 vcc, -1, v{T}\ns_cbranch_vccz L_mok")
    A(f"s_sub_u32 s61, s61, 1\ns_cbranch_scc1 L_mok\nbuffer_load_dwordx2 v[{ML}:{ML+1}], v{VML}, s[24:27], s54 offen sc1\ns_waitcnt vmcnt(0)\ns_branch L_mchk\nL_mok:")
    A(f"v_mov_b32 v{T}, v{ML}")
    red8(A, "v_max_f32", [T]); redhi(A, "v_max_f32", T, T + 1, (8, 16))
    A(f"v_sub_f32 v{T}, v{ML}, v{T}\nv_exp_f32 v{T}, v{T}\nv_mul_f32 v{T+2}, v{T}, v{ML+1}")
    red8(A, "v_add_f32", [T + 2]); redhi(A, "v_add_f32", T + 2, T + 1, (8, 16))
    A(f"v_rcp_f32 v{T+2}, v{T+2}\nv_mul_f32 v{T}, v{T}, v{T+2}")
    A(f"v_subrev_u32 v{T+1}, s53, v0\nv_cmp_gt_u32 vcc, 4, v{T+1}\nv_lshlrev_b32 v{T+1}, 2, v{T+1}\n;padoff\ns_and_saveexec_b64 s[8:9], vcc\nds_write_b32 v{T+1}, v{T} offset:{L_FS}\ns_mov_b64 exec, -1\n;padon\ns_waitcnt lgkmcnt(0)\nL_noml:")
    service(2, 192 - CE)
    A("s_barrier ; B15")
    stamp(4)
    A("s_cmp_ge_u32 s5, 30\ns_cbranch_scc1 L_nowo")
    if pt == 2: A(f"buffer_load_dwordx4 v[{G}:{G+3}], v{VO}, s[24:27], s14 offen sc1")
    if not pace:
        if wdt == 2: wdload(0)
        for g in range(8 - NL, 8): woload(g)
        A("L_nowo:")
    else:
        late = [lambda g=g: A(f"buffer_load_dwordx4 v[{WD+4*g}:{WD+4*g+3}], v{VWD}, s[40:43], s12 offen offset:{g*1280} {wpol}") for g in range(2) if wdt == 2] + [lambda g=g: woload(g) for g in range(8 - NL, 8)]
        p0, p1, p2 = [int(c) for c in str(pace)[-3:]]
        for f in late[:p0]: f()
        A("s_barrier ; BPa")
        for f in late[p0:p0+p1]: f()
        A("s_barrier ; BPb")
        for f in late[p0+p1:p0+p1+p2]: f()
        A("s_barrier ; B2")
        for f in late[p0+p1+p2:]: f()
        A("s_branch L_b2\nL_nowo:\ns_barrier ; BPa\ns_barrier ; BPb")
    A("s_barrier ; B2\nL_b2:")
    stamp(5)
    A("s_cmp_ge_u32 s5, 30\ns_cbranch_scc1 L_spare_b")
    gather("L_o", "s14", G, 1, alt=(WS_OB - WS_O) if fast else 0)
    stamp(6)
    if wdt == 2:
        for g in range(2): mfma(A, YA, AB + 4 * g, WD + 4 * g, first=(g == 0))
    red8(A, "v_add_f32", [G + r for r in range(8)])
    for r in range(8): A(f"v_cvt_pk_bf16_f32 v{G+r}, v{G+r}, v{G+r}")
    abuild(A, AB, G)
    for g in range(8):
        if g < 7: abuild(A, AB + 4 * ((g + 1) & 1), G + g + 1)
        mfma(A, YA, AB + 4 * (g & 1), WO + 4 * g)
    A("s_mov_b32 exec_lo, 0x00ff00ff\ns_mov_b32 exec_hi, 0xff00ff00")
    A(f"ds_write_b128 v{VY}, v[{YA}:{YA+3}] offset:{L_Y}\ns_mov_b64 exec, -1\ns_waitcnt lgkmcnt(0)\ns_barrier ; B3")
    A("s_cmp_lg_u32 s3, 0\ns_cbranch_scc1 L_end")
    for r in range(4): A(f"ds_read2st64_b32 v[{T+2*r}:{T+2*r+1}], v{VP} offset0:{L_Y//256 + 2*r} offset1:{L_Y//256 + 2*r + 1}")
    for r in range(1, 4): A(f"s_waitcnt lgkmcnt({3-r})\nv_pk_add_f32 v[{T}:{T+1}], v[{T}:{T+1}], v[{T+2*r}:{T+2*r+1}]")
    A(f"v_add_f32 v{T}, v{T}, v{T+1}\nv_min_u32 v{T}, -2, v{T}")
    A(f"buffer_store_dword v{T}, v{VP}, s[24:27], s52 offen sc1")
    def putstamps():
        if stamps and stamps != 4: putst(RING)
    putstamps()
    A("s_endpgm")
    A(f"L_spare_b:\ns_cmp_lt_u32 s3, {4-yw}\ns_cbranch_scc1 L_end\ns_sub_u32 s8, s2, 240")
    A(f"s_cmp_ge_u32 s8, 10\ns_cbranch_scc1 {'L_st' if stamps else 'L_end'}")
    A(f"s_mul_i32 s9, s8, 6144\ns_add_u32 s9, s9, {WS_Y}\ns_add_u32 s10, s9, 3072\ns_lshl_b32 s11, s8, 7")
    A(f"v_lshlrev_b32 v1, 4, v0\nv_and_b32 v2, 15, v0\nv_lshlrev_b32 v2, 3, v2\nv_lshrrev_b32 v3, 4, v0\nv_lshl_add_u32 v2, v3, 1, v2")
    A(f"buffer_load_ushort v{ML}, v2, s[20:23], s11 offen")
    for e in range(gate):
        A(f"s_lshl_b32 s12, s4, 2\ns_add_u32 s12, s12, {3-e}\ns_mul_i32 s12, s12, 6144\ns_add_u32 s12, s12, {WS_O + 512}")
        gather(f"L_g{e}", "s12", G, 1, alt=(WS_OB - WS_O) if fast else 0)
    def yround(k):
        for e in range(6): A(f"buffer_load_dwordx4 v[{RING+24*(k+1)+4*e}:{RING+24*(k+1)+4*e+3}], v1, s[24:27], {'s9' if e < 3 else 's10'} offen offset:{(e%3)*1024} {yld}")
    A(f"s_mov_b32 s61, {SPIN}")
    for k in range(yp - 1): yround(k)
    A("L_ychk:")
    for k in range(yp):
        yround((k + yp - 1) % yp); Y = RING + 24 * (k + 1)
        A(f"s_waitcnt vmcnt({6*(yp-1)})")
        for e in range(8): A(f"v_max3_u32 v{T+e}, v{Y+3*e}, v{Y+3*e+1}, v{Y+3*e+2}")
        A(f"v_max3_u32 v{T}, v{T}, v{T+1}, v{T+2}\nv_max3_u32 v{T+3}, v{T+3}, v{T+4}, v{T+5}\nv_max3_u32 v{T}, v{T}, v{T+6}, v{T+7}\nv_max_u32 v{T}, v{T}, v{T+3}")
        A(f"v_cmp_eq_u32 vcc, -1, v{T}")
        for e in (0, 2, 4):
            for r in range(0, 4, 2): A(f"v_pk_add_f32 v[{RING+4*e+r}:{RING+4*e+r+1}], v[{Y+4*e+r}:{Y+4*e+r+1}], v[{Y+4*e+4+r}:{Y+4*e+4+r+1}]")
        A("s_cbranch_vccz L_yok")
    A("s_sub_u32 s61, s61, 1\ns_cbranch_scc0 L_ychk\nL_yok:")
    stamp(6)
    for e in (2, 4):
        for r in (0, 2): A(f"v_pk_add_f32 v[{RING+r}:{RING+r+1}], v[{RING+r}:{RING+r+1}], v[{RING+4*e+r}:{RING+4*e+r+1}]")
    A(f"v_lshlrev_b32 v{ML}, 16, v{ML}\nv_permlane16_swap_b32 v{RING}, v{RING+1}\nv_permlane16_swap_b32 v{RING+2}, v{RING+3}")
    A(f"v_add_f32 v{RING}, v{RING}, v{RING+1}\nv_add_f32 v{RING+2}, v{RING+2}, v{RING+3}\nv_permlane32_swap_b32 v{RING}, v{RING+2}")
    A(f"v_add_f32 v{RING}, v{RING}, v{ML}\nv_add_f32 v{RING}, v{RING}, v{RING+2}\nv_cvt_pk_bf16_f32 v{RING}, v{RING}, v{RING}")
    A(f"buffer_store_short v{RING}, v2, s[48:51], s11 offen {opol}")
    if stamps:
        A("s_mov_b64 exec, -1\ns_waitcnt vmcnt(0)\ns_branch L_st2\nL_st:"); stamp(6); A("L_st2:"); putstamps()
    A("s_endpgm")
    if al: A(f".p2align {al}")
    A(";padoff\nL_stream:\n; ---- stream waves 0..3: 256 keys each, K pass then V pass")
    A("s_mov_b32 s30, 100663296\ns_mov_b32 s31, 0x20000\ns_mov_b32 s34, 100663296\ns_mov_b32 s35, 0x20000")
    sw, ss, sc = {0: (98304, 393216, IC*3072), 1: (IC*3072, 393216, 4*IC*3072), 2: (IC*3072, 4*IC*3072, 32*IC*3072), 3: (786432, IC*3072, 8*IC*3072)}[il]
    goff = lambda g: (g // IC) * sc + (g % IC) * 3072
    A(f"s_mul_i32 s52, s6, 3145728\ns_lshl_b32 s8, s7, 2\ns_add_u32 s8, s8, s3\ns_mul_i32 s9, s7, {ss}\ns_add_u32 s52, s52, s9\ns_mul_i32 s9, s3, {sw}\ns_add_u32 s52, s52, s9")
    A("v_lshrrev_b32 v1, 3, v0\nv_mul_u32_u24 v1, 384, v1\nv_and_b32 v2, 7, v0\nv_lshl_add_u32 v1, v2, 4, v1")
    Q, ACC, AB, S, M, LS, T0, RING = 8, 20, 32, 40, 72, 73, 74, 76
    assert RING + 4 * RR <= 256
    vm = VM(A); N = 192
    st = dict(issued=0, consumed=0, ctl=0)
    slot = lambda i: RING + 4 * (i % RR)
    def nextoff(g):
        if rho: A(f"s_add_u32 s53, s59, {32*g}\ns_and_b32 s53, s53, 1023\ns_mul_i32 s53, s53, 3072\ns_add_u32 s53, s53, s60")
        else: A(f"s_add_u32 s53, s52, {goff(g)}")
    if rho: A(f"s_mul_i32 s59, s6, {rho}\ns_add_u32 s59, s59, s8\ns_mul_i32 s60, s6, 3145728")
    nextoff(0)
    def issue_to(n):
        if burst: n = n // 3 * 3
        n = min(n, N)
        while st["issued"] < n:
            i = st["issued"]
            assert i - RR < st["consumed"], (i, st)
            g, j = (i % 96) // 3, i % 3
            bs = 3 if burst else 1
            if st["ctl"] and (j == 0 or not burst):
                hb, hm, hs = [int(c, 36) for c in (WK if i < NK else WV)]
                hw = lambda h: (h + (i & 1)) // 2 - bs
                if hw(hb) < RB - bs: A(f"s_waitcnt vmcnt({hw(hb)})")
                A(f"s_cmp_eq_u32 s58, 2\ns_cbranch_scc1 L_i{i}\ns_waitcnt vmcnt({hw(hm)})\ns_cbranch_vccz L_i{i}\ns_waitcnt vmcnt({hw(hs)})\nL_i{i}:")
            vm.op(f"buffer_load_dwordx4 v[{slot(i)}:{slot(i)+3}], v1, s[{28 if i < 96 else 32}:{31 if i < 96 else 35}], s53 offen offset:{j*128} {kvpol}", i)
            st["issued"] += 1
            if j == 2: nextoff((g + 1) % 32)
            if st["issued"] == N:
                A(f"s_barrier ; B15: last V load issued\nv_mov_b32 v0, 0\nds_read_b128 v[{Q}:{Q+3}], v0 offset:{L_FS}")
                A(f"v_mbcnt_lo_u32_b32 v2, -1, 0\nv_mbcnt_hi_u32_b32 v2, -1, v2\nv_lshlrev_b32 v2, 2, v2\nv_lshl_add_u32 v2, s3, 8, v2")
                A(f"s_lshl_b32 s15, s6, 3\ns_add_u32 s15, s15, s7\ns_mul_i32 s15, s15, 768\ns_add_u32 s15, s15, {WS_O}")
    A("s_waitcnt lgkmcnt(0)")
    if prio: A(f"s_setprio {prio}")
    issue_to(R00)
    if BA: A("s_barrier")
    issue_to(R0)
    A(";padon")
    masks(A)
    for g in range(32): A(f"v_mov_b32 v{S+g}, 0")
    A(f"v_mov_b32 v{M}, 0xff800000")
    A("s_mov_b32 s56, 0x3d93cd3a\ns_mov_b32 s57, 0x3fb8aa3b")
    A(f"v_and_b32 v2, 7, v0\nv_lshlrev_b32 v2, 4, v2")
    A(f"v_lshrrev_b32 v3, 5, v0\nv_lshl_add_u32 v3, s3, 1, v3\nv_mul_u32_u24 v3, 768, v3\nv_lshl_add_u32 v3, v2, 1, v3\nv_and_b32 v{T0}, 16, v0\nv_add_u32 v3, v3, v{T0}")
    win = lambda i: R0 if i < N0 else (RB if st['ctl'] else (R2 if i >= N - T2 else R))
    def step(i):
        vm.wait(i); issue_to(i + 1 + win(i))
        if pace and i in (N - 5, N - 3): A("s_barrier ; BP")
        if i == N - TM:
            A("s_barrier ; BM")
        if i == CS: st["ctl"] = 1; A(f"s_mov_b32 s58, 1\ns_mov_b64 vcc, 0\ns_lshl_b32 s54, s3, 2\nv_mov_b32 v0, s54")
        if st["ctl"] and st["issued"] < N:
            if i % PS == 0: A(f"v_mov_b32 v2, {i}\nds_read_b32 v75, v0 offset:{L_MODE}\nds_write_b32 v0, v2 offset:{L_PROG}")
            if i % PS == 1 and i > CS + 1: A(f"s_waitcnt lgkmcnt(0)\nv_readfirstlane_b32 s58, v75\nv_cmp_eq_u32 vcc, 0, v75")
        if stamps == 4 and i in (0, 16, NB - 1, 95, 143): stamp({0: 1, 16: 2, NB - 1: 3, 95: 5, 143: 6}[i])
    def kgroups(gs):
        for e in range(12):
            for g in gs: A(f"v_dot2c_f32_bf16 v{S+g}, v{slot(3*g + e//4) + e%4}, v{Q+e}")
        st["consumed"] = 3 * gs[-1] + 3
        red8(A, "v_add_f32", [S + g for g in gs])
        if mimic:
            for g in gs: A(f"v_cvt_pk_bf16_f32 v{S+g}, v{S+g}, v{S+g}")
            for g in gs: A(f"v_and_b32 v{S+g}, s55, v{S+g}")
        for g in gs: A(f"v_mul_f32 v{S+g}, s56, v{S+g}")
        if mimic:
            for g in gs: A(f"v_cvt_pk_bf16_f32 v{S+g}, v{S+g}, v{S+g}")
            for g in gs: A(f"v_and_b32 v{S+g}, s55, v{S+g}")
        for g in gs: A(f"v_max_f32 v{M}, v{M}, v{S+g}")
    i = 0
    while i < NB:
        step(i); i += 1
        if B0 and i == B0: A("s_barrier ; B0")
        if B02 and i == B02: A("s_barrier ; B02")
    A("s_barrier ; B1: q ready")
    if stamps == 4: stamp(4)
    for j in range(3): A(f"ds_read_b128 v[{Q+4*j}:{Q+4*j+3}], v2 offset:{L_Q + 128*j}")
    A("s_waitcnt lgkmcnt(0)")
    gk = 0
    while gk < 32:
        avail = min(i, 96) // 3 - gk
        if avail > 0:
            n = min(avail, CU); kgroups(list(range(gk, gk + n))); gk += n
        if gk < 32 : step(i); i += 1
    redhi(A, "v_max_f32", M, T0)
    A(f"v_mul_f32 v{M}, s57, v{M}")
    for q4 in range(SP):
        step(i); i += 1
        gs = range(32 * q4 // SP, 32 * (q4 + 1) // SP)
        for g in gs: A(f"v_fma_f32 v{S+g}, v{S+g}, s57, -v{M}")
        for g in gs: A(f"v_exp_f32 v{S+g}, v{S+g}")
        for g in gs:
            if g == 1: A(f"v_add_f32 v{LS}, v{S}, v{S+1}")
            elif g > 1: A(f"v_add_f32 v{LS}, v{LS}, v{S+g}")
    step(i); i += 1
    redhi(A, "v_add_f32", LS, T0)
    A(f"v_min_u32 v{M}, -2, v{M}\nv_min_u32 v{LS}, -2, v{LS}")
    A(f"s_lshl_b32 s54, s3, 3\nv_mov_b32 v{T0}, s54\nds_write_b64 v{T0}, v[{M}:{LS}] offset:{L_ML}")
    def pbuild(a, r): A(f"v_cvt_pk_bf16_f32 v{r}, v{r}, v{r}"); abuild(A, a, r)
    c = 96
    pbuild(AB, S)
    while c < N:
        while c < i:
            g, j = (c - 96) // 3, c % 3
            mfma(A, ACC + 4 * j, AB + 4 * (g & 1), slot(c), first=(g == 0))
            c += 1; st["consumed"] = c
            if j == 0 and g < 31: pbuild(AB + 4 * ((g + 1) & 1), S + g + 1)
        if i < N: step(i); i += 1
    A("s_mov_b32 exec_lo, 0x00ff00ff\ns_mov_b32 exec_hi, 0xff00ff00")
    for j in range(3): A(f"ds_write_b128 v3, v[{ACC+4*j}:{ACC+4*j+3}] offset:{L_P + 256*j}")
    A("s_waitcnt lgkmcnt(0)")
    if stamps == 4:
        A("s_mov_b64 exec, -1\ns_cmp_lg_u32 s3, 0\ns_cbranch_scc1 L_nost"); putst(RING); A("L_nost:")
    A("s_mov_b64 exec, -1\ns_cmp_eq_u32 s3, 3\ns_barrier ; B2\ns_cbranch_scc1 L_end")
    U = Q + 4
    for r in range(4): A(f"ds_read2st64_b32 v[{U+2*r}:{U+2*r+1}], v2 offset0:{L_P//256 + 6*r} offset1:{L_P//256 + 6*r + 3}")
    for r in range(4): A(f"s_waitcnt lgkmcnt({3-r})\nv_add_f32 v{U+2*r}, v{U+2*r}, v{U+2*r+1}\n" + (f"v_mul_f32 v{U}, v{Q}, v{U}" if r == 0 else f"v_fmac_f32 v{U}, v{Q+r}, v{U+2*r}"))
    A(f"v_min_u32 v{U}, -2, v{U}")
    if fast: A(f"buffer_store_dword v{U}, v2, s[24:27], s15 offen\ns_add_u32 s15, s15, {WS_OB - WS_O}")
    if 'o' not in abl: A(f"buffer_store_dword v{U}, v2, s[24:27], s15 offen sc1")
    A(f"s_cmp_ge_u32 s5, 30\ns_cbranch_scc1 L_end\ns_barrier ; B3")

    A(";padoff\nL_end:\ns_endpgm")
    if "e" in lst or "r" in lst:
        A(""".globl empty_kernel
.p2align 8
.type empty_kernel,@function
empty_kernel:
""" + (reporter(ri, rm, rk) if "r" in lst else "") + """
s_endpgm
.section .rodata,"a"
.p2align 6
.amdhsa_kernel empty_kernel
.amdhsa_next_free_vgpr 32
.amdhsa_next_free_sgpr 32
.amdhsa_accum_offset 32
.amdhsa_group_segment_fixed_size 0
.amdhsa_kernarg_size 96
.amdhsa_user_sgpr_count 2
.amdhsa_user_sgpr_kernarg_segment_ptr 1
.amdhsa_system_sgpr_workgroup_id_x 1
.end_amdhsa_kernel""")
    A(f""".section .rodata,"a"
.p2align 6
.amdhsa_kernel {NAME}_kernel
.amdhsa_next_free_vgpr 256
.amdhsa_next_free_sgpr 96
.amdhsa_accum_offset 256
.amdhsa_group_segment_fixed_size 0
.amdhsa_kernarg_size 96
.amdhsa_user_sgpr_count 2
.amdhsa_user_sgpr_kernarg_segment_ptr 1
.amdhsa_system_sgpr_workgroup_id_x 1
.amdhsa_float_denorm_mode_32 3
.end_amdhsa_kernel""")
    txt = A.finish()
    return HDR + (A.pads(txt, hop, 16) if hop else txt)
if __name__ == "__main__":
    for spec in sys.argv[1:]:
        kw = {}; out = None
        for p in spec.split(","):
            k, v = p.split("=")
            if k == "out": out = v; continue
            kw[k] = int(v) if v.lstrip("-").isdigit() else v.replace("+", " ").replace("none", "")
        fn = out or ("o_" + spec.replace(",", "_").replace("=", "").replace("+", "") + ".s")
        open(fn, "w").write(gen(**kw))
        print(fn)
```

```python
import sys
from asmlib import Asm
NAME = "parallel_sum__gqa_block_cached__glu_gated_geglu__decode"
HDR = open("cdna_kernels/" + NAME + ".s.ref").read().split("; Override launch")[0]
WS_E, WS_O, WS_F, WS_Y, WS_ML, WS_OB, WS_Q = 0, 8192, 204800, 303104, 376832, 393216, 589824
WS_USED = 1310720
WS_DB = 917504
L_P, L_Q, L_Y = 0, 6144, 6656
L_PROG, L_MODE, L_ML, L_FS = 8704, 8720, 8736, 8768
WS_C = 364544
L_UNI = 8784
LDS_BYTES = 8800
WS_G = WS_C + 256
DPPM = "row_mask:0xf bank_mask:0xf"
SPIN = 1 << 22
DOC = """;
;  waves 4..7 of workgroups 240..249: sum the 24 partials of a column, add x, write the output.
"""
def srd(A, r, off, size):
    A(f"s_load_dwordx2 s[{r}:{r+1}], s[0:1], {off}")
    A(f"s_mov_b32 s{r+2}, {size}\ns_mov_b32 s{r+3}, 0x20000")
def red8(A, op, rs):
    for mod in ("quad_perm:[1,0,3,2]", "quad_perm:[2,3,0,1]", "row_half_mirror"):
        for r in rs: A(f"{op}_dpp v{r}, v{r}, v{r} {mod} {DPPM}")
def redhi(A, op, r, t, steps=(8, 16, 32)):
    if 8 in steps: A(f"{op}_dpp v{r}, v{r}, v{r} row_ror:8 {DPPM}")
    if 16 in steps: A(f"v_mov_b32 v{t}, v{r}\nv_permlane16_swap_b32 v{r}, v{t}\n{op} v{r}, v{r}, v{t}")
    if 32 in steps: A(f"v_mov_b32 v{t}, v{r}\nv_permlane32_swap_b32 v{r}, v{t}\n{op} v{r}, v{r}, v{t}")
def masks(A):
    A("v_and_b32 v2, 1, v0\nv_lshlrev_b32 v2, 4, v2\nv_mov_b32 v3, 0xffff\nv_lshlrev_b32 v3, v2, v3\nv_bfe_u32 v2, v0, 1, 2")
    for w in range(4): A(f"v_cmp_eq_u32 vcc, {w}, v2\nv_cndmask_b32 v{4+w}, 0, v3, vcc")
def abuild(A, a, pk):
    for w in range(4): A(f"v_and_b32 v{a+w}, v{4+w}, v{pk}")
def mfma(A, d, a, b, first=False):
    c = "0" if first else f"v[{d}:{d+3}]"
    A(f"v_mfma_f32_16x16x32_bf16 v[{d}:{d+3}], v[{a}:{a+3}], v[{b}:{b+3}], {c}")
class VM:
    def __init__(s, A): s.A = A; s.n = 0; s.at = {}
    def op(s, text, key=None): s.A(text); s.at[key] = s.n; s.n += 1
    def wait(s, key): s.A(f"s_waitcnt vmcnt({s.n - 1 - s.at[key]})")

def reporter(ri, rm, rk):
    A = Asm()
    A("s_cmp_ge_u32 s2, 1\ns_cbranch_scc1 L_rend")
    srd(A, 8, 88, 402653184)
    A(f"v_lshlrev_b32 v1, 6, v0\ns_mov_b32 s12, {64<<20}\ns_waitcnt lgkmcnt(0)")
    for e in range(4):
        A(f"buffer_load_dword v{4+e}, v1, s[8:11], s12 offen\nbuffer_load_dword v{8+e}, v1, s[8:11], s12 offen offset:{8*ri}\ns_add_u32 s12, s12, 4096")
    A("s_waitcnt vmcnt(0)\nv_readfirstlane_b32 s13, v4\ns_sub_u32 s13, s13, 100000")
    for e in range(8): A(f"v_subrev_u32 v{4+e}, s13, v{4+e}")
    A("v_min_u32 v4, v4, v5\nv_min3_u32 v4, v4, v6, v7")
    red8(A, "v_min_u32", [4]); redhi(A, "v_min_u32", 4, 12)
    for e in range(4): A(f"v_sub_u32 v{8+e}, v{8+e}, v4")
    op = {"max": "v_max_u32", "min": "v_min_u32", "avg": "v_add_u32"}[rm]
    A(f"{op} v8, v8, v9\n{op} v10, v10, v11\n{op} v8, v8, v10")
    red8(A, op, [8]); redhi(A, op, 8, 12)
    A("v_readfirstlane_b32 s14, v8")
    if rm == "avg": A("s_lshr_b32 s14, s14, 8")
    A(f"s_mul_i32 s14, s14, {rk}\ns_min_u32 s14, s14, 100000\ns_memrealtime s[16:17]\ns_waitcnt lgkmcnt(0)")
    A("L_rs:\ns_memrealtime s[18:19]\ns_waitcnt lgkmcnt(0)\ns_sub_u32 s18, s18, s16\ns_cmp_lt_u32 s18, s14\ns_cbranch_scc1 L_rs\nL_rend:")
    return A.finish()
def gen(R=5, R0=5, RR=45, NB=38, N0=10, R2=10, T2=16, CU=3, SP=4, stamps=0, kvpol="nt", wqpol="nt", wpol="nt", prio=0, mimic=1, B02=12, fast=1, hop=0, al=8, al2=0, al3=0, sh=0, FB=32, pt=0, yp=3, QS=1024, q2=1, d2=1, uni=1, hb=3, PB=0, NE=0, WE='gba', r4=1, cpol='sc1', opol='', gate=0, qf=0, abl='', yld='sc1', yw=1, BA=10, ff=1, R00=2, RF=2, TM=72, NL=8, ctl=1, RS=5, RB=8, TH=12, TB=-16, CE=21, cst="", cw=0, il=2, IC=1, burst=0, rho=616, CS=48, xc=0, TX=0, XG=8, XE=12, GS=3328, xw=1, CX=512, cld='sc1', svc=1, WK='ea9', WV='eba', tv=0, tw=0, pace=0, NK=96, wdt=2, fr=0, PS=3,  lst="", ri=7, rm="max", rk=2):
    A = Asm()
    def stamp(i):
        if stamps: A(f"s_memrealtime s[{64+2*i}:{65+2*i}]")
    def putst(base):
        stamp(7); A("s_waitcnt lgkmcnt(0)")
        for e in range(16): A(f"v_mov_b32 v{base+e}, s{64+e}")
        A(f"s_lshl_b32 s8, s2, 6\ns_add_u32 s8, s8, {64<<20}\nv_mov_b32 v1, 0")
        for e in range(4): A(f"buffer_store_dwordx4 v[{base+4*e}:{base+4*e+3}], v1, s[24:27], s8 offen offset:{16*e}")
    if not lst: A(f"; @launch grid=(256,1,1) block=(512,1,1) lds={LDS_BYTES}")
    for c in lst:
        if c == "m": A(f"; @launch kernel={NAME}_kernel grid=(256,1,1) block=(512,1,1) lds={LDS_BYTES}")
        else: A(f"; @launch kernel=empty_kernel grid=(1,1,1) block=(64,1,1) lds=0")
    A('.amdgcn_target "amdgcn-amd-amdhsa--gfx950"\n.text')
    A(f".globl {NAME}_kernel\n.p2align 8\n.type {NAME}_kernel,@function\n{NAME}_kernel:")
    for r, off in ((20, 0), (16, 24), (24, 88), (28, 8), (32, 16)): A(f"s_load_dwordx2 s[{r}:{r+1}], s[0:1], {off}")
    stamp(0)
    A("v_lshrrev_b32 v1, 6, v0\nv_and_b32 v0, 63, v0\ns_cmp_ge_u32 s2, 256\nv_readfirstlane_b32 s3, v1\ns_cbranch_scc1 L_end")
    A("s_and_b32 s4, s2, 7\ns_lshr_b32 s5, s2, 3\ns_lshl_b32 s6, s4, 2\ns_and_b32 s8, s5, 3\ns_add_u32 s6, s6, s8\ns_lshr_b32 s7, s5, 2")
    A(f"s_mov_b32 s26, {WS_USED if not stamps else 402653184}\ns_mov_b32 s27, 0x20000\ns_mov_b32 s55, 0xffff0000")
    A("s_cmp_lt_u32 s3, 4\ns_cbranch_scc1 L_stream")
    A("; ---- aux waves 4..7: layernorm, q projection, FFN, output projection, hand-offs")
    A("s_mov_b32 s18, 7864320\ns_mov_b32 s19, 0x20000\ns_movk_i32 s22, 1280\ns_mov_b32 s23, s19")
    A("s_sub_u32 s3, s3, 4")
    XS, X0, PK, ACC, AB, T, RING = 8, 14, 26, 48, 60, 68, 96
    VQ, VY, VC, VR, VO = 1, 45, 46, 47, 44
    G = 28
    A(f"v_lshrrev_b32 v{VR}, 3, v0\nv_and_b32 v{VC}, 7, v0\nv_lshlrev_b32 v{VC}, 4, v{VC}")
    A("s_cmp_lt_u32 s3, 2\ns_cbranch_scc1 L_q0")
    def eload(): A(f"s_load_dword s87, s[24:25], {WS_E}")
    def etags():
        A("s_add_u32 s87, s87, 0x07050301\ns_and_b32 s88, s87, 0xff\ns_bfe_u32 s89, s87, 0x80008\ns_bfe_u32 s90, s87, 0x80010\ns_lshr_b32 s91, s87, 24\ns_movk_i32 s92, 0xff")
        if PB: A(f"s_getreg_b32 s94, hwreg(HW_REG_XCC_ID, 0, 1)\ns_mul_i32 s94, s94, {-32*PB}\ns_add_i32 s94, s94, {16*PB}")
        A("s_getreg_b32 s93, hwreg(HW_REG_XCC_ID, 0, 4)\ns_lshl_b32 s93, s93, 12\ns_xor_b32 s93, s93, s87")
    A("s_waitcnt lgkmcnt(0)"); eload()
    if BA: A("s_barrier ; BA")
    stamp(1); stamp(2)
    A("s_branch L_idle\nL_q0:")
    A(f"v_mul_u32_u24 v2, 20, v0\nv_mul_u32_u24 v3, 20, v{VR}\ns_mul_i32 s10, s7, 160")
    A(f"v_mul_u32_u24 v{VQ}, 122880, v{VR}\nv_add_u32 v{VQ}, v{VQ}, v{VC}")
    A("s_mul_i32 s52, s7, 983040\ns_mul_i32 s12, s6, 384\ns_add_u32 s52, s52, s12")
    def rb(r): A(f"v_cvt_pk_bf16_f32 v{r}, v{r}, v{r}\nv_and_b32 v{r}, s55, v{r}")
    A("s_waitcnt lgkmcnt(0)")
    A(f"buffer_load_dwordx4 v[{XS}:{XS+3}], v2, s[20:23], 0 offen\nbuffer_load_dword v{XS+4}, v2, s[20:23], 0 offen offset:16")
    A(f"buffer_load_dwordx4 v[{X0}:{X0+3}], v3, s[20:23], s10 offen\nbuffer_load_dword v{X0+4}, v3, s[20:23], s10 offen offset:16")
    eload()
    A("s_cmp_eq_u32 s3, 1\ns_cbranch_scc1 L_w1")
    for g in range(10):
        for j in range(3): A(f"buffer_load_dwordx4 v[{RING+12*g+4*j}:{RING+12*g+4*j+3}], v{VQ}, s[16:19], s52 offen offset:{128*j} {wqpol}")
        if g < 9: A("s_add_u32 s52, s52, 12288")
        if g == BA - 1: A("s_barrier ; BA")
    A("s_waitcnt vmcnt(30)\ns_branch L_ln\nL_w1:")
    if BA: A("s_barrier ; BA")
    A("s_waitcnt vmcnt(0)\nL_ln:")
    stamp(1)
    for e in range(5): A(f"v_lshlrev_b32 v{T+2*e}, 16, v{XS+e}\nv_and_b32 v{T+2*e+1}, s55, v{XS+e}")
    SM, SV, TT = T + 10, T + 11, T + 12
    A(f"v_add_f32 v{SM}, v{T}, v{T+1}")
    for e in range(2, 10): A(f"v_add_f32 v{SM}, v{SM}, v{T+e}")
    red8(A, "v_add_f32", [SM]); redhi(A, "v_add_f32", SM, TT)
    A(f"v_mul_f32 v{SM}, 0x3acccccd, v{SM}")
    for e in range(10): A(f"v_sub_f32 v{T+e}, v{T+e}, v{SM}")
    A(f"v_mul_f32 v{SV}, v{T}, v{T}")
    for e in range(1, 10): A(f"v_fmac_f32 v{SV}, v{T+e}, v{T+e}")
    red8(A, "v_add_f32", [SV]); redhi(A, "v_add_f32", SV, TT)
    A(f"v_mul_f32 v{SV}, 0x3acccccd, v{SV}"); rb(SV); rb(SM)
    A(f"v_add_f32 v{SV}, 0x3727c5ac, v{SV}"); rb(SV)
    A(f"v_sqrt_f32 v{SV}, v{SV}"); rb(SV)
    A(f"v_rcp_f32 v{SV}, v{SV}")
    for e in range(5): A(f"v_lshlrev_b32 v{PK+2*e}, 16, v{X0+e}\nv_and_b32 v{PK+2*e+1}, s55, v{X0+e}")
    for e in range(10): A(f"v_sub_f32 v{PK+e}, v{PK+e}, v{SM}")
    for e in range(10): A(f"v_cvt_pk_bf16_f32 v{PK+e}, v{PK+e}, v{PK+e}")
    for e in range(10): A(f"v_and_b32 v{PK+e}, s55, v{PK+e}")
    for e in range(10): A(f"v_mul_f32 v{PK+e}, v{PK+e}, v{SV}")
    for e in range(10): A(f"v_cvt_pk_bf16_f32 v{PK+e}, v{PK+e}, v{PK+e}")
    A("s_cmp_eq_u32 s3, 1\ns_cbranch_scc1 L_idle")
    masks(A)
    def halfsum(n, dst):
        for r in range(n): A(f"v_mov_b32 v{T+16+r}, v{ACC+r}")
        for r in range(n): A(f"v_permlane32_swap_b32 v{ACC+r}, v{T+16+r}")
        for r in range(n): A(f"v_add_f32_dpp v{dst(r)}, v{T+16+r}, v{ACC+r} row_ror:8 {DPPM}")
        A(f"v_and_b32 v2, 16, v0\nv_lshl_add_u32 v2, v{VC}, 1, v2")
    abuild(A, AB, PK)
    for g in range(10):
        if g < 9: abuild(A, AB + 4 * ((g + 1) & 1), PK + g + 1)
        A(f"s_waitcnt vmcnt({27-3*g})")
        for j in range(3): mfma(A, ACC + 4 * j, AB + 4 * (g & 1), RING + 12 * g + 4 * j, first=(g == 0))
    A(f"v_mul_u32_u24 v{VO}, 48, v{VC}\nv_lshl_add_u32 v{VO}, v{VR}, 5, v{VO}")
    A(f"s_mul_i32 s13, s6, {8*QS}\ns_add_u32 s13, s13, {WS_Q}\ns_mul_i32 s12, s7, {QS}\ns_add_u32 s12, s12, s13\nv_mul_u32_u24 v3, {QS//16}, v{VC}\nv_lshl_add_u32 v3, v{VR}, 5, v3")
    A("s_waitcnt lgkmcnt(0)"); etags()
    for r in range(4): A(f"v_mov_b32 v{T+4*r+3}, s93")
    halfsum(12, lambda r: T + 4 * (r % 4) + r // 4)
    stamp(2)
    A("s_mov_b64 exec, 0x00ff00ff")
    for r in range(4): A(f"buffer_store_dwordx4 v[{T+4*r}:{T+4*r+3}], v2, s[24:27], s12 offen offset:{256*r} {'' if q2 else 'sc1'}")
    A("s_mov_b64 exec, -1")
    def untag(rs, tags=None, t=None):
        for n, r in enumerate(rs): A(f"v_xor_b32 v{r}, {tags[n] if tags else 's%d' % (88 + n % 4)}, v{r}")
        t = t or T + 12
        while len(rs) > 1:
            if len(rs) == 2: A(f"v_or_b32 v{t}, v{rs[0]}, v{rs[1]}"); rs = [t]
            else: A(f"v_or3_b32 v{t}, v{rs[0]}, v{rs[1]}, v{rs[2]}"); rs = rs[3:] + [t]
            t += 1
        A(f"v_and_b32 v{rs[0]}, 0xff, v{rs[0]}\nv_cmp_ne_u32 vcc, 0, v{rs[0]}")
    def gather(lab, so, base, nj, alt=0):
        A(f"s_mov_b32 s61, {SPIN - 1}\n{lab}chk:")
        if alt:
            A(f"s_and_b32 s8, s61, {FB-1}\ns_cselect_b32 s8, 0, {alt}\ns_add_u32 s8, s8, {so}"); so = "s8"
        for j in range(nj):
            for e in range(2): A(f"buffer_load_dwordx4 v[{base+8*j+4*e}:{base+8*j+4*e+3}], v{VO}, s[24:27], {so} offen offset:{256*j+16*e} sc1")
        A(f"s_sub_u32 s61, s61, 1\ns_waitcnt vmcnt(0)\ns_cbranch_scc1 {lab}ok")
        untag([base + r for r in range(8 * nj)])
        A(f"s_cbranch_vccnz {lab}chk\n{lab}ok:")
    if B02: A("s_barrier ; B02")
    A(f"s_mov_b32 s61, {SPIN - 1}\ns_mov_b32 s8, s13\ns_mov_b32 s9, s93\nL_qchk:")
    if q2:
        A(f"s_cmp_eq_u32 s61, {SPIN - 4}\ns_cbranch_scc0 L_qnb\ns_add_u32 s12, s12, 262144")
        for r in range(4): A(f"v_mov_b32 v{T+4*r+3}, s87")
        A("s_mov_b64 exec, 0x00ff00ff")
        for r in range(4): A(f"buffer_store_dwordx4 v[{T+4*r}:{T+4*r+3}], v2, s[24:27], s12 offen offset:{256*r} sc1")
        A("s_mov_b64 exec, -1\nL_qnb:\ns_and_b32 s8, s61, 3\ns_cselect_b32 s9, s93, s87\ns_cselect_b32 s8, 0, 262144\ns_add_u32 s8, s8, s13")
    for e in range(8): A(f"buffer_load_dwordx4 v[{RING+4*e}:{RING+4*e+3}], v3, s[24:27], s8 offen offset:{256*(e%4) + 16*(e//4)} sc1")
    A("s_sub_u32 s61, s61, 1\ns_waitcnt vmcnt(0)\ns_cbranch_scc1 L_qok")
    for e in range(8): A(f"v_xor_b32 v{RING+4*e+3}, s9, v{RING+4*e+3}")
    A(f"v_or3_b32 v{RING+3}, v{RING+3}, v{RING+7}, v{RING+11}\nv_or3_b32 v{RING+15}, v{RING+15}, v{RING+19}, v{RING+23}\nv_or3_b32 v{RING+3}, v{RING+3}, v{RING+27}, v{RING+31}")
    A(f"v_or_b32 v{RING+3}, v{RING+3}, v{RING+15}\nv_cmp_ne_u32 vcc, 0, v{RING+3}\ns_cbranch_vccnz L_qchk\nL_qok:")
    red8(A, "v_add_f32", [RING + 4 * e + j for e in range(8) for j in range(3)])
    for j in range(3):
        for e in range(0, 8, 2): A(f"v_cvt_pk_bf16_f32 v{T+4*j+e//2}, v{RING+4*e+j}, v{RING+4*e+4+j}")
    A(f"v_lshlrev_b32 v2, 4, v{VR}")
    for j in range(3): A(f"ds_write_b128 v2, v[{T+4*j}:{T+4*j+3}] offset:{L_Q + 128*j}")
    A("s_branch L_b1")
    if al3: A(f".p2align {al3}")
    A("L_idle:")
    masks(A)
    A(f"v_mul_u32_u24 v{VO}, 48, v{VC}\nv_lshl_add_u32 v{VO}, v{VR}, 5, v{VO}\ns_waitcnt lgkmcnt(0)"); etags()
    if B02: A("s_barrier ; B02")
    A("s_cmp_eq_u32 s3, 2\ns_cbranch_scc0 L_b1")
    A(f"v_and_b32 v{T}, 3, v0\nv_lshlrev_b32 v{T}, 2, v{T}\nv_mov_b32 v{T+2}, {CS}\nv_mov_b32 v{T+3}, 1\nds_write2_b32 v{T}, v{T+2}, v{T+3} offset0:0 offset1:4".replace(f"v_lshlrev_b32 v{T}, 2, v{T}", f"v_lshlrev_b32 v{T}, 2, v{T}\nv_add_u32 v{T}, {L_PROG}, v{T}"))
    A(f"v_lshrrev_b32 v{T}, 2, v{VC}\nv_mov_b32 v{T+4}, -1\nds_write_b32 v{T}, v{T+4} offset:{L_ML}\nv_mov_b32 v{T+5}, 0\nds_write_b32 v{T+5}, v{T+5} offset:{L_UNI}")
    A("L_b1:\ns_waitcnt lgkmcnt(0)")
    if stamps >= 2: stamp(3)
    A("s_barrier ; B1")
    if stamps == 1: stamp(3)
    if tv:
        A(f"s_cmp_eq_u32 s3, 2\ns_cbranch_scc0 L_notv\ns_mov_b32 s34, 100663296\ns_mov_b32 s35, 0x20000\ns_mul_i32 s8, s6, 3145728\nv_min_u32 v{T}, {(3145728 >> tv) - 1}, v0\nv_lshlrev_b32 v{T}, {tv}, v{T}")
        A(f"buffer_load_dword v{T+1}, v{T}, s[32:35], s8 offen\nL_notv:")
    A("s_and_b32 s8, s5, 3\ns_mul_i32 s58, s4, 3\ns_add_u32 s58, s58, s8\ns_cmp_lt_u32 s8, 3\ns_cselect_b32 s8, s3, 0\ns_cmp_eq_u32 s8, 1\ns_cbranch_scc0 L_noffn")
    srd(A, 28, 48, 1966080); srd(A, 32, 56, 1966080)
    A(f"v_mul_u32_u24 v{VQ}, 30720, v{VR}\nv_add_u32 v{VQ}, v{VQ}, v{VC}")
    A("s_mul_i32 s52, s7, 245760\ns_lshl_b32 s12, s58, 7\ns_add_u32 s52, s52, s12\ns_waitcnt lgkmcnt(0)")
    for g in range(10):
        for mtx in range(2):
            r = RING + 8 * g + 4 * mtx
            A(f"buffer_load_dwordx4 v[{r}:{r+3}], v{VQ}, s[{28+4*mtx}:{31+4*mtx}], s52 offen offset:{(g%2)*3072} {wpol}\ns_waitcnt vmcnt({RF-1})")
        if g % 2 and g < 9: A("s_add_u32 s52, s52, 6144")
    A("s_waitcnt vmcnt(0)")
    for g in range(10):
        abuild(A, AB + 4 * (g & 1), PK + g)
        for mtx in range(2): mfma(A, ACC + 4 * mtx, AB + 4 * (g & 1), RING + 8 * g + 4 * mtx, first=(g == 0))
    A(f"v_mov_b32 v3, 0\nds_read_b32 v{XS}, v3 offset:{L_UNI}")
    halfsum(8, lambda r: T + r)
    A(f"s_waitcnt lgkmcnt(0)\nv_readfirstlane_b32 s9, v{XS}")
    A("v_mov_b32 v3, 0xff")
    for r in range(8): A(f"v_bfi_b32 v{T+r}, v3, s{88 + r%4}, v{T+r}")
    A(f"s_lshl_b32 s8, s58, 3\ns_add_u32 s8, s8, s7\ns_lshl_b32 s8, s8, 9\ns_add_u32 s8, s8, {WS_F}")
    A("s_mov_b64 exec, 0x00ff00ff")
    if d2: A(f"buffer_store_dwordx4 v[{T}:{T+3}], v2, s[24:27], s8 offen\nbuffer_store_dwordx4 v[{T+4}:{T+7}], v2, s[24:27], s8 offen offset:256\ns_add_u32 s8, s8, {WS_DB}")
    A(f"s_cmp_eq_u32 s9, 1\ns_cbranch_scc1 L_fu\nbuffer_store_dwordx4 v[{T}:{T+3}], v2, s[24:27], s8 offen sc1\nbuffer_store_dwordx4 v[{T+4}:{T+7}], v2, s[24:27], s8 offen offset:256 sc1\nL_fu:")
    A("s_mov_b64 exec, -1\nL_noffn:")
    srd(A, 36, 32, 7864320); srd(A, 40, 64, 1966080); srd(A, 48, 72, 1280)
    A(f"v_lshrrev_b32 v3, 5, v0\nv_lshl_add_u32 v3, s3, 1, v3\nv_and_b32 v{T}, 16, v0\nv_lshl_add_u32 v{T}, v{VC}, 1, v{T}\nv_lshl_add_u32 v{VY}, v3, 8, v{T}")
    VP = 3
    A(f"v_lshlrev_b32 v{VP}, 2, v0\nv_lshl_add_u32 v{VP}, s3, 8, v{VP}")
    def readP(base, stride):
        for r in range(4): A(f"ds_read2st64_b32 v[{T+2*r}:{T+2*r+1}], v{VP} offset0:{base//256 + 2*r*stride} offset1:{base//256 + (2*r+1)*stride}")
        A("s_waitcnt lgkmcnt(0)")
    A("s_mul_i32 s8, s5, 205\ns_lshr_b32 s8, s8, 11\ns_mul_i32 s9, s8, 10\ns_sub_u32 s62, s5, s9\ns_mul_i32 s63, s4, 3\ns_add_u32 s63, s63, s8")
    A("s_lshl_b32 s8, s63, 2\ns_add_u32 s8, s8, s3\ns_lshl_b32 s9, s62, 7")
    A("s_mul_i32 s10, s8, 81920\ns_add_u32 s10, s10, s9\ns_add_u32 s11, s10, 5120\ns_mul_i32 s12, s8, 20480\ns_add_u32 s12, s12, s9")
    A(f"s_lshl_b32 s13, s63, 12\ns_lshl_b32 s14, s3, 6\ns_add_u32 s13, s13, s14\ns_add_u32 s13, s13, {WS_F}")
    A(f"s_mul_i32 s14, s8, 43691\ns_lshr_b32 s14, s14, 17\ns_mul_i32 s15, s14, 3\ns_sub_u32 s15, s8, s15\ns_mul_i32 s14, s14, 6144\ns_lshl_b32 s15, s15, 8\ns_add_u32 s14, s14, s15\ns_add_u32 s14, s14, {WS_O}")
    A(f"s_mul_i32 s52, s62, 24\ns_add_u32 s52, s52, s63\ns_lshl_b32 s52, s52, 8\ns_add_u32 s52, s52, {WS_Y}")
    A(f"s_lshl_b32 s54, s6, 9\ns_add_u32 s54, s54, {WS_ML}\ns_lshl_b32 s53, s7, 2")
    VWO, VWD, VF, VML = 8, 9, 10, 12
    A(f"v_mul_u32_u24 v{VWO}, 10240, v{VR}\nv_add_u32 v{VWO}, v{VWO}, v{VC}\nv_mul_u32_u24 v{VWD}, 2560, v{VR}\nv_add_u32 v{VWD}, v{VWD}, v{VC}")
    A(f"v_lshlrev_b32 v{VF}, 3, v{VR}\nv_lshl_add_u32 v{VF}, v{VC}, 5, v{VF}")
    A(f"v_and_b32 v{VML}, 31, v0\nv_lshlrev_b32 v{VML}, 4, v{VML}")
    ML, FG, WD, WO, YA = 14, 16, 20, RING, ACC
    woload = lambda g: A(f"buffer_load_dwordx4 v[{WO+4*g}:{WO+4*g+3}], v{VWO}, s[36:39], {'s10' if g < 4 else 's11'} offen offset:{(g%4)*1280} {wpol}")
    A("s_waitcnt vmcnt(0) lgkmcnt(0)\ns_cmp_ge_u32 s5, 30\ns_cbranch_scc1 L_bm")
    def wdload(w):
        for g in range(2): A(f"buffer_load_dwordx4 v[{WD+4*g}:{WD+4*g+3}], v{VWD}, s[40:43], s12 offen offset:{g*1280} {wpol}" + ("\ns_waitcnt vmcnt(0)" if w else ""))
    if wdt == 0: wdload(1)
    for g in range(8 - NL): woload(g); A("s_waitcnt vmcnt(0)")
    def service(ph, stop):
        L = f"L_s{ph}"
        A(f"s_mul_i32 s8, s4, {CX}\ns_add_u32 s8, s8, {WS_C}\nv_mov_b32 v{T}, 0\nv_and_b32 v{T+3}, 31, v0\nv_lshlrev_b32 v{T+3}, 2, v{T+3}\nv_and_b32 v{T+10}, 3, v0\nv_lshlrev_b32 v{T+10}, 2, v{T+10}")
        A(f"s_cmp_eq_u32 s3, 3\ns_cbranch_scc0 {L}x\ns_lshl_b32 s9, s5, 2\ns_add_u32 s9, s9, s8")
        if ph == 1: A(f"s_mov_b32 s84, 0\ns_mov_b32 s85, 0\ns_lshl_b32 s86, s7, 6\ns_add_u32 s86, s86, s54\nv_lshlrev_b32 v{T+8}, 1, v{T+10}\nv_lshlrev_b32 v{T+11}, 2, v{T+10}\nv_mov_b32 v{T+13}, s87\nv_mov_b32 v{T+15}, s87")
        A(f"{L}c:\nds_read_b32 v{T+1}, v{T+10} offset:{L_PROG}")
        if ph == 1: A(f"ds_read_b64 v[{T+6}:{T+7}], v{T+8} offset:{L_ML}")
        A(f"s_waitcnt lgkmcnt(0)\nv_add_u32_dpp v{T+2}, v{T+1}, v{T+1} quad_perm:[1,0,3,2] {DPPM}\nv_add_u32_dpp v{T+2}, v{T+2}, v{T+2} quad_perm:[2,3,0,1] {DPPM}")
        A(f"v_xor_b32 v{T+5}, s93, v{T+2}\ns_mov_b64 exec, 1\nbuffer_store_dword v{T+5}, v{T}, s[24:27], s9 offen\ns_mov_b64 exec, -1")
        A(f"v_readfirstlane_b32 s61, v{T+2}")
        if ph == 1:
            A(f"s_cmp_eq_u32 s85, 1\ns_cbranch_scc1 {L}m\nv_max_u32 v{T+9}, v{T+6}, v{T+7}\nv_cmp_eq_u32 vcc, -1, v{T+9}\ns_cbranch_vccnz {L}n")
            A(f"v_mov_b32 v{T+12}, v{T+6}\nv_mov_b32 v{T+14}, v{T+7}\ns_mov_b64 exec, 15\n" + (f"buffer_store_dwordx4 v[{T+12}:{T+15}], v{T+11}, s[24:27], s86 offen\ns_add_u32 s86, s86, {WS_DB}\n" if d2 else "") + f"s_cmp_eq_u32 s84, 1\ns_cbranch_scc1 {L}u\nbuffer_store_dwordx4 v[{T+12}:{T+15}], v{T+11}, s[24:27], s86 offen sc1\n{L}u:\ns_mov_b64 exec, -1\ns_mov_b32 s85, 1\n{L}m:")
        A(f"s_cmp_ge_u32 s61, {4*stop}\ns_cbranch_scc1 {L}d\n{L}n:")
        if cw: A("s_waitcnt vmcnt(0)")
        A(f"buffer_load_dword v{T+4}, v{T+3}, s[24:27], s8 offen {cld}\ns_waitcnt vmcnt(0)\nv_xor_b32 v{T+4}, s93, v{T+4}\nv_cmp_gt_u32 vcc, 0x400, v{T+4}\nv_cndmask_b32 v{T+4}, 0, v{T+4}, vcc\nv_max_i32 v{T+4}, {4*CS}, v{T+4}")
        if ph == 1 and uni: A(f"s_cmp_eq_u64 vcc, -1\ns_cselect_b32 s84, 1, 0\nv_mov_b32 v{T+9}, s84\nds_write_b32 v{T}, v{T+9} offset:{L_UNI}")
        if fr: A(f"ds_read_b32 v{T+1}, v{T+10} offset:{L_PROG}")
        red8(A, "v_add_u32", [T + 4]); redhi(A, "v_add_u32", T + 4, T + 5, (8, 16))
        if fr: A("s_waitcnt lgkmcnt(0)")
        if PB: A(f"v_add_u32 v{T+4}, s94, v{T+4}")
        A(f"v_lshlrev_b32 v{T+1}, 7, v{T+1}\nv_sub_u32 v{T+4}, v{T+4}, v{T+1}")
        if ctl:
            A(f"v_cmp_lt_i32 vcc, {16*(TH+TB)}, v{T+4}\nv_cndmask_b32 v{T+2}, 1, 2, vcc\nv_cmp_gt_i32 vcc, {16*(TB-TH)}, v{T+4}\nv_cndmask_b32 v{T+2}, v{T+2}, 0, vcc")
            A(f"s_mov_b64 exec, 15\nds_write_b32 v{T+10}, v{T+2} offset:{L_MODE}\ns_mov_b64 exec, -1")
        A(f"s_branch {L}c\n{L}x:")
        A(f"{L}d:")
    A("L_bm:")
    service(1, 192 - TM - 12)
    A("s_barrier ; BM")
    fload = f"buffer_load_dwordx2 v[{FG}:{FG+1}], v{VF}, s[24:27], s13 offen sc1\nbuffer_load_dwordx2 v[{FG+2}:{FG+3}], v{VF}, s[24:27], s13 offen offset:256 sc1"
    A("s_cmp_ge_u32 s5, 30\ns_cbranch_scc1 L_ml")
    A(f"v_and_b32 v{T}, 1, v{VR}\nv_lshlrev_b32 v{T}, 4, v{T}\nv_lshrrev_b32 v{T}, v{T}, s87\nv_bfe_u32 v{T+1}, v{T}, 8, 8\nv_and_b32 v{T}, 0xff, v{T}")
    altsel = lambda so: f"s_and_b32 s8, s61, 3\ns_cselect_b32 s8, 0, {WS_DB if d2 else 0}\ns_add_u32 s8, s8, {so}\n"
    A(f"s_mov_b32 s61, {SPIN - 1}\nL_fchk:\n{altsel('s13')}{fload.replace('s13', 's8')}\ns_sub_u32 s61, s61, 1\ns_waitcnt vmcnt(0)\ns_cbranch_scc1 L_fok")
    untag([FG, FG + 1, FG + 2, FG + 3], [f"v{T}", f"v{T+1}"] * 2)
    A("s_cbranch_vccnz L_fchk\nL_fok:")
    red8(A, "v_add_f32", [FG, FG + 1, FG + 2, FG + 3])
    for r in range(4): rb(FG + r)
    for r in range(2):
        g_, t = FG + r, T + r
        A(f"v_mul_f32 v{t}, v{g_}, v{g_}\nv_mul_f32 v{t}, 0x3d372713, v{t}\nv_fma_f32 v{t}, v{t}, v{g_}, v{g_}\nv_mul_f32 v{t}, 0xc0135761, v{t}")
        A(f"v_exp_f32 v{t}, v{t}\nv_add_f32 v{t}, 1.0, v{t}\nv_rcp_f32 v{t}, v{t}\nv_mul_f32 v{t}, v{t}, v{g_}"); rb(t)
        A(f"v_mul_f32 v{t}, v{t}, v{FG+2+r}\nv_cvt_pk_bf16_f32 v{t}, v{t}, v{t}")
        abuild(A, AB + 4 * r, t)
    if wdt == 1: wdload(1)
    if wdt < 2:
        for g in range(2): mfma(A, YA, AB + 4 * g, WD + 4 * g, first=(g == 0))
    A(f"L_ml:\ns_cmp_lg_u32 s3, 0\ns_cbranch_scc1 L_noml\ns_mov_b32 s61, {SPIN - 1}")
    A(f"L_mchk:\n{altsel('s54')}buffer_load_dwordx4 v[{G}:{G+3}], v{VML}, s[24:27], s8 offen sc1\ns_sub_u32 s61, s61, 1\ns_waitcnt vmcnt(0)\ns_cbranch_scc1 L_mok")
    A(f"v_xor_b32 v{G+1}, s87, v{G+1}\nv_xor_b32 v{G+3}, s87, v{G+3}\nv_or_b32 v{G+1}, v{G+1}, v{G+3}\nv_cmp_ne_u32 vcc, 0, v{G+1}\ns_cbranch_vccnz L_mchk\nL_mok:")
    A(f"v_mov_b32 v{ML}, v{G}\nv_mov_b32 v{ML+1}, v{G+2}")
    A(f"v_mov_b32 v{T}, v{ML}")
    red8(A, "v_max_f32", [T]); redhi(A, "v_max_f32", T, T + 1, (8, 16))
    A(f"v_sub_f32 v{T}, v{ML}, v{T}\nv_exp_f32 v{T}, v{T}\nv_mul_f32 v{T+2}, v{T}, v{ML+1}")
    red8(A, "v_add_f32", [T + 2]); redhi(A, "v_add_f32", T + 2, T + 1, (8, 16))
    A(f"v_rcp_f32 v{T+2}, v{T+2}\nv_mul_f32 v{T}, v{T}, v{T+2}")
    A(f"v_subrev_u32 v{T+1}, s53, v0\nv_cmp_gt_u32 vcc, 4, v{T+1}\nv_lshlrev_b32 v{T+1}, 2, v{T+1}\ns_and_saveexec_b64 s[8:9], vcc\nds_write_b32 v{T+1}, v{T} offset:{L_FS}\ns_mov_b64 exec, -1\ns_waitcnt lgkmcnt(0)\nL_noml:")
    service(2, 192 - CE)
    A(f"v_and_b32 v13, 3, v0\nv_lshlrev_b32 v13, 3, v13\nv_lshrrev_b32 v13, v13, s87")
    if hop: A("; wave 6 walks a chain of branches through the closing code so that it is cached before it is needed\ns_cmp_eq_u32 s3, 2\ns_cbranch_scc0 L_nohop\ns_mov_b64 exec, 0\ns_branch L_hop0\nL_hopret:\ns_mov_b64 exec, -1\nL_nohop:")
    A("s_barrier ; B15\n;padon")
    stamp(4)
    A("s_cmp_ge_u32 s5, 30\ns_cbranch_scc1 L_nowo")
    if not pace:
        if wdt == 2: wdload(0)
        for g in range(8 - NL, 8 - hb): woload(g)
        A("L_nowo:")
    else:
        late = [lambda g=g: A(f"buffer_load_dwordx4 v[{WD+4*g}:{WD+4*g+3}], v{VWD}, s[40:43], s12 offen offset:{g*1280} {wpol}") for g in range(2) if wdt == 2] + [lambda g=g: woload(g) for g in range(8 - NL, 8)]
        p0, p1, p2 = [int(c) for c in str(pace)[-3:]]
        for f in late[:p0]: f()
        A("s_barrier ; BPa")
        for f in late[p0:p0+p1]: f()
        A("s_barrier ; BPb")
        for f in late[p0+p1:p0+p1+p2]: f()
        A("s_barrier ; B2")
        for f in late[p0+p1+p2:]: f()
        A("s_branch L_b2\nL_nowo:\ns_barrier ; BPa\ns_barrier ; BPb")
    A("s_barrier ; B2\nL_b2:")
    stamp(5)
    A("s_cmp_ge_u32 s5, 30\ns_cbranch_scc1 L_spare_b")
    if hb:
        A("s_barrier ; BP")
        for e in range(2): A(f"buffer_load_dwordx4 v[{G+4*e}:{G+4*e+3}], v{VO}, s[24:27], s14 offen offset:{16*e} sc1")
        for g in range(8 - hb, 8): woload(g)
        A(f"s_waitcnt vmcnt({hb})")
        untag([G + r for r in range(8)])
        A("s_cbranch_vccz L_ook")
    gather("L_o", "s14", G, 1, alt=(WS_OB - WS_O) if fast else 0)
    stamp(6)
    if wdt == 2:
        for g in range(2): mfma(A, YA, AB + 4 * g, WD + 4 * g, first=(g == 0))
    red8(A, "v_add_f32", [G + r for r in range(8)])
    for r in range(8): A(f"v_cvt_pk_bf16_f32 v{G+r}, v{G+r}, v{G+r}")
    abuild(A, AB, G)
    for g in range(8):
        if g < 7: abuild(A, AB + 4 * ((g + 1) & 1), G + g + 1)
        if g >= 8 - hb: A(f"s_waitcnt vmcnt({7 - g})")
        mfma(A, YA, AB + 4 * (g & 1), WO + 4 * g)
    A("s_mov_b32 exec_lo, 0x00ff00ff\ns_mov_b32 exec_hi, 0xff00ff00")
    A(f"ds_write_b128 v{VY}, v[{YA}:{YA+3}] offset:{L_Y}\ns_mov_b64 exec, -1\ns_waitcnt lgkmcnt(0)\ns_barrier ; B3")
    A("s_cmp_lg_u32 s3, 0\ns_cbranch_scc1 L_end")
    for r in range(4): A(f"ds_read2st64_b32 v[{T+2*r}:{T+2*r+1}], v{VP} offset0:{L_Y//256 + 2*r} offset1:{L_Y//256 + 2*r + 1}")
    for r in range(1, 4): A(f"s_waitcnt lgkmcnt({3-r})\nv_pk_add_f32 v[{T}:{T+1}], v[{T}:{T+1}], v[{T+2*r}:{T+2*r+1}]")
    A(f"v_add_f32 v{T}, v{T}, v{T+1}\nv_bfi_b32 v{T}, s92, v13, v{T}")
    A(f"buffer_store_dword v{T}, v{VP}, s[24:27], s52 offen sc1")
    def putstamps():
        if stamps and stamps != 4: putst(RING)
    putstamps()
    A("s_endpgm")
    if r4:
        if al2: A(f".p2align {al2}")
        A("L_spare_b:\ns_sub_u32 s8, s2, 240")
        A(f"s_cmp_ge_u32 s8, 10\ns_cbranch_scc1 {'L_st' if stamps else 'L_end'}")
        A(f"s_mul_i32 s9, s8, 6144\ns_lshl_b32 s10, s3, 6\ns_add_u32 s9, s9, s10\ns_add_u32 s9, s9, {WS_Y}\ns_lshl_b32 s11, s8, 7\ns_lshl_b32 s10, s3, 5\ns_add_u32 s11, s11, s10\ns_add_u32 s10, s9, 3072")
        A(f"v_and_b32 v2, 15, v0\nv_lshrrev_b32 v1, 4, v0\nv_lshlrev_b32 v1, 8, v1\nv_lshl_add_u32 v1, v2, 2, v1\nv_lshlrev_b32 v2, 1, v2\nv_and_b32 v13, 0xff, v13")
        A(f"buffer_load_ushort v{ML}, v2, s[20:23], s11 offen")
        def yround(k):
            for e in range(6): A(f"buffer_load_dword v{RING+8*(k+1)+e}, v1, s[24:27], {'s9' if e < 3 else 's10'} offen offset:{(e%3)*1024} {yld}")
        A(f"s_mov_b32 s61, {SPIN}\ns_waitcnt vmcnt(0)\nv_lshlrev_b32 v{ML}, 16, v{ML}")
        for k in range(yp - 1): yround(k)
        A("L_ychk:")
        for k in range(yp):
            yround((k + yp - 1) % yp); Y = RING + 8 * (k + 1)
            A(f"s_waitcnt vmcnt({6*(yp-1)})")
            untag([Y + e for e in range(6)], ["v13"] * 6, t=T)
            A(f"v_pk_add_f32 v[{RING}:{RING+1}], v[{Y}:{Y+1}], v[{Y+2}:{Y+3}]\nv_pk_add_f32 v[{RING}:{RING+1}], v[{RING}:{RING+1}], v[{Y+4}:{Y+5}]")
            A("s_cbranch_vccz L_yok")
        A("s_sub_u32 s61, s61, 1\ns_cbranch_scc0 L_ychk\nL_yok:")
        stamp(6)
        A(f"v_add_f32 v{RING}, v{RING}, v{RING+1}")
        redhi(A, "v_add_f32", RING, RING + 1, (16, 32))
        A(f"v_add_f32 v{RING}, v{RING}, v{ML}\nv_cvt_pk_bf16_f32 v{RING}, v{RING}, v{RING}\ns_mov_b64 exec, 0xffff")
        A(f"buffer_store_short v{RING}, v2, s[48:51], s11 offen {opol}")
    else:
        A(f"L_spare_b:\ns_cmp_lt_u32 s3, {4-yw}\ns_cbranch_scc1 L_end\ns_sub_u32 s8, s2, 240")
        A(f"s_cmp_ge_u32 s8, 10\ns_cbranch_scc1 {'L_st' if stamps else 'L_end'}")
        A(f"s_mul_i32 s9, s8, 6144\ns_add_u32 s9, s9, {WS_Y}\ns_add_u32 s10, s9, 3072\ns_lshl_b32 s11, s8, 7")
        A(f"v_lshlrev_b32 v1, 4, v0\nv_and_b32 v2, 15, v0\nv_lshlrev_b32 v2, 3, v2\nv_lshrrev_b32 v3, 4, v0\nv_lshl_add_u32 v2, v3, 1, v2")
        A(f"buffer_load_ushort v{ML}, v2, s[20:23], s11 offen")
        for e in range(gate):
            A(f"s_lshl_b32 s12, s4, 2\ns_add_u32 s12, s12, {3-e}\ns_mul_i32 s12, s12, 6144\ns_add_u32 s12, s12, {WS_O + 512}")
            gather(f"L_g{e}", "s12", G, 1, alt=(WS_OB - WS_O) if fast else 0)
        def yround(k):
            for e in range(6): A(f"buffer_load_dwordx4 v[{RING+24*(k+1)+4*e}:{RING+24*(k+1)+4*e+3}], v1, s[24:27], {'s9' if e < 3 else 's10'} offen offset:{(e%3)*1024} {yld}")
        A(f"s_mov_b32 s61, {SPIN}")
        for k in range(yp - 1): yround(k)
        A("L_ychk:")
        for k in range(yp):
            yround((k + yp - 1) % yp); Y = RING + 24 * (k + 1)
            A(f"s_waitcnt vmcnt({6*(yp-1)})")
            untag([Y + e for e in range(24)], t=T)
            for e in (0, 2, 4):
                for r in range(0, 4, 2): A(f"v_pk_add_f32 v[{RING+4*e+r}:{RING+4*e+r+1}], v[{Y+4*e+r}:{Y+4*e+r+1}], v[{Y+4*e+4+r}:{Y+4*e+4+r+1}]")
            A("s_cbranch_vccz L_yok")
        A("s_sub_u32 s61, s61, 1\ns_cbranch_scc0 L_ychk\nL_yok:")
        stamp(6)
        for e in (2, 4):
            for r in (0, 2): A(f"v_pk_add_f32 v[{RING+r}:{RING+r+1}], v[{RING+r}:{RING+r+1}], v[{RING+4*e+r}:{RING+4*e+r+1}]")
        A(f"v_lshlrev_b32 v{ML}, 16, v{ML}\nv_permlane16_swap_b32 v{RING}, v{RING+1}\nv_permlane16_swap_b32 v{RING+2}, v{RING+3}")
        A(f"v_add_f32 v{RING}, v{RING}, v{RING+1}\nv_add_f32 v{RING+2}, v{RING+2}, v{RING+3}\nv_permlane32_swap_b32 v{RING}, v{RING+2}")
        A(f"v_add_f32 v{RING}, v{RING}, v{ML}\nv_add_f32 v{RING}, v{RING}, v{RING+2}\nv_cvt_pk_bf16_f32 v{RING}, v{RING}, v{RING}")
        A(f"buffer_store_short v{RING}, v2, s[48:51], s11 offen {opol}")
    A(f"; every workgroup has read the old tag long ago (this result depends on all of them): leave the new one\ns_lshl_b32 s8, s2, 2\ns_add_u32 s8, s8, s3\ns_cmp_lg_u32 s8, 963\ns_cbranch_scc1 L_fin\nv_mov_b32 v2, {WS_E}\nv_mov_b32 v3, s87\ns_mov_b64 exec, 1\nbuffer_store_dword v3, v2, s[24:27], 0 offen\nL_fin:")
    if stamps:
        A("s_mov_b64 exec, -1\ns_waitcnt vmcnt(0)\ns_branch L_st2\nL_st:"); stamp(6); A("L_st2:"); putstamps()
    A("s_endpgm")
    if al: A(f".p2align {al}")
    if sh: A(f".fill {sh}, 4, 0xbf800000")
    A(";padoff\nL_stream:\n; ---- stream waves 0..3: 256 keys each, K pass then V pass")
    A("s_mov_b32 s30, 100663296\ns_mov_b32 s31, 0x20000\ns_mov_b32 s34, 100663296\ns_mov_b32 s35, 0x20000")
    sw, ss, sc = {0: (98304, 393216, IC*3072), 1: (IC*3072, 393216, 4*IC*3072), 2: (IC*3072, 4*IC*3072, 32*IC*3072), 3: (786432, IC*3072, 8*IC*3072)}[il]
    goff = lambda g: (g // IC) * sc + (g % IC) * 3072
    A(f"s_mul_i32 s52, s6, 3145728\ns_lshl_b32 s8, s7, 2\ns_add_u32 s8, s8, s3\ns_mul_i32 s9, s7, {ss}\ns_add_u32 s52, s52, s9\ns_mul_i32 s9, s3, {sw}\ns_add_u32 s52, s52, s9")
    A("v_lshrrev_b32 v1, 3, v0\nv_mul_u32_u24 v1, 384, v1\nv_and_b32 v2, 7, v0\nv_lshl_add_u32 v1, v2, 4, v1")
    Q, ACC, AB, S, M, LS, T0, RING = 8, 20, 32, 40, 72, 73, 74, 76
    assert RING + 4 * RR <= 256
    vm = VM(A); N = 192
    st = dict(issued=0, consumed=0, ctl=0)
    slot = lambda i: RING + 4 * (i % RR)
    def nextoff(g):
        if rho: A(f"s_add_u32 s53, s59, {32*g}\ns_and_b32 s53, s53, 1023\ns_mul_i32 s53, s53, 3072\ns_add_u32 s53, s53, s60")
        else: A(f"s_add_u32 s53, s52, {goff(g)}")
    if rho: A(f"s_mul_i32 s59, s6, {rho}\ns_add_u32 s59, s59, s8\ns_mul_i32 s60, s6, 3145728")
    nextoff(0)
    def issue_to(n):
        if burst: n = n // 3 * 3
        n = min(n, N)
        while st["issued"] < n:
            i = st["issued"]
            assert i - RR < st["consumed"], (i, st)
            g, j = (i % 96) // 3, i % 3
            bs = 3 if burst else 1
            if st["ctl"] and (j == 0 or not burst):
                hb, hm, hs = [int(c, 36) for c in (WK if i < NK else (WV if i < N - NE else WE))]
                hw = lambda h: (h + (i & 1)) // 2 - bs
                if hw(hb) < RB - bs: A(f"s_waitcnt vmcnt({hw(hb)})")
                A(f"s_cmp_eq_u32 s58, 2\ns_cbranch_scc1 L_i{i}\ns_waitcnt vmcnt({hw(hm)})\ns_cbranch_vccz L_i{i}\ns_waitcnt vmcnt({hw(hs)})\nL_i{i}:")
            vm.op(f"buffer_load_dwordx4 v[{slot(i)}:{slot(i)+3}], v1, s[{28 if i < 96 else 32}:{31 if i < 96 else 35}], s53 offen offset:{j*128} {kvpol}", i)
            st["issued"] += 1
            if j == 2: nextoff((g + 1) % 32)
            if st["issued"] == N:
                A(f"s_barrier ; B15: last V load issued\n;padon\nv_mov_b32 v0, 0\nds_read_b128 v[{Q}:{Q+3}], v0 offset:{L_FS}\nds_read_b32 v73, v0 offset:{L_UNI}")
                A(f"v_mbcnt_lo_u32_b32 v2, -1, 0\nv_mbcnt_hi_u32_b32 v2, -1, v2\ns_add_u32 s87, s87, 0x07050301\ns_movk_i32 s92, 0xff\nv_and_b32 v72, 3, v2\nv_lshlrev_b32 v72, 3, v72\nv_lshrrev_b32 v72, v72, s87\nv_lshlrev_b32 v2, 2, v2\nv_lshl_add_u32 v2, s3, 8, v2")
                A(f"s_lshl_b32 s15, s6, 3\ns_add_u32 s15, s15, s7\ns_mul_i32 s15, s15, 768\ns_add_u32 s15, s15, {WS_O}")
    A("s_waitcnt lgkmcnt(0)")
    if prio: A(f"s_setprio {prio}")
    issue_to(R00)
    if BA: A("s_barrier")
    issue_to(R0)
    eload()
    masks(A)
    for g in range(32): A(f"v_mov_b32 v{S+g}, 0")
    A(f"v_mov_b32 v{M}, 0xff800000")
    A("s_mov_b32 s56, 0x3d93cd3a\ns_mov_b32 s57, 0x3fb8aa3b")
    A(f"v_and_b32 v2, 7, v0\nv_lshlrev_b32 v2, 4, v2")
    A(f"v_lshrrev_b32 v3, 5, v0\nv_lshl_add_u32 v3, s3, 1, v3\nv_mul_u32_u24 v3, 768, v3\nv_lshl_add_u32 v3, v2, 1, v3\nv_and_b32 v{T0}, 16, v0\nv_add_u32 v3, v3, v{T0}")
    win = lambda i: R0 if i < N0 else (RB if st['ctl'] else (R2 if i >= N - T2 else R))
    def step(i):
        vm.wait(i); issue_to(i + 1 + win(i))
        if pace and i in (N - 5, N - 3): A("s_barrier ; BP")
        if i == N - TM:
            A("s_barrier ; BM")
        if i == CS: st["ctl"] = 1; A(f"s_mov_b32 s58, 1\ns_mov_b64 vcc, 0\ns_lshl_b32 s54, s3, 2\nv_mov_b32 v0, s54")
        if st["ctl"] and st["issued"] < N:
            if i % PS == 0: A(f"v_mov_b32 v2, {i}\nds_read_b32 v75, v0 offset:{L_MODE}\nds_write_b32 v0, v2 offset:{L_PROG}")
            if i % PS == 1 and i > CS + 1: A(f"s_waitcnt lgkmcnt(0)\nv_readfirstlane_b32 s58, v75\nv_cmp_eq_u32 vcc, 0, v75")
        if stamps == 4 and i in (0, 16, NB - 1, 95, 143): stamp({0: 1, 16: 2, NB - 1: 3, 95: 5, 143: 6}[i])
    def kgroups(gs):
        for e in range(12):
            for g in gs: A(f"v_dot2c_f32_bf16 v{S+g}, v{slot(3*g + e//4) + e%4}, v{Q+e}")
        st["consumed"] = 3 * gs[-1] + 3
        red8(A, "v_add_f32", [S + g for g in gs])
        if mimic:
            for g in gs: A(f"v_cvt_pk_bf16_f32 v{S+g}, v{S+g}, v{S+g}")
            for g in gs: A(f"v_and_b32 v{S+g}, s55, v{S+g}")
        for g in gs: A(f"v_mul_f32 v{S+g}, s56, v{S+g}")
        if mimic:
            for g in gs: A(f"v_cvt_pk_bf16_f32 v{S+g}, v{S+g}, v{S+g}")
            for g in gs: A(f"v_and_b32 v{S+g}, s55, v{S+g}")
        for g in gs: A(f"v_max_f32 v{M}, v{M}, v{S+g}")
    i = 0
    while i < NB:
        step(i); i += 1
        if B02 and i == B02: A("s_barrier ; B02")
    A("s_barrier ; B1: q ready")
    if stamps == 4: stamp(4)
    for j in range(3): A(f"ds_read_b128 v[{Q+4*j}:{Q+4*j+3}], v2 offset:{L_Q + 128*j}")
    A("s_waitcnt lgkmcnt(0)")
    gk = 0
    while gk < 32:
        avail = min(i, 96) // 3 - gk
        if avail > 0:
            n = min(avail, CU); kgroups(list(range(gk, gk + n))); gk += n
        if gk < 32 : step(i); i += 1
    redhi(A, "v_max_f32", M, T0)
    A(f"v_mul_f32 v{M}, s57, v{M}")
    for q4 in range(SP):
        step(i); i += 1
        gs = range(32 * q4 // SP, 32 * (q4 + 1) // SP)
        for g in gs: A(f"v_fma_f32 v{S+g}, v{S+g}, s57, -v{M}")
        for g in gs: A(f"v_exp_f32 v{S+g}, v{S+g}")
        for g in gs:
            if g == 1: A(f"v_add_f32 v{LS}, v{S}, v{S+1}")
            elif g > 1: A(f"v_add_f32 v{LS}, v{LS}, v{S+g}")
    step(i); i += 1
    redhi(A, "v_add_f32", LS, T0)
    A(f"v_min_u32 v{M}, -2, v{M}\nv_min_u32 v{LS}, -2, v{LS}")
    A(f"s_lshl_b32 s54, s3, 3\nv_mov_b32 v{T0}, s54\nds_write_b64 v{T0}, v[{M}:{LS}] offset:{L_ML}")
    def pbuild(a, r): A(f"v_cvt_pk_bf16_f32 v{r}, v{r}, v{r}"); abuild(A, a, r)
    c = 96
    pbuild(AB, S)
    while c < N:
        while c < i:
            g, j = (c - 96) // 3, c % 3
            mfma(A, ACC + 4 * j, AB + 4 * (g & 1), slot(c), first=(g == 0))
            c += 1; st["consumed"] = c
            if j == 0 and g < 31: pbuild(AB + 4 * ((g + 1) & 1), S + g + 1)
        if i < N: step(i); i += 1
    A("s_mov_b32 exec_lo, 0x00ff00ff\ns_mov_b32 exec_hi, 0xff00ff00")
    for j in range(3): A(f"ds_write_b128 v3, v[{ACC+4*j}:{ACC+4*j+3}] offset:{L_P + 256*j}")
    A("s_waitcnt lgkmcnt(0)")
    if stamps == 4:
        A("s_mov_b64 exec, -1\ns_cmp_lg_u32 s3, 0\ns_cbranch_scc1 L_nost"); putst(RING); A("L_nost:")
    A("s_mov_b64 exec, -1\ns_cmp_eq_u32 s3, 3\ns_barrier ; B2\ns_cbranch_scc1 L_end")
    U = Q + 4
    for r in range(4): A(f"ds_read2st64_b32 v[{U+2*r}:{U+2*r+1}], v2 offset0:{L_P//256 + 6*r} offset1:{L_P//256 + 6*r + 3}")
    for r in range(4): A(f"s_waitcnt lgkmcnt({3-r})\nv_add_f32 v{U+2*r}, v{U+2*r}, v{U+2*r+1}\n" + (f"v_mul_f32 v{U}, v{Q}, v{U}" if r == 0 else f"v_fmac_f32 v{U}, v{Q+r}, v{U+2*r}"))
    A(f"v_bfi_b32 v{U}, s92, v72, v{U}")
    if fast: A(f"buffer_store_dword v{U}, v2, s[24:27], s15 offen\ns_add_u32 s15, s15, {WS_OB - WS_O}")
    A(f"v_readfirstlane_b32 s9, v73\ns_cmp_eq_u32 s9, {1 if uni == 1 else 2}\ns_cbranch_scc1 L_ou\nbuffer_store_dword v{U}, v2, s[24:27], s15 offen sc1\nL_ou:")
    A(f"s_cmp_ge_u32 s5, 30\ns_cbranch_scc1 L_end")
    if hb: A("s_barrier ; BP")
    A("s_barrier ; B3")

    A(";padoff\nL_end:\ns_endpgm")
    if "e" in lst or "r" in lst:
        A(""".globl empty_kernel
.p2align 8
.type empty_kernel,@function
empty_kernel:
""" + (reporter(ri, rm, rk) if "r" in lst else "") + """
s_endpgm
.section .rodata,"a"
.p2align 6
.amdhsa_kernel empty_kernel
.amdhsa_next_free_vgpr 32
.amdhsa_next_free_sgpr 32
.amdhsa_accum_offset 32
.amdhsa_group_segment_fixed_size 0
.amdhsa_kernarg_size 96
.amdhsa_user_sgpr_count 2
.amdhsa_user_sgpr_kernarg_segment_ptr 1
.amdhsa_system_sgpr_workgroup_id_x 1
.end_amdhsa_kernel""")
    A(f""".section .rodata,"a"
.p2align 6
.amdhsa_kernel {NAME}_kernel
.amdhsa_next_free_vgpr 256
.amdhsa_next_free_sgpr 96
.amdhsa_accum_offset 256
.amdhsa_group_segment_fixed_size 0
.amdhsa_kernarg_size 96
.amdhsa_user_sgpr_count 2
.amdhsa_user_sgpr_kernarg_segment_ptr 1
.amdhsa_system_sgpr_workgroup_id_x 1
.amdhsa_float_denorm_mode_32 3
.end_amdhsa_kernel""")
    txt = A.finish()
    txt = A.pads(txt, hop, 1) if hop else txt.replace(";padon\n", "").replace(";padoff\n", "")
    return HDR + txt.replace(".amdgcn_target", DOC + ".amdgcn_target", 1)
if __name__ == "__main__":
    for spec in sys.argv[1:]:
        kw = {}; out = None
        for p in spec.split(","):
            k, v = p.split("=")
            if k == "out": out = v; continue
            kw[k] = int(v) if v.lstrip("-").isdigit() else v.replace("+", " ").replace("none", "")
        fn = out or ("k_" + spec.replace(",", "_").replace("=", "").replace("+", "") + ".s")
        open(fn, "w").write(gen(**kw))
        print(fn)
```

```python
import sys
from asmlib import Asm
NAME = "parallel_sum__gqa_block_cached__glu_gated_geglu__decode"
HDR = open("cdna_kernels/" + NAME + ".s.ref").read().split("; Override launch")[0]
WS_E, WS_O, WS_F, WS_Y, WS_ML, WS_OB, WS_Q = 0, 8192, 204800, 303104, 376832, 393216, 589824
WS_USED = 1310720
WS_DB = 917504
L_P, L_Q, L_Y = 0, 6144, 6656
L_PROG, L_MODE, L_ML, L_FS = 8704, 8720, 8736, 8768
WS_C = 364544
L_UNI = 8784
LDS_BYTES = 8800
WS_G = WS_C + 256
DPPM = "row_mask:0xf bank_mask:0xf"
SPIN = 1 << 22
DOC = """;
;  waves 4..7 of workgroups 240..249: sum the 24 partials of a column, add x, write the output.
"""
def srd(A, r, off, size):
    A(f"s_load_dwordx2 s[{r}:{r+1}], s[0:1], {off}")
    A(f"s_mov_b32 s{r+2}, {size}\ns_mov_b32 s{r+3}, 0x20000")
def red8(A, op, rs):
    for mod in ("quad_perm:[1,0,3,2]", "quad_perm:[2,3,0,1]", "row_half_mirror"):
        for r in rs: A(f"{op}_dpp v{r}, v{r}, v{r} {mod} {DPPM}")
def redhi(A, op, r, t, steps=(8, 16, 32)):
    if 8 in steps: A(f"{op}_dpp v{r}, v{r}, v{r} row_ror:8 {DPPM}")
    if 16 in steps: A(f"v_mov_b32 v{t}, v{r}\nv_permlane16_swap_b32 v{r}, v{t}\n{op} v{r}, v{r}, v{t}")
    if 32 in steps: A(f"v_mov_b32 v{t}, v{r}\nv_permlane32_swap_b32 v{r}, v{t}\n{op} v{r}, v{r}, v{t}")
def masks(A):
    A("v_and_b32 v2, 1, v0\nv_lshlrev_b32 v2, 4, v2\nv_mov_b32 v3, 0xffff\nv_lshlrev_b32 v3, v2, v3\nv_bfe_u32 v2, v0, 1, 2")
    for w in range(4): A(f"v_cmp_eq_u32 vcc, {w}, v2\nv_cndmask_b32 v{4+w}, 0, v3, vcc")
def abuild(A, a, pk):
    for w in range(4): A(f"v_and_b32 v{a+w}, v{4+w}, v{pk}")
def mfma(A, d, a, b, first=False):
    c = "0" if first else f"v[{d}:{d+3}]"
    A(f"v_mfma_f32_16x16x32_bf16 v[{d}:{d+3}], v[{a}:{a+3}], v[{b}:{b+3}], {c}")
class VM:
    def __init__(s, A): s.A = A; s.n = 0; s.at = {}
    def op(s, text, key=None): s.A(text); s.at[key] = s.n; s.n += 1
    def wait(s, key): s.A(f"s_waitcnt vmcnt({s.n - 1 - s.at[key]})")

def reporter(ri, rm, rk):
    A = Asm()
    A("s_cmp_ge_u32 s2, 1\ns_cbranch_scc1 L_rend")
    srd(A, 8, 88, 402653184)
    A(f"v_lshlrev_b32 v1, 6, v0\ns_mov_b32 s12, {64<<20}\ns_waitcnt lgkmcnt(0)")
    for e in range(4):
        A(f"buffer_load_dword v{4+e}, v1, s[8:11], s12 offen\nbuffer_load_dword v{8+e}, v1, s[8:11], s12 offen offset:{8*ri}\ns_add_u32 s12, s12, 4096")
    A("s_waitcnt vmcnt(0)\nv_readfirstlane_b32 s13, v4\ns_sub_u32 s13, s13, 100000")
    for e in range(8): A(f"v_subrev_u32 v{4+e}, s13, v{4+e}")
    A("v_min_u32 v4, v4, v5\nv_min3_u32 v4, v4, v6, v7")
    red8(A, "v_min_u32", [4]); redhi(A, "v_min_u32", 4, 12)
    for e in range(4): A(f"v_sub_u32 v{8+e}, v{8+e}, v4")
    op = {"max": "v_max_u32", "min": "v_min_u32", "avg": "v_add_u32"}[rm]
    A(f"{op} v8, v8, v9\n{op} v10, v10, v11\n{op} v8, v8, v10")
    red8(A, op, [8]); redhi(A, op, 8, 12)
    A("v_readfirstlane_b32 s14, v8")
    if rm == "avg": A("s_lshr_b32 s14, s14, 8")
    A(f"s_mul_i32 s14, s14, {rk}\ns_min_u32 s14, s14, 100000\ns_memrealtime s[16:17]\ns_waitcnt lgkmcnt(0)")
    A("L_rs:\ns_memrealtime s[18:19]\ns_waitcnt lgkmcnt(0)\ns_sub_u32 s18, s18, s16\ns_cmp_lt_u32 s18, s14\ns_cbranch_scc1 L_rs\nL_rend:")
    return A.finish()
def gen(R=5, R0=5, RR=45, NB=38, N0=10, R2=10, T2=16, CU=3, SP=4, stamps=0, kvpol="nt", wqpol="nt", wpol="nt", prio=0, mimic=1, B02=12, fast=1, hop=0, al=8, al2=0, al3=0, sh=0, FB=32, pt=0, yp=3, QS=1024, q2=1, d2=1, uni=1, hb=5, fe=1, g2=1, op=0, oq=0, sw=0, PB=0, NE=0, WE='gba', r4=1, cpol='sc1', opol='', gate=0, qf=0, abl='', yld='sc1', yw=1, BA=10, ff=1, R00=2, RF=2, TM=72, NL=8, ctl=1, RS=5, RB=8, TH=12, TB=-16, CE=21, cst="", cw=0, il=2, IC=1, burst=0, rho=616, CS=48, xc=0, TX=0, XG=8, XE=12, GS=3328, xw=1, CX=512, cld='sc1', svc=1, WK='dba', WV='eba', tv=0, tw=0, pace=0, NK=96, wdt=2, fr=0, PS=3,  lst="", ri=7, rm="max", rk=2):
    A = Asm()
    OS, WS_O, WS_OB = (1024, WS_Q, WS_Q + 262144) if oq else (768, 8192, 393216)
    def stamp(i):
        if stamps: A(f"s_memrealtime s[{64+2*i}:{65+2*i}]")
    def putst(base):
        stamp(7); A("s_waitcnt lgkmcnt(0)")
        for e in range(16): A(f"v_mov_b32 v{base+e}, s{64+e}")
        A(f"s_lshl_b32 s8, s2, 6\ns_add_u32 s8, s8, {64<<20}\nv_mov_b32 v1, 0")
        for e in range(4): A(f"buffer_store_dwordx4 v[{base+4*e}:{base+4*e+3}], v1, s[24:27], s8 offen offset:{16*e}")
    if not lst: A(f"; @launch grid=(256,1,1) block=(512,1,1) lds={LDS_BYTES}")
    for c in lst:
        if c == "m": A(f"; @launch kernel={NAME}_kernel grid=(256,1,1) block=(512,1,1) lds={LDS_BYTES}")
        else: A(f"; @launch kernel=empty_kernel grid=(1,1,1) block=(64,1,1) lds=0")
    A('.amdgcn_target "amdgcn-amd-amdhsa--gfx950"\n.text')
    A(f".globl {NAME}_kernel\n.p2align 8\n.type {NAME}_kernel,@function\n{NAME}_kernel:")
    for r, off in ((20, 0), (16, 24), (24, 88), (28, 8), (32, 16)): A(f"s_load_dwordx2 s[{r}:{r+1}], s[0:1], {off}")
    stamp(0)
    A("v_lshrrev_b32 v1, 6, v0\nv_and_b32 v0, 63, v0\ns_cmp_ge_u32 s2, 256\nv_readfirstlane_b32 s3, v1\ns_cbranch_scc1 L_end")
    A("s_and_b32 s4, s2, 7\ns_lshr_b32 s5, s2, 3\ns_lshl_b32 s6, s4, 2\ns_and_b32 s8, s5, 3\ns_add_u32 s6, s6, s8\ns_lshr_b32 s7, s5, 2")
    A(f"s_mov_b32 s26, {WS_USED if not stamps else 402653184}\ns_mov_b32 s27, 0x20000\ns_mov_b32 s55, 0xffff0000")
    if sw: A("s_xor_b32 s3, s3, 4")
    A("s_cmp_lt_u32 s3, 4\ns_cbranch_scc1 L_stream")
    A("; ---- aux waves 4..7: layernorm, q projection, FFN, output projection, hand-offs")
    A("s_mov_b32 s18, 7864320\ns_mov_b32 s19, 0x20000\ns_movk_i32 s22, 1280\ns_mov_b32 s23, s19")
    A("s_sub_u32 s3, s3, 4")
    XS, X0, PK, ACC, AB, T, RING = 8, 14, 26, 48, 60, 68, 96
    VQ, VY, VC, VR, VO = 1, 45, 46, 47, 44
    G = 28
    A(f"v_lshrrev_b32 v{VR}, 3, v0\nv_and_b32 v{VC}, 7, v0\nv_lshlrev_b32 v{VC}, 4, v{VC}")
    A("s_cmp_lt_u32 s3, 2\ns_cbranch_scc1 L_q0")
    def eload(): A(f"s_load_dword s87, s[24:25], {WS_E}")
    def etags():
        A("s_add_u32 s87, s87, 0x07050301\ns_and_b32 s88, s87, 0xff\ns_bfe_u32 s89, s87, 0x80008\ns_bfe_u32 s90, s87, 0x80010\ns_lshr_b32 s91, s87, 24\ns_movk_i32 s92, 0xff")
        if PB: A(f"s_getreg_b32 s94, hwreg(HW_REG_XCC_ID, 0, 1)\ns_mul_i32 s94, s94, {-32*PB}\ns_add_i32 s94, s94, {16*PB}")
        A("s_getreg_b32 s93, hwreg(HW_REG_XCC_ID, 0, 4)\ns_lshl_b32 s93, s93, 12\ns_xor_b32 s93, s93, s87")
    A("s_waitcnt lgkmcnt(0)"); eload()
    if BA: A("s_barrier ; BA")
    stamp(1); stamp(2)
    A("s_branch L_idle\nL_q0:")
    A(f"v_mul_u32_u24 v2, 20, v0\nv_mul_u32_u24 v3, 20, v{VR}\ns_mul_i32 s10, s7, 160")
    A(f"v_mul_u32_u24 v{VQ}, 122880, v{VR}\nv_add_u32 v{VQ}, v{VQ}, v{VC}")
    A("s_mul_i32 s52, s7, 983040\ns_mul_i32 s12, s6, 384\ns_add_u32 s52, s52, s12")
    def rb(r): A(f"v_cvt_pk_bf16_f32 v{r}, v{r}, v{r}\nv_and_b32 v{r}, s55, v{r}")
    A("s_waitcnt lgkmcnt(0)")
    A(f"buffer_load_dwordx4 v[{XS}:{XS+3}], v2, s[20:23], 0 offen\nbuffer_load_dword v{XS+4}, v2, s[20:23], 0 offen offset:16")
    A(f"buffer_load_dwordx4 v[{X0}:{X0+3}], v3, s[20:23], s10 offen\nbuffer_load_dword v{X0+4}, v3, s[20:23], s10 offen offset:16")
    eload()
    A("s_cmp_eq_u32 s3, 1\ns_cbranch_scc1 L_w1")
    for g in range(10):
        for j in range(3): A(f"buffer_load_dwordx4 v[{RING+12*g+4*j}:{RING+12*g+4*j+3}], v{VQ}, s[16:19], s52 offen offset:{128*j} {wqpol}")
        if g < 9: A("s_add_u32 s52, s52, 12288")
        if g == BA - 1: A("s_barrier ; BA")
    A("s_waitcnt vmcnt(30)\ns_branch L_ln\nL_w1:")
    def ffnloads():
        srd(A, 28, 48, 1966080); srd(A, 32, 56, 1966080)
        A(f"v_mul_u32_u24 v{VQ}, 30720, v{VR}\nv_add_u32 v{VQ}, v{VQ}, v{VC}")
        A("s_mul_i32 s52, s7, 245760\ns_lshl_b32 s12, s58, 7\ns_add_u32 s52, s52, s12\ns_waitcnt lgkmcnt(0)")
        for g in range(10):
            for mtx in range(2):
                r = RING + 8 * g + 4 * mtx
                A(f"buffer_load_dwordx4 v[{r}:{r+3}], v{VQ}, s[{28+4*mtx}:{31+4*mtx}], s52 offen offset:{(g%2)*3072} {wpol}" + ("" if fe else f"\ns_waitcnt vmcnt({RF-1})"))
            if g % 2 and g < 9: A("s_add_u32 s52, s52, 6144")
    if fe == 2: A("s_barrier ; BA")
    if fe:
        A("s_and_b32 s8, s5, 3\ns_mul_i32 s58, s4, 3\ns_add_u32 s58, s58, s8\ns_cmp_lt_u32 s8, 3\ns_cbranch_scc0 L_w1b")
        ffnloads(); A("L_w1b:")
    if BA and fe != 2: A("s_barrier ; BA")
    A("s_waitcnt vmcnt(0)\nL_ln:")
    stamp(1)
    for e in range(5): A(f"v_lshlrev_b32 v{T+2*e}, 16, v{XS+e}\nv_and_b32 v{T+2*e+1}, s55, v{XS+e}")
    SM, SV, TT = T + 10, T + 11, T + 12
    A(f"v_add_f32 v{SM}, v{T}, v{T+1}")
    for e in range(2, 10): A(f"v_add_f32 v{SM}, v{SM}, v{T+e}")
    red8(A, "v_add_f32", [SM]); redhi(A, "v_add_f32", SM, TT)
    A(f"v_mul_f32 v{SM}, 0x3acccccd, v{SM}")
    for e in range(10): A(f"v_sub_f32 v{T+e}, v{T+e}, v{SM}")
    A(f"v_mul_f32 v{SV}, v{T}, v{T}")
    for e in range(1, 10): A(f"v_fmac_f32 v{SV}, v{T+e}, v{T+e}")
    red8(A, "v_add_f32", [SV]); redhi(A, "v_add_f32", SV, TT)
    A(f"v_mul_f32 v{SV}, 0x3acccccd, v{SV}"); rb(SV); rb(SM)
    A(f"v_add_f32 v{SV}, 0x3727c5ac, v{SV}"); rb(SV)
    A(f"v_sqrt_f32 v{SV}, v{SV}"); rb(SV)
    A(f"v_rcp_f32 v{SV}, v{SV}")
    for e in range(5): A(f"v_lshlrev_b32 v{PK+2*e}, 16, v{X0+e}\nv_and_b32 v{PK+2*e+1}, s55, v{X0+e}")
    for e in range(10): A(f"v_sub_f32 v{PK+e}, v{PK+e}, v{SM}")
    for e in range(10): A(f"v_cvt_pk_bf16_f32 v{PK+e}, v{PK+e}, v{PK+e}")
    for e in range(10): A(f"v_and_b32 v{PK+e}, s55, v{PK+e}")
    for e in range(10): A(f"v_mul_f32 v{PK+e}, v{PK+e}, v{SV}")
    for e in range(10): A(f"v_cvt_pk_bf16_f32 v{PK+e}, v{PK+e}, v{PK+e}")
    A("s_cmp_eq_u32 s3, 1\ns_cbranch_scc1 L_idle")
    masks(A)
    def halfsum(n, dst):
        for r in range(n): A(f"v_mov_b32 v{T+16+r}, v{ACC+r}")
        for r in range(n): A(f"v_permlane32_swap_b32 v{ACC+r}, v{T+16+r}")
        for r in range(n): A(f"v_add_f32_dpp v{dst(r)}, v{T+16+r}, v{ACC+r} row_ror:8 {DPPM}")
        A(f"v_and_b32 v2, 16, v0\nv_lshl_add_u32 v2, v{VC}, 1, v2")
    abuild(A, AB, PK)
    for g in range(10):
        if g < 9: abuild(A, AB + 4 * ((g + 1) & 1), PK + g + 1)
        A(f"s_waitcnt vmcnt({27-3*g})")
        for j in range(3): mfma(A, ACC + 4 * j, AB + 4 * (g & 1), RING + 12 * g + 4 * j, first=(g == 0))
    A(f"v_mul_u32_u24 v{VO}, {OS//16}, v{VC}\nv_lshl_add_u32 v{VO}, v{VR}, 5, v{VO}")
    A(f"s_mul_i32 s13, s6, {8*QS}\ns_add_u32 s13, s13, {WS_Q}\ns_mul_i32 s12, s7, {QS}\ns_add_u32 s12, s12, s13\nv_mul_u32_u24 v3, {QS//16}, v{VC}\nv_lshl_add_u32 v3, v{VR}, 5, v3")
    A("s_waitcnt lgkmcnt(0)"); etags()
    for r in range(4): A(f"v_mov_b32 v{T+4*r+3}, s93")
    halfsum(12, lambda r: T + 4 * (r % 4) + r // 4)
    stamp(2)
    A("s_mov_b64 exec, 0x00ff00ff")
    for r in range(4): A(f"buffer_store_dwordx4 v[{T+4*r}:{T+4*r+3}], v2, s[24:27], s12 offen offset:{256*r} {'' if q2 else 'sc1'}")
    A("s_mov_b64 exec, -1")
    def untag(rs, tags=None, t=None):
        for n, r in enumerate(rs): A(f"v_xor_b32 v{r}, {tags[n] if tags else 's%d' % (88 + n % 4)}, v{r}")
        t = t or T + 12
        while len(rs) > 1:
            if len(rs) == 2: A(f"v_or_b32 v{t}, v{rs[0]}, v{rs[1]}"); rs = [t]
            else: A(f"v_or3_b32 v{t}, v{rs[0]}, v{rs[1]}, v{rs[2]}"); rs = rs[3:] + [t]
            t += 1
        A(f"v_and_b32 v{rs[0]}, 0xff, v{rs[0]}\nv_cmp_ne_u32 vcc, 0, v{rs[0]}")
    def gather(lab, so, base, nj, alt=0):
        A(f"s_mov_b32 s61, {SPIN - 1}\n{lab}chk:")
        if alt:
            A(f"s_and_b32 s8, s61, {FB-1}\ns_cselect_b32 s8, 0, {alt}\ns_add_u32 s8, s8, {so}"); so = "s8"
        for j in range(nj):
            for e in range(2): A(f"buffer_load_dwordx4 v[{base+8*j+4*e}:{base+8*j+4*e+3}], v{VO}, s[24:27], {so} offen offset:{256*j+(OS if g2 else 16)*e} sc1")
        A(f"s_sub_u32 s61, s61, 1\ns_waitcnt vmcnt(0)\ns_cbranch_scc1 {lab}ok")
        untag([base + r for r in range(8 * nj)])
        A(f"s_cbranch_vccnz {lab}chk\n{lab}ok:")
    if B02: A("s_barrier ; B02")
    A(f"s_mov_b32 s61, {SPIN - 1}\ns_mov_b32 s8, s13\ns_mov_b32 s9, s93\nL_qchk:")
    if q2:
        A(f"s_cmp_eq_u32 s61, {SPIN - 4}\ns_cbranch_scc0 L_qnb\ns_add_u32 s12, s12, 262144")
        for r in range(4): A(f"v_mov_b32 v{T+4*r+3}, s87")
        A("s_mov_b64 exec, 0x00ff00ff")
        for r in range(4): A(f"buffer_store_dwordx4 v[{T+4*r}:{T+4*r+3}], v2, s[24:27], s12 offen offset:{256*r} sc1")
        A("s_mov_b64 exec, -1\nL_qnb:\ns_and_b32 s8, s61, 3\ns_cselect_b32 s9, s93, s87\ns_cselect_b32 s8, 0, 262144\ns_add_u32 s8, s8, s13")
    for e in range(8): A(f"buffer_load_dwordx4 v[{RING+4*e}:{RING+4*e+3}], v3, s[24:27], s8 offen offset:{256*(e%4) + 16*(e//4)} sc1")
    A("s_sub_u32 s61, s61, 1\ns_waitcnt vmcnt(0)\ns_cbranch_scc1 L_qok")
    for e in range(8): A(f"v_xor_b32 v{RING+4*e+3}, s9, v{RING+4*e+3}")
    A(f"v_or3_b32 v{RING+3}, v{RING+3}, v{RING+7}, v{RING+11}\nv_or3_b32 v{RING+15}, v{RING+15}, v{RING+19}, v{RING+23}\nv_or3_b32 v{RING+3}, v{RING+3}, v{RING+27}, v{RING+31}")
    A(f"v_or_b32 v{RING+3}, v{RING+3}, v{RING+15}\nv_cmp_ne_u32 vcc, 0, v{RING+3}\ns_cbranch_vccnz L_qchk\nL_qok:")
    red8(A, "v_add_f32", [RING + 4 * e + j for e in range(8) for j in range(3)])
    for j in range(3):
        for e in range(0, 8, 2): A(f"v_cvt_pk_bf16_f32 v{T+4*j+e//2}, v{RING+4*e+j}, v{RING+4*e+4+j}")
    A(f"v_lshlrev_b32 v2, 4, v{VR}")
    for j in range(3): A(f"ds_write_b128 v2, v[{T+4*j}:{T+4*j+3}] offset:{L_Q + 128*j}")
    A("s_branch L_b1")
    if al3: A(f".p2align {al3}")
    A("L_idle:")
    masks(A)
    A(f"v_mul_u32_u24 v{VO}, {OS//16}, v{VC}\nv_lshl_add_u32 v{VO}, v{VR}, 5, v{VO}\ns_waitcnt lgkmcnt(0)"); etags()
    if B02: A("s_barrier ; B02")
    A("s_cmp_eq_u32 s3, 2\ns_cbranch_scc0 L_b1")
    A(f"v_and_b32 v{T}, 3, v0\nv_lshlrev_b32 v{T}, 2, v{T}\nv_mov_b32 v{T+2}, {CS}\nv_mov_b32 v{T+3}, 1\nds_write2_b32 v{T}, v{T+2}, v{T+3} offset0:0 offset1:4".replace(f"v_lshlrev_b32 v{T}, 2, v{T}", f"v_lshlrev_b32 v{T}, 2, v{T}\nv_add_u32 v{T}, {L_PROG}, v{T}"))
    A(f"v_lshrrev_b32 v{T}, 2, v{VC}\nv_mov_b32 v{T+4}, -1\nds_write_b32 v{T}, v{T+4} offset:{L_ML}\nv_mov_b32 v{T+5}, 0\nds_write_b32 v{T+5}, v{T+5} offset:{L_UNI}")
    A("L_b1:\ns_waitcnt lgkmcnt(0)")
    if stamps >= 2: stamp(3)
    A("s_barrier ; B1")
    if stamps == 1: stamp(3)
    if tv:
        A(f"s_cmp_eq_u32 s3, 2\ns_cbranch_scc0 L_notv\ns_mov_b32 s34, 100663296\ns_mov_b32 s35, 0x20000\ns_mul_i32 s8, s6, 3145728\nv_min_u32 v{T}, {(3145728 >> tv) - 1}, v0\nv_lshlrev_b32 v{T}, {tv}, v{T}")
        A(f"buffer_load_dword v{T+1}, v{T}, s[32:35], s8 offen\nL_notv:")
    A("s_and_b32 s8, s5, 3\ns_mul_i32 s58, s4, 3\ns_add_u32 s58, s58, s8\ns_cmp_lt_u32 s8, 3\ns_cselect_b32 s8, s3, 0\ns_cmp_eq_u32 s8, 1\ns_cbranch_scc0 L_noffn")
    if fe: A(f"v_mov_b32 v3, 0\nL_fw:\nds_read_b32 v2, v3 offset:{L_PROG}\ns_waitcnt lgkmcnt(0)\nv_readfirstlane_b32 s9, v2\ns_cmp_lt_u32 s9, {CS + 12}\ns_cbranch_scc1 L_fw")
    else: ffnloads()
    A("s_waitcnt vmcnt(0)")
    for g in range(10):
        abuild(A, AB + 4 * (g & 1), PK + g)
        for mtx in range(2): mfma(A, ACC + 4 * mtx, AB + 4 * (g & 1), RING + 8 * g + 4 * mtx, first=(g == 0))
    A(f"v_mov_b32 v3, 0\nds_read_b32 v{XS}, v3 offset:{L_UNI}")
    halfsum(8, lambda r: T + r)
    A(f"s_waitcnt lgkmcnt(0)\nv_readfirstlane_b32 s9, v{XS}")
    A("v_mov_b32 v3, 0xff")
    for r in range(8): A(f"v_bfi_b32 v{T+r}, v3, s{88 + r%4}, v{T+r}")
    A(f"s_lshl_b32 s8, s58, 3\ns_add_u32 s8, s8, s7\ns_lshl_b32 s8, s8, 9\ns_add_u32 s8, s8, {WS_F}")
    A("s_mov_b64 exec, 0x00ff00ff")
    if d2: A(f"buffer_store_dwordx4 v[{T}:{T+3}], v2, s[24:27], s8 offen\nbuffer_store_dwordx4 v[{T+4}:{T+7}], v2, s[24:27], s8 offen offset:256\ns_add_u32 s8, s8, {WS_DB}")
    A(f"s_cmp_eq_u32 s9, 1\ns_cbranch_scc1 L_fu\nbuffer_store_dwordx4 v[{T}:{T+3}], v2, s[24:27], s8 offen sc1\nbuffer_store_dwordx4 v[{T+4}:{T+7}], v2, s[24:27], s8 offen offset:256 sc1\nL_fu:")
    A("s_mov_b64 exec, -1\nL_noffn:")
    srd(A, 36, 32, 7864320); srd(A, 40, 64, 1966080); srd(A, 48, 72, 1280)
    A(f"v_lshrrev_b32 v3, 5, v0\nv_lshl_add_u32 v3, s3, 1, v3\nv_and_b32 v{T}, 16, v0\nv_lshl_add_u32 v{T}, v{VC}, 1, v{T}\nv_lshl_add_u32 v{VY}, v3, 8, v{T}")
    VP = 3
    A(f"v_lshlrev_b32 v{VP}, 2, v0\nv_lshl_add_u32 v{VP}, s3, 8, v{VP}")
    def readP(base, stride):
        for r in range(4): A(f"ds_read2st64_b32 v[{T+2*r}:{T+2*r+1}], v{VP} offset0:{base//256 + 2*r*stride} offset1:{base//256 + (2*r+1)*stride}")
        A("s_waitcnt lgkmcnt(0)")
    A("s_mul_i32 s8, s5, 205\ns_lshr_b32 s8, s8, 11\ns_mul_i32 s9, s8, 10\ns_sub_u32 s62, s5, s9\ns_mul_i32 s63, s4, 3\ns_add_u32 s63, s63, s8")
    A("s_lshl_b32 s8, s63, 2\ns_add_u32 s8, s8, s3\ns_lshl_b32 s9, s62, 7")
    A("s_mul_i32 s10, s8, 81920\ns_add_u32 s10, s10, s9\ns_add_u32 s11, s10, 5120\ns_mul_i32 s12, s8, 20480\ns_add_u32 s12, s12, s9")
    A(f"s_lshl_b32 s13, s63, 12\ns_lshl_b32 s14, s3, 6\ns_add_u32 s13, s13, s14\ns_add_u32 s13, s13, {WS_F}")
    A(f"s_mul_i32 s14, s8, 43691\ns_lshr_b32 s14, s14, 17\ns_mul_i32 s15, s14, 3\ns_sub_u32 s15, s8, s15\ns_mul_i32 s14, s14, {8*OS}\ns_lshl_b32 s15, s15, 8\ns_add_u32 s14, s14, s15\ns_add_u32 s14, s14, {WS_O}")
    A(f"s_mul_i32 s52, s62, 24\ns_add_u32 s52, s52, s63\ns_lshl_b32 s52, s52, 8\ns_add_u32 s52, s52, {WS_Y}")
    A(f"s_lshl_b32 s54, s6, 9\ns_add_u32 s54, s54, {WS_ML}\ns_lshl_b32 s53, s7, 2")
    VWO, VWD, VF, VML = 8, 9, 10, 12
    A(f"v_mul_u32_u24 v{VWO}, 10240, v{VR}\nv_add_u32 v{VWO}, v{VWO}, v{VC}\nv_mul_u32_u24 v{VWD}, 2560, v{VR}\nv_add_u32 v{VWD}, v{VWD}, v{VC}")
    A(f"v_lshlrev_b32 v{VF}, 3, v{VR}\nv_lshl_add_u32 v{VF}, v{VC}, 5, v{VF}")
    if g2: A(f"v_and_b32 v{VO}, 3, v0\nv_mul_u32_u24 v{VO}, {2*OS}, v{VO}\nv_lshl_add_u32 v{VO}, v{VR}, 5, v{VO}\nv_and_b32 v{T}, 4, v0\nv_lshl_add_u32 v{VO}, v{T}, 2, v{VO}")
    A(f"v_and_b32 v{VML}, 31, v0\nv_lshlrev_b32 v{VML}, 4, v{VML}")
    ML, FG, WD, WO, YA = 14, 16, 20, RING, ACC
    woload = lambda g: A(f"buffer_load_dwordx4 v[{WO+4*g}:{WO+4*g+3}], v{VWO}, s[36:39], {'s10' if g < 4 else 's11'} offen offset:{(g%4)*1280} {wpol}")
    A("s_waitcnt vmcnt(0) lgkmcnt(0)\ns_cmp_ge_u32 s5, 30\ns_cbranch_scc1 L_bm")
    def wdload(w):
        for g in range(2): A(f"buffer_load_dwordx4 v[{WD+4*g}:{WD+4*g+3}], v{VWD}, s[40:43], s12 offen offset:{g*1280} {wpol}" + ("\ns_waitcnt vmcnt(0)" if w else ""))
    if wdt == 0: wdload(1)
    for g in range(8 - NL): woload(g); A("s_waitcnt vmcnt(0)")
    def service(ph, stop):
        L = f"L_s{ph}"
        A(f"s_mul_i32 s8, s4, {CX}\ns_add_u32 s8, s8, {WS_C}\nv_mov_b32 v{T}, 0\nv_and_b32 v{T+3}, 31, v0\nv_lshlrev_b32 v{T+3}, 2, v{T+3}\nv_and_b32 v{T+10}, 3, v0\nv_lshlrev_b32 v{T+10}, 2, v{T+10}")
        A(f"s_cmp_eq_u32 s3, 3\ns_cbranch_scc0 {L}x\ns_lshl_b32 s9, s5, 2\ns_add_u32 s9, s9, s8")
        if ph == 1: A(f"s_mov_b32 s84, 0\ns_mov_b32 s85, 0\ns_lshl_b32 s86, s7, 6\ns_add_u32 s86, s86, s54\nv_lshlrev_b32 v{T+8}, 1, v{T+10}\nv_lshlrev_b32 v{T+11}, 2, v{T+10}\nv_mov_b32 v{T+13}, s87\nv_mov_b32 v{T+15}, s87")
        A(f"{L}c:\nds_read_b32 v{T+1}, v{T+10} offset:{L_PROG}")
        if ph == 1: A(f"ds_read_b64 v[{T+6}:{T+7}], v{T+8} offset:{L_ML}")
        A(f"s_waitcnt lgkmcnt(0)\nv_add_u32_dpp v{T+2}, v{T+1}, v{T+1} quad_perm:[1,0,3,2] {DPPM}\nv_add_u32_dpp v{T+2}, v{T+2}, v{T+2} quad_perm:[2,3,0,1] {DPPM}")
        A(f"v_xor_b32 v{T+5}, s93, v{T+2}\ns_mov_b64 exec, 1\nbuffer_store_dword v{T+5}, v{T}, s[24:27], s9 offen\ns_mov_b64 exec, -1")
        A(f"v_readfirstlane_b32 s61, v{T+2}")
        if ph == 1:
            A(f"s_cmp_eq_u32 s85, 1\ns_cbranch_scc1 {L}m\nv_max_u32 v{T+9}, v{T+6}, v{T+7}\nv_cmp_eq_u32 vcc, -1, v{T+9}\ns_cbranch_vccnz {L}n")
            A(f"v_mov_b32 v{T+12}, v{T+6}\nv_mov_b32 v{T+14}, v{T+7}\ns_mov_b64 exec, 15\n" + (f"buffer_store_dwordx4 v[{T+12}:{T+15}], v{T+11}, s[24:27], s86 offen\ns_add_u32 s86, s86, {WS_DB}\n" if d2 else "") + f"s_cmp_eq_u32 s84, 1\ns_cbranch_scc1 {L}u\nbuffer_store_dwordx4 v[{T+12}:{T+15}], v{T+11}, s[24:27], s86 offen sc1\n{L}u:\ns_mov_b64 exec, -1\ns_mov_b32 s85, 1\n{L}m:")
        A(f"s_cmp_ge_u32 s61, {4*stop}\ns_cbranch_scc1 {L}d\n{L}n:")
        if cw: A("s_waitcnt vmcnt(0)")
        A(f"buffer_load_dword v{T+4}, v{T+3}, s[24:27], s8 offen {cld}\ns_waitcnt vmcnt(0)\nv_xor_b32 v{T+4}, s93, v{T+4}\nv_cmp_gt_u32 vcc, 0x400, v{T+4}\nv_cndmask_b32 v{T+4}, 0, v{T+4}, vcc\nv_max_i32 v{T+4}, {4*CS}, v{T+4}")
        if ph == 1 and uni: A(f"s_cmp_eq_u64 vcc, -1\ns_cselect_b32 s84, 1, 0\nv_mov_b32 v{T+9}, s84\nds_write_b32 v{T}, v{T+9} offset:{L_UNI}")
        if fr: A(f"ds_read_b32 v{T+1}, v{T+10} offset:{L_PROG}")
        red8(A, "v_add_u32", [T + 4]); redhi(A, "v_add_u32", T + 4, T + 5, (8, 16))
        if fr: A("s_waitcnt lgkmcnt(0)")
        if PB: A(f"v_add_u32 v{T+4}, s94, v{T+4}")
        A(f"v_lshlrev_b32 v{T+1}, 7, v{T+1}\nv_sub_u32 v{T+4}, v{T+4}, v{T+1}")
        if ctl:
            A(f"v_cmp_lt_i32 vcc, {16*(TH+TB)}, v{T+4}\nv_cndmask_b32 v{T+2}, 1, 2, vcc\nv_cmp_gt_i32 vcc, {16*(TB-TH)}, v{T+4}\nv_cndmask_b32 v{T+2}, v{T+2}, 0, vcc")
            A(f"s_mov_b64 exec, 15\nds_write_b32 v{T+10}, v{T+2} offset:{L_MODE}\ns_mov_b64 exec, -1")
        A(f"s_branch {L}c\n{L}x:")
        A(f"{L}d:")
    A("L_bm:")
    service(1, 192 - TM - 12)
    A("s_barrier ; BM")
    fload = f"buffer_load_dwordx2 v[{FG}:{FG+1}], v{VF}, s[24:27], s13 offen sc1\nbuffer_load_dwordx2 v[{FG+2}:{FG+3}], v{VF}, s[24:27], s13 offen offset:256 sc1"
    A("s_cmp_ge_u32 s5, 30\ns_cbranch_scc1 L_ml")
    A(f"v_and_b32 v{T}, 1, v{VR}\nv_lshlrev_b32 v{T}, 4, v{T}\nv_lshrrev_b32 v{T}, v{T}, s87\nv_bfe_u32 v{T+1}, v{T}, 8, 8\nv_and_b32 v{T}, 0xff, v{T}")
    altsel = lambda so: f"s_and_b32 s8, s61, 3\ns_cselect_b32 s8, 0, {WS_DB if d2 else 0}\ns_add_u32 s8, s8, {so}\n"
    A(f"s_mov_b32 s61, {SPIN - 1}\nL_fchk:\n{altsel('s13')}{fload.replace('s13', 's8')}\ns_sub_u32 s61, s61, 1\ns_waitcnt vmcnt(0)\ns_cbranch_scc1 L_fok")
    untag([FG, FG + 1, FG + 2, FG + 3], [f"v{T}", f"v{T+1}"] * 2)
    A("s_cbranch_vccnz L_fchk\nL_fok:")
    red8(A, "v_add_f32", [FG, FG + 1, FG + 2, FG + 3])
    for r in range(4): rb(FG + r)
    for r in range(2):
        g_, t = FG + r, T + r
        A(f"v_mul_f32 v{t}, v{g_}, v{g_}\nv_mul_f32 v{t}, 0x3d372713, v{t}\nv_fma_f32 v{t}, v{t}, v{g_}, v{g_}\nv_mul_f32 v{t}, 0xc0135761, v{t}")
        A(f"v_exp_f32 v{t}, v{t}\nv_add_f32 v{t}, 1.0, v{t}\nv_rcp_f32 v{t}, v{t}\nv_mul_f32 v{t}, v{t}, v{g_}"); rb(t)
        A(f"v_mul_f32 v{t}, v{t}, v{FG+2+r}\nv_cvt_pk_bf16_f32 v{t}, v{t}, v{t}")
        abuild(A, AB + 4 * r, t)
    if wdt == 1: wdload(1)
    if wdt < 2:
        for g in range(2): mfma(A, YA, AB + 4 * g, WD + 4 * g, first=(g == 0))
    A(f"L_ml:\ns_cmp_lg_u32 s3, 0\ns_cbranch_scc1 L_noml\ns_mov_b32 s61, {SPIN - 1}")
    A(f"L_mchk:\n{altsel('s54')}buffer_load_dwordx4 v[{G}:{G+3}], v{VML}, s[24:27], s8 offen sc1\ns_sub_u32 s61, s61, 1\ns_waitcnt vmcnt(0)\ns_cbranch_scc1 L_mok")
    A(f"v_xor_b32 v{G+1}, s87, v{G+1}\nv_xor_b32 v{G+3}, s87, v{G+3}\nv_or_b32 v{G+1}, v{G+1}, v{G+3}\nv_cmp_ne_u32 vcc, 0, v{G+1}\ns_cbranch_vccnz L_mchk\nL_mok:")
    A(f"v_mov_b32 v{ML}, v{G}\nv_mov_b32 v{ML+1}, v{G+2}")
    A(f"v_mov_b32 v{T}, v{ML}")
    red8(A, "v_max_f32", [T]); redhi(A, "v_max_f32", T, T + 1, (8, 16))
    A(f"v_sub_f32 v{T}, v{ML}, v{T}\nv_exp_f32 v{T}, v{T}\nv_mul_f32 v{T+2}, v{T}, v{ML+1}")
    red8(A, "v_add_f32", [T + 2]); redhi(A, "v_add_f32", T + 2, T + 1, (8, 16))
    A(f"v_rcp_f32 v{T+2}, v{T+2}\nv_mul_f32 v{T}, v{T}, v{T+2}")
    A(f"v_subrev_u32 v{T+1}, s53, v0\nv_cmp_gt_u32 vcc, 4, v{T+1}\nv_lshlrev_b32 v{T+1}, 2, v{T+1}\ns_and_saveexec_b64 s[8:9], vcc\nds_write_b32 v{T+1}, v{T} offset:{L_FS}\ns_mov_b64 exec, -1\ns_waitcnt lgkmcnt(0)\nL_noml:")
    service(2, 192 - CE)
    A(f"v_and_b32 v13, 3, v0\nv_lshlrev_b32 v13, 3, v13\nv_lshrrev_b32 v13, v13, s87")
    if hop: A("; wave 6 walks a chain of branches through the closing code so that it is cached before it is needed\ns_cmp_eq_u32 s3, 2\ns_cbranch_scc0 L_nohop\ns_mov_b64 exec, 0\ns_branch L_hop0\nL_hopret:\ns_mov_b64 exec, -1\nL_nohop:")
    A("s_barrier ; B15\n;padon")
    stamp(4)
    A("s_cmp_ge_u32 s5, 30\ns_cbranch_scc1 L_nowo")
    if not pace:
        if wdt == 2: wdload(0)
        for g in range(8 - NL, 8 - hb): woload(g)
        A("L_nowo:")
    else:
        late = [lambda g=g: A(f"buffer_load_dwordx4 v[{WD+4*g}:{WD+4*g+3}], v{VWD}, s[40:43], s12 offen offset:{g*1280} {wpol}") for g in range(2) if wdt == 2] + [lambda g=g: woload(g) for g in range(8 - NL, 8)]
        p0, p1, p2 = [int(c) for c in str(pace)[-3:]]
        for f in late[:p0]: f()
        A("s_barrier ; BPa")
        for f in late[p0:p0+p1]: f()
        A("s_barrier ; BPb")
        for f in late[p0+p1:p0+p1+p2]: f()
        A("s_barrier ; B2")
        for f in late[p0+p1+p2:]: f()
        A("s_branch L_b2\nL_nowo:\ns_barrier ; BPa\ns_barrier ; BPb")
    A("s_barrier ; B2\nL_b2:")
    stamp(5)
    A("s_cmp_ge_u32 s5, 30\ns_cbranch_scc1 L_spare_b")
    def osum(b):
        for r in (0, 2): A(f"v_pk_add_f32 v[{T+16+r}:{T+17+r}], v[{b+r}:{b+r+1}], v[{b+4+r}:{b+5+r}]")
    if hb:
        A("s_barrier ; BP")
        for e in range(2): A(f"buffer_load_dwordx4 v[{G+4*e}:{G+4*e+3}], v{VO}, s[24:27], s14 offen offset:{(OS if g2 else 16)*e} sc1")
        for g in range(8 - hb, 8): woload(g)
        A(f"s_waitcnt vmcnt({hb})")
        if wdt == 2 and g2:
            for g in range(2): mfma(A, YA, AB + 4 * g, WD + 4 * g, first=(g == 0))
        untag([G + r for r in range(8)])
        if op: osum(G)
        A("s_cbranch_vccz L_ook")
    if op:
        def olook(b):
            A(f"s_and_b32 s8, s61, {FB-1}\ns_cselect_b32 s8, 0, {WS_OB - WS_O}\ns_add_u32 s8, s8, s14")
            for e in range(2): A(f"buffer_load_dwordx4 v[{b+4*e}:{b+4*e+3}], v{VO}, s[24:27], s8 offen offset:{OS*e} sc1")
        A(f"s_mov_b32 s61, {SPIN - 1}"); olook(G); A("L_ochk:")
        for b, o in ((G, G + 8), (G + 8, G)):
            olook(o); A("s_waitcnt vmcnt(2)"); untag([b + r for r in range(8)]); osum(b); A("s_cbranch_vccz L_ook")
        A("s_sub_u32 s61, s61, 1\ns_cbranch_scc0 L_ochk\nL_ook:")
        G = T + 16
    else: gather("L_o", "s14", G, 1, alt=(WS_OB - WS_O) if fast else 0)
    stamp(6)
    if wdt == 2 and not (g2 and hb):
        for g in range(2): mfma(A, YA, AB + 4 * g, WD + 4 * g, first=(g == 0))
    if g2:
        if op: A("s_nop 0")
        for r in (0, 2):
            if not op: A(f"v_pk_add_f32 v[{G+r}:{G+r+1}], v[{G+r}:{G+r+1}], v[{G+4+r}:{G+5+r}]")
        for mod in ("quad_perm:[1,0,3,2]", "quad_perm:[2,3,0,1]"):
            for r in range(4): A(f"v_add_f32_dpp v{G+r}, v{G+r}, v{G+r} {mod} {DPPM}")
        for r in range(4): A(f"v_cvt_pk_bf16_f32 v{G+r}, v{G+r}, v{G+r}")
        def obuild(a, g):
            for w in range(4):
                if (w >> 1) == (g >> 2): A(f"v_and_b32 v{a+w}, v{4+w}, v{G + g%4}")
                else: A(f"v_and_b32_dpp v{a+w}, v{G + g%4}, v{4+w} row_half_mirror {DPPM}")
    else:
        red8(A, "v_add_f32", [G + r for r in range(8)])
        for r in range(8): A(f"v_cvt_pk_bf16_f32 v{G+r}, v{G+r}, v{G+r}")
        obuild = lambda a, g: abuild(A, a, G + g)
    obuild(AB, 0)
    for g in range(8):
        if g < 7: obuild(AB + 4 * ((g + 1) & 1), g + 1)
        if g >= 8 - hb: A(f"s_waitcnt vmcnt({7 - g})")
        mfma(A, YA, AB + 4 * (g & 1), WO + 4 * g)
    A("s_mov_b32 exec_lo, 0x00ff00ff\ns_mov_b32 exec_hi, 0xff00ff00")
    A(f"ds_write_b128 v{VY}, v[{YA}:{YA+3}] offset:{L_Y}\ns_mov_b64 exec, -1\ns_waitcnt lgkmcnt(0)\ns_barrier ; B3")
    A("s_cmp_lg_u32 s3, 0\ns_cbranch_scc1 L_end")
    for r in range(4): A(f"ds_read2st64_b32 v[{T+2*r}:{T+2*r+1}], v{VP} offset0:{L_Y//256 + 2*r} offset1:{L_Y//256 + 2*r + 1}")
    for r in range(1, 4): A(f"s_waitcnt lgkmcnt({3-r})\nv_pk_add_f32 v[{T}:{T+1}], v[{T}:{T+1}], v[{T+2*r}:{T+2*r+1}]")
    A(f"v_add_f32 v{T}, v{T}, v{T+1}\nv_bfi_b32 v{T}, s92, v13, v{T}")
    A(f"buffer_store_dword v{T}, v{VP}, s[24:27], s52 offen sc1")
    def putstamps():
        if stamps and stamps != 4: putst(RING)
    putstamps()
    A("s_endpgm")
    if r4:
        if al2: A(f".p2align {al2}")
        A("L_spare_b:\ns_sub_u32 s8, s2, 240")
        A(f"s_cmp_ge_u32 s8, 10\ns_cbranch_scc1 {'L_st' if stamps else 'L_end'}")
        A(f"s_mul_i32 s9, s8, 6144\ns_lshl_b32 s10, s3, 6\ns_add_u32 s9, s9, s10\ns_add_u32 s9, s9, {WS_Y}\ns_lshl_b32 s11, s8, 7\ns_lshl_b32 s10, s3, 5\ns_add_u32 s11, s11, s10\ns_add_u32 s10, s9, 3072")
        A(f"v_and_b32 v2, 15, v0\nv_lshrrev_b32 v1, 4, v0\nv_lshlrev_b32 v1, 8, v1\nv_lshl_add_u32 v1, v2, 2, v1\nv_lshlrev_b32 v2, 1, v2\nv_and_b32 v13, 0xff, v13")
        A(f"buffer_load_ushort v{ML}, v2, s[20:23], s11 offen")
        def yround(k):
            for e in range(6): A(f"buffer_load_dword v{RING+8*(k+1)+e}, v1, s[24:27], {'s9' if e < 3 else 's10'} offen offset:{(e%3)*1024} {yld}")
        A(f"s_mov_b32 s61, {SPIN}\ns_waitcnt vmcnt(0)\nv_lshlrev_b32 v{ML}, 16, v{ML}")
        for k in range(yp - 1): yround(k)
        A("L_ychk:")
        for k in range(yp):
            yround((k + yp - 1) % yp); Y = RING + 8 * (k + 1)
            A(f"s_waitcnt vmcnt({6*(yp-1)})")
            untag([Y + e for e in range(6)], ["v13"] * 6, t=T)
            A(f"v_pk_add_f32 v[{RING}:{RING+1}], v[{Y}:{Y+1}], v[{Y+2}:{Y+3}]\nv_pk_add_f32 v[{RING}:{RING+1}], v[{RING}:{RING+1}], v[{Y+4}:{Y+5}]")
            A("s_cbranch_vccz L_yok")
        A("s_sub_u32 s61, s61, 1\ns_cbranch_scc0 L_ychk\nL_yok:")
        stamp(6)
        A(f"v_add_f32 v{RING}, v{RING}, v{RING+1}")
        redhi(A, "v_add_f32", RING, RING + 1, (16, 32))
        A(f"v_add_f32 v{RING}, v{RING}, v{ML}\nv_cvt_pk_bf16_f32 v{RING}, v{RING}, v{RING}\ns_mov_b64 exec, 0xffff")
        A(f"buffer_store_short v{RING}, v2, s[48:51], s11 offen {opol}")
    else:
        A(f"L_spare_b:\ns_cmp_lt_u32 s3, {4-yw}\ns_cbranch_scc1 L_end\ns_sub_u32 s8, s2, 240")
        A(f"s_cmp_ge_u32 s8, 10\ns_cbranch_scc1 {'L_st' if stamps else 'L_end'}")
        A(f"s_mul_i32 s9, s8, 6144\ns_add_u32 s9, s9, {WS_Y}\ns_add_u32 s10, s9, 3072\ns_lshl_b32 s11, s8, 7")
        A(f"v_lshlrev_b32 v1, 4, v0\nv_and_b32 v2, 15, v0\nv_lshlrev_b32 v2, 3, v2\nv_lshrrev_b32 v3, 4, v0\nv_lshl_add_u32 v2, v3, 1, v2")
        A(f"buffer_load_ushort v{ML}, v2, s[20:23], s11 offen")
        for e in range(gate):
            A(f"s_lshl_b32 s12, s4, 2\ns_add_u32 s12, s12, {3-e}\ns_mul_i32 s12, s12, 6144\ns_add_u32 s12, s12, {WS_O + 512}")
            gather(f"L_g{e}", "s12", G, 1, alt=(WS_OB - WS_O) if fast else 0)
        def yround(k):
            for e in range(6): A(f"buffer_load_dwordx4 v[{RING+24*(k+1)+4*e}:{RING+24*(k+1)+4*e+3}], v1, s[24:27], {'s9' if e < 3 else 's10'} offen offset:{(e%3)*1024} {yld}")
        A(f"s_mov_b32 s61, {SPIN}")
        for k in range(yp - 1): yround(k)
        A("L_ychk:")
        for k in range(yp):
            yround((k + yp - 1) % yp); Y = RING + 24 * (k + 1)
            A(f"s_waitcnt vmcnt({6*(yp-1)})")
            untag([Y + e for e in range(24)], t=T)
            for e in (0, 2, 4):
                for r in range(0, 4, 2): A(f"v_pk_add_f32 v[{RING+4*e+r}:{RING+4*e+r+1}], v[{Y+4*e+r}:{Y+4*e+r+1}], v[{Y+4*e+4+r}:{Y+4*e+4+r+1}]")
            A("s_cbranch_vccz L_yok")
        A("s_sub_u32 s61, s61, 1\ns_cbranch_scc0 L_ychk\nL_yok:")
        stamp(6)
        for e in (2, 4):
            for r in (0, 2): A(f"v_pk_add_f32 v[{RING+r}:{RING+r+1}], v[{RING+r}:{RING+r+1}], v[{RING+4*e+r}:{RING+4*e+r+1}]")
        A(f"v_lshlrev_b32 v{ML}, 16, v{ML}\nv_permlane16_swap_b32 v{RING}, v{RING+1}\nv_permlane16_swap_b32 v{RING+2}, v{RING+3}")
        A(f"v_add_f32 v{RING}, v{RING}, v{RING+1}\nv_add_f32 v{RING+2}, v{RING+2}, v{RING+3}\nv_permlane32_swap_b32 v{RING}, v{RING+2}")
        A(f"v_add_f32 v{RING}, v{RING}, v{ML}\nv_add_f32 v{RING}, v{RING}, v{RING+2}\nv_cvt_pk_bf16_f32 v{RING}, v{RING}, v{RING}")
        A(f"buffer_store_short v{RING}, v2, s[48:51], s11 offen {opol}")
    A(f"; every workgroup has read the old tag long ago (this result depends on all of them): leave the new one\ns_lshl_b32 s8, s2, 2\ns_add_u32 s8, s8, s3\ns_cmp_lg_u32 s8, 963\ns_cbranch_scc1 L_fin\nv_mov_b32 v2, {WS_E}\nv_mov_b32 v3, s87\ns_mov_b64 exec, 1\nbuffer_store_dword v3, v2, s[24:27], 0 offen\nL_fin:")
    if stamps:
        A("s_mov_b64 exec, -1\ns_waitcnt vmcnt(0)\ns_branch L_st2\nL_st:"); stamp(6); A("L_st2:"); putstamps()
    A("s_endpgm")
    if al: A(f".p2align {al}")
    if sh: A(f".fill {sh}, 4, 0xbf800000")
    A(";padoff\nL_stream:\n; ---- stream waves 0..3: 256 keys each, K pass then V pass")
    A("s_mov_b32 s30, 100663296\ns_mov_b32 s31, 0x20000\ns_mov_b32 s34, 100663296\ns_mov_b32 s35, 0x20000")
    sw_, ss, sc = {0: (98304, 393216, IC*3072), 1: (IC*3072, 393216, 4*IC*3072), 2: (IC*3072, 4*IC*3072, 32*IC*3072), 3: (786432, IC*3072, 8*IC*3072)}[il]
    goff = lambda g: (g // IC) * sc + (g % IC) * 3072
    A(f"s_mul_i32 s52, s6, 3145728\ns_lshl_b32 s8, s7, 2\ns_add_u32 s8, s8, s3\ns_mul_i32 s9, s7, {ss}\ns_add_u32 s52, s52, s9\ns_mul_i32 s9, s3, {sw_}\ns_add_u32 s52, s52, s9")
    A("v_lshrrev_b32 v1, 3, v0\nv_mul_u32_u24 v1, 384, v1\nv_and_b32 v2, 7, v0\nv_lshl_add_u32 v1, v2, 4, v1")
    Q, ACC, AB, S, M, LS, T0, RING = 8, 20, 32, 40, 72, 73, 74, 76
    assert RING + 4 * RR <= 256
    vm = VM(A); N = 192
    st = dict(issued=0, consumed=0, ctl=0)
    slot = lambda i: RING + 4 * (i % RR)
    def nextoff(g):
        if rho: A(f"s_add_u32 s53, s59, {32*g}\ns_and_b32 s53, s53, 1023\ns_mul_i32 s53, s53, 3072\ns_add_u32 s53, s53, s60")
        else: A(f"s_add_u32 s53, s52, {goff(g)}")
    if rho: A(f"s_mul_i32 s59, s6, {rho}\ns_add_u32 s59, s59, s8\ns_mul_i32 s60, s6, 3145728")
    nextoff(0)
    def issue_to(n):
        if burst: n = n // 3 * 3
        n = min(n, N)
        while st["issued"] < n:
            i = st["issued"]
            assert i - RR < st["consumed"], (i, st)
            g, j = (i % 96) // 3, i % 3
            bs = 3 if burst else 1
            if st["ctl"] and (j == 0 or not burst):
                hb, hm, hs = [int(c, 36) for c in (WK if i < NK else (WV if i < N - NE else WE))]
                hw = lambda h: (h + (i & 1)) // 2 - bs
                if hw(hb) < RB - bs: A(f"s_waitcnt vmcnt({hw(hb)})")
                A(f"s_cmp_eq_u32 s58, 2\ns_cbranch_scc1 L_i{i}\ns_waitcnt vmcnt({hw(hm)})\ns_cbranch_vccz L_i{i}\ns_waitcnt vmcnt({hw(hs)})\nL_i{i}:")
            vm.op(f"buffer_load_dwordx4 v[{slot(i)}:{slot(i)+3}], v1, s[{28 if i < 96 else 32}:{31 if i < 96 else 35}], s53 offen offset:{j*128} {kvpol}", i)
            st["issued"] += 1
            if j == 2: nextoff((g + 1) % 32)
            if st["issued"] == N:
                A(f"s_barrier ; B15: last V load issued\n;padon\nv_mov_b32 v0, 0\nds_read_b128 v[{Q}:{Q+3}], v0 offset:{L_FS}\nds_read_b32 v73, v0 offset:{L_UNI}")
                A(f"v_mbcnt_lo_u32_b32 v2, -1, 0\nv_mbcnt_hi_u32_b32 v2, -1, v2\ns_add_u32 s87, s87, 0x07050301\ns_movk_i32 s92, 0xff\nv_and_b32 v72, 3, v2\nv_lshlrev_b32 v72, 3, v72\nv_lshrrev_b32 v72, v72, s87\nv_lshlrev_b32 v2, 2, v2\nv_lshl_add_u32 v2, s3, 8, v2")
                A(f"s_lshl_b32 s15, s6, 3\ns_add_u32 s15, s15, s7\ns_mul_i32 s15, s15, {OS}\ns_add_u32 s15, s15, {WS_O}")
    A("s_waitcnt lgkmcnt(0)")
    if prio: A(f"s_setprio {prio}")
    issue_to(R00)
    if BA: A("s_barrier")
    issue_to(R0)
    eload()
    masks(A)
    for g in range(32): A(f"v_mov_b32 v{S+g}, 0")
    A(f"v_mov_b32 v{M}, 0xff800000")
    A("s_mov_b32 s56, 0x3d93cd3a\ns_mov_b32 s57, 0x3fb8aa3b")
    A(f"v_and_b32 v2, 7, v0\nv_lshlrev_b32 v2, 4, v2")
    A(f"v_lshrrev_b32 v3, 5, v0\nv_lshl_add_u32 v3, s3, 1, v3\nv_mul_u32_u24 v3, 768, v3\nv_lshl_add_u32 v3, v2, 1, v3\nv_and_b32 v{T0}, 16, v0\nv_add_u32 v3, v3, v{T0}")
    win = lambda i: R0 if i < N0 else (RB if st['ctl'] else (R2 if i >= N - T2 else R))
    def step(i):
        vm.wait(i); issue_to(i + 1 + win(i))
        if pace and i in (N - 5, N - 3): A("s_barrier ; BP")
        if i == N - TM:
            A("s_barrier ; BM")
        if i == CS: st["ctl"] = 1; A(f"s_mov_b32 s58, 1\ns_mov_b64 vcc, 0\ns_lshl_b32 s54, s3, 2\nv_mov_b32 v0, s54")
        if st["ctl"] and st["issued"] < N:
            if i % PS == 0: A(f"v_mov_b32 v2, {i}\nds_read_b32 v75, v0 offset:{L_MODE}\nds_write_b32 v0, v2 offset:{L_PROG}")
            if i % PS == 1 and i > CS + 1: A(f"s_waitcnt lgkmcnt(0)\nv_readfirstlane_b32 s58, v75\nv_cmp_eq_u32 vcc, 0, v75")
        if stamps == 4 and i in (0, 16, NB - 1, 95, 143): stamp({0: 1, 16: 2, NB - 1: 3, 95: 5, 143: 6}[i])
    def kgroups(gs):
        for e in range(12):
            for g in gs: A(f"v_dot2c_f32_bf16 v{S+g}, v{slot(3*g + e//4) + e%4}, v{Q+e}")
        st["consumed"] = 3 * gs[-1] + 3
        red8(A, "v_add_f32", [S + g for g in gs])
        if mimic:
            for g in gs: A(f"v_cvt_pk_bf16_f32 v{S+g}, v{S+g}, v{S+g}")
            for g in gs: A(f"v_and_b32 v{S+g}, s55, v{S+g}")
        for g in gs: A(f"v_mul_f32 v{S+g}, s56, v{S+g}")
        if mimic:
            for g in gs: A(f"v_cvt_pk_bf16_f32 v{S+g}, v{S+g}, v{S+g}")
            for g in gs: A(f"v_and_b32 v{S+g}, s55, v{S+g}")
        for g in gs: A(f"v_max_f32 v{M}, v{M}, v{S+g}")
    i = 0
    while i < NB:
        step(i); i += 1
        if B02 and i == B02: A("s_barrier ; B02")
    A("s_barrier ; B1: q ready")
    if stamps == 4: stamp(4)
    for j in range(3): A(f"ds_read_b128 v[{Q+4*j}:{Q+4*j+3}], v2 offset:{L_Q + 128*j}")
    A("s_waitcnt lgkmcnt(0)")
    gk = 0
    while gk < 32:
        avail = min(i, 96) // 3 - gk
        if avail > 0:
            n = min(avail, CU); kgroups(list(range(gk, gk + n))); gk += n
        if gk < 32 : step(i); i += 1
    redhi(A, "v_max_f32", M, T0)
    A(f"v_mul_f32 v{M}, s57, v{M}")
    for q4 in range(SP):
        step(i); i += 1
        gs = range(32 * q4 // SP, 32 * (q4 + 1) // SP)
        for g in gs: A(f"v_fma_f32 v{S+g}, v{S+g}, s57, -v{M}")
        for g in gs: A(f"v_exp_f32 v{S+g}, v{S+g}")
        for g in gs:
            if g == 1: A(f"v_add_f32 v{LS}, v{S}, v{S+1}")
            elif g > 1: A(f"v_add_f32 v{LS}, v{LS}, v{S+g}")
    step(i); i += 1
    redhi(A, "v_add_f32", LS, T0)
    A(f"v_min_u32 v{M}, -2, v{M}\nv_min_u32 v{LS}, -2, v{LS}")
    A(f"s_lshl_b32 s54, s3, 3\nv_mov_b32 v{T0}, s54\nds_write_b64 v{T0}, v[{M}:{LS}] offset:{L_ML}")
    def pbuild(a, r): A(f"v_cvt_pk_bf16_f32 v{r}, v{r}, v{r}"); abuild(A, a, r)
    c = 96
    pbuild(AB, S)
    while c < N:
        while c < i:
            g, j = (c - 96) // 3, c % 3
            mfma(A, ACC + 4 * j, AB + 4 * (g & 1), slot(c), first=(g == 0))
            c += 1; st["consumed"] = c
            if j == 0 and g < 31: pbuild(AB + 4 * ((g + 1) & 1), S + g + 1)
        if i < N: step(i); i += 1
    A("s_mov_b32 exec_lo, 0x00ff00ff\ns_mov_b32 exec_hi, 0xff00ff00")
    for j in range(3): A(f"ds_write_b128 v3, v[{ACC+4*j}:{ACC+4*j+3}] offset:{L_P + 256*j}")
    A("s_waitcnt lgkmcnt(0)")
    if stamps == 4:
        A("s_mov_b64 exec, -1\ns_cmp_lg_u32 s3, 0\ns_cbranch_scc1 L_nost"); putst(RING); A("L_nost:")
    A("s_mov_b64 exec, -1\ns_cmp_eq_u32 s3, 3\ns_barrier ; B2\ns_cbranch_scc1 L_end")
    U = Q + 4
    for r in range(4): A(f"ds_read2st64_b32 v[{U+2*r}:{U+2*r+1}], v2 offset0:{L_P//256 + 6*r} offset1:{L_P//256 + 6*r + 3}")
    for r in range(4): A(f"s_waitcnt lgkmcnt({3-r})\nv_add_f32 v{U+2*r}, v{U+2*r}, v{U+2*r+1}\n" + (f"v_mul_f32 v{U}, v{Q}, v{U}" if r == 0 else f"v_fmac_f32 v{U}, v{Q+r}, v{U+2*r}"))
    A(f"v_bfi_b32 v{U}, s92, v72, v{U}")
    if fast: A(f"buffer_store_dword v{U}, v2, s[24:27], s15 offen\ns_add_u32 s15, s15, {WS_OB - WS_O}")
    A(f"v_readfirstlane_b32 s9, v73\ns_cmp_eq_u32 s9, {1 if uni == 1 else 2}\ns_cbranch_scc1 L_ou\nbuffer_store_dword v{U}, v2, s[24:27], s15 offen sc1\nL_ou:")
    A(f"s_cmp_ge_u32 s5, 30\ns_cbranch_scc1 L_end")
    if hb: A("s_barrier ; BP")
    A("s_barrier ; B3")

    A(";padoff\nL_end:\ns_endpgm")
    if "e" in lst or "r" in lst:
        A(""".globl empty_kernel
.p2align 8
.type empty_kernel,@function
empty_kernel:
""" + (reporter(ri, rm, rk) if "r" in lst else "") + """
s_endpgm
.section .rodata,"a"
.p2align 6
.amdhsa_kernel empty_kernel
.amdhsa_next_free_vgpr 32
.amdhsa_next_free_sgpr 32
.amdhsa_accum_offset 32
.amdhsa_group_segment_fixed_size 0
.amdhsa_kernarg_size 96
.amdhsa_user_sgpr_count 2
.amdhsa_user_sgpr_kernarg_segment_ptr 1
.amdhsa_system_sgpr_workgroup_id_x 1
.end_amdhsa_kernel""")
    A(f""".section .rodata,"a"
.p2align 6
.amdhsa_kernel {NAME}_kernel
.amdhsa_next_free_vgpr 256
.amdhsa_next_free_sgpr 96
.amdhsa_accum_offset 256
.amdhsa_group_segment_fixed_size 0
.amdhsa_kernarg_size 96
.amdhsa_user_sgpr_count 2
.amdhsa_user_sgpr_kernarg_segment_ptr 1
.amdhsa_system_sgpr_workgroup_id_x 1
.amdhsa_float_denorm_mode_32 3
.end_amdhsa_kernel""")
    txt = A.finish()
    txt = A.pads(txt, hop, 1) if hop else txt.replace(";padon\n", "").replace(";padoff\n", "")
    return HDR + txt.replace(".amdgcn_target", DOC + ".amdgcn_target", 1)
if __name__ == "__main__":
    for spec in sys.argv[1:]:
        kw = {}; out = None
        for p in spec.split(","):
            k, v = p.split("=")
            if k == "out": out = v; continue
            kw[k] = int(v) if v.lstrip("-").isdigit() else v.replace("+", " ").replace("none", "")
        fn = out or ("k_" + spec.replace(",", "_").replace("=", "").replace("+", "") + ".s")
        open(fn, "w").write(gen(**kw))
        print(fn)
```

```python
import sys
from asmlib import Asm
NAME = "parallel_sum__gqa_block_cached__glu_gated_geglu__decode"
HDR = open("cdna_kernels/" + NAME + ".s.ref").read().split("; Override launch")[0]
WS_E, WS_O, WS_F, WS_Y, WS_ML, WS_OB, WS_Q = 0, 8192, 204800, 303104, 376832, 393216, 589824
WS_USED = 1310720
WS_DB = 917504
L_P, L_Q, L_Y = 0, 6144, 6656
L_PROG, L_MODE, L_ML, L_FS = 8704, 8720, 8736, 8768
WS_C = 364544
L_UNI = 8784
LDS_BYTES = 8800
WS_G = WS_C + 256
DPPM = "row_mask:0xf bank_mask:0xf"
SPIN = 1 << 22
DOC = """;
;  waves 4..7 of workgroups 240..249: sum the 24 partials of a column, add x, write the output.
"""
def srd(A, r, off, size):
    A(f"s_load_dwordx2 s[{r}:{r+1}], s[0:1], {off}")
    A(f"s_mov_b32 s{r+2}, {size}\ns_mov_b32 s{r+3}, 0x20000")
def red8(A, op, rs):
    for mod in ("quad_perm:[1,0,3,2]", "quad_perm:[2,3,0,1]", "row_half_mirror"):
        for r in rs: A(f"{op}_dpp v{r}, v{r}, v{r} {mod} {DPPM}")
def redhi(A, op, r, t, steps=(8, 16, 32)):
    if 8 in steps: A(f"{op}_dpp v{r}, v{r}, v{r} row_ror:8 {DPPM}")
    if 16 in steps: A(f"v_mov_b32 v{t}, v{r}\nv_permlane16_swap_b32 v{r}, v{t}\n{op} v{r}, v{r}, v{t}")
    if 32 in steps: A(f"v_mov_b32 v{t}, v{r}\nv_permlane32_swap_b32 v{r}, v{t}\n{op} v{r}, v{r}, v{t}")
def masks(A):
    A("v_and_b32 v2, 1, v0\nv_lshlrev_b32 v2, 4, v2\nv_mov_b32 v3, 0xffff\nv_lshlrev_b32 v3, v2, v3\nv_bfe_u32 v2, v0, 1, 2")
    for w in range(4): A(f"v_cmp_eq_u32 vcc, {w}, v2\nv_cndmask_b32 v{4+w}, 0, v3, vcc")
def abuild(A, a, pk):
    for w in range(4): A(f"v_and_b32 v{a+w}, v{4+w}, v{pk}")
def mfma(A, d, a, b, first=False):
    c = "0" if first else f"v[{d}:{d+3}]"
    A(f"v_mfma_f32_16x16x32_bf16 v[{d}:{d+3}], v[{a}:{a+3}], v[{b}:{b+3}], {c}")
class VM:
    def __init__(s, A): s.A = A; s.n = 0; s.at = {}
    def op(s, text, key=None): s.A(text); s.at[key] = s.n; s.n += 1
    def wait(s, key): s.A(f"s_waitcnt vmcnt({s.n - 1 - s.at[key]})")

def reporter(ri, rm, rk):
    A = Asm()
    A("s_cmp_ge_u32 s2, 1\ns_cbranch_scc1 L_rend")
    srd(A, 8, 88, 402653184)
    A(f"v_lshlrev_b32 v1, 6, v0\ns_mov_b32 s12, {64<<20}\ns_waitcnt lgkmcnt(0)")
    for e in range(4):
        A(f"buffer_load_dword v{4+e}, v1, s[8:11], s12 offen\nbuffer_load_dword v{8+e}, v1, s[8:11], s12 offen offset:{8*ri}\ns_add_u32 s12, s12, 4096")
    A("s_waitcnt vmcnt(0)\nv_readfirstlane_b32 s13, v4\ns_sub_u32 s13, s13, 100000")
    for e in range(8): A(f"v_subrev_u32 v{4+e}, s13, v{4+e}")
    A("v_min_u32 v4, v4, v5\nv_min3_u32 v4, v4, v6, v7")
    red8(A, "v_min_u32", [4]); redhi(A, "v_min_u32", 4, 12)
    for e in range(4): A(f"v_sub_u32 v{8+e}, v{8+e}, v4")
    op = {"max": "v_max_u32", "min": "v_min_u32", "avg": "v_add_u32"}[rm]
    A(f"{op} v8, v8, v9\n{op} v10, v10, v11\n{op} v8, v8, v10")
    red8(A, op, [8]); redhi(A, op, 8, 12)
    A("v_readfirstlane_b32 s14, v8")
    if rm == "avg": A("s_lshr_b32 s14, s14, 8")
    A(f"s_mul_i32 s14, s14, {rk}\ns_min_u32 s14, s14, 100000\ns_memrealtime s[16:17]\ns_waitcnt lgkmcnt(0)")
    A("L_rs:\ns_memrealtime s[18:19]\ns_waitcnt lgkmcnt(0)\ns_sub_u32 s18, s18, s16\ns_cmp_lt_u32 s18, s14\ns_cbranch_scc1 L_rs\nL_rend:")
    return A.finish()
def gen(R=5, R0=5, RR=45, NB=38, N0=10, R2=10, T2=16, CU=3, SP=4, stamps=0, kvpol="nt", wqpol="nt", wpol="nt", prio=0, mimic=1, B02=12, fast=1, hop=0, al=8, al2=0, al3=0, sh=0, FB=32, pt=0, yp=3, QS=1024, q2=1, d2=1, uni=1, hb=5, re=0, ks=0, fe=1, g2=1, op=0, oq=0, sw=0, PB=0, NE=0, WE='gba', r4=1, cpol='sc1', opol='', gate=0, qf=0, abl='', yld='sc1', yw=1, BA=10, ff=1, R00=2, RF=2, TM=72, NL=8, ctl=1, RS=5, RB=8, TH=12, TB=-16, CE=21, cst="", cw=0, il=2, IC=1, burst=0, rho=616, CS=48, xc=0, TX=0, XG=8, XE=12, GS=3328, xw=1, CX=512, cld='sc1', svc=1, WK='dba', WV='eba', tv=0, tw=0, pace=0, NK=96, wdt=2, fr=0, PS=3,  lst="", ri=7, rm="max", rk=2):
    A = Asm()
    OS, WS_O, WS_OB = (1024, WS_Q, WS_Q + 262144) if oq else (768, 8192, 393216)
    def stamp(i):
        if stamps: A(f"s_memrealtime s[{64+2*i}:{65+2*i}]")
    def putst(base):
        stamp(7); A("s_waitcnt lgkmcnt(0)")
        for e in range(16): A(f"v_mov_b32 v{base+e}, s{64+e}")
        A(f"s_lshl_b32 s8, s2, 6\ns_add_u32 s8, s8, {64<<20}\nv_mov_b32 v1, 0")
        for e in range(4): A(f"buffer_store_dwordx4 v[{base+4*e}:{base+4*e+3}], v1, s[24:27], s8 offen offset:{16*e}")
    if not lst: A(f"; @launch grid=(256,1,1) block=(512,1,1) lds={LDS_BYTES}")
    for c in lst:
        if c == "m": A(f"; @launch kernel={NAME}_kernel grid=(256,1,1) block=(512,1,1) lds={LDS_BYTES}")
        else: A(f"; @launch kernel=empty_kernel grid=(1,1,1) block=(64,1,1) lds=0")
    A('.amdgcn_target "amdgcn-amd-amdhsa--gfx950"\n.text')
    A(f".globl {NAME}_kernel\n.p2align 8\n.type {NAME}_kernel,@function\n{NAME}_kernel:")
    for r, off in ((20, 0), (16, 24), (24, 88), (28, 8), (32, 16)): A(f"s_load_dwordx2 s[{r}:{r+1}], s[0:1], {off}")
    stamp(0)
    A("v_lshrrev_b32 v1, 6, v0\nv_and_b32 v0, 63, v0\ns_cmp_ge_u32 s2, 256\nv_readfirstlane_b32 s3, v1\ns_cbranch_scc1 L_end")
    A("s_and_b32 s4, s2, 7\ns_lshr_b32 s5, s2, 3\ns_lshl_b32 s6, s4, 2\ns_and_b32 s8, s5, 3\ns_add_u32 s6, s6, s8\ns_lshr_b32 s7, s5, 2")
    A(f"s_mov_b32 s26, {WS_USED if not stamps else 402653184}\ns_mov_b32 s27, 0x20000\ns_mov_b32 s55, 0xffff0000")
    if sw: A("s_xor_b32 s3, s3, 4")
    A("s_cmp_lt_u32 s3, 4\ns_cbranch_scc1 L_stream")
    A("; ---- aux waves 4..7: layernorm, q projection, FFN, output projection, hand-offs")
    A("s_mov_b32 s18, 7864320\ns_mov_b32 s19, 0x20000\ns_movk_i32 s22, 1280\ns_mov_b32 s23, s19")
    A("s_sub_u32 s3, s3, 4")
    XS, X0, PK, ACC, AB, T, RING = 8, 14, 26, 48, 60, 68, 96
    VQ, VY, VC, VR, VO = 1, 45, 46, 47, 44
    G = 28
    A(f"v_lshrrev_b32 v{VR}, 3, v0\nv_and_b32 v{VC}, 7, v0\nv_lshlrev_b32 v{VC}, 4, v{VC}")
    A("s_cmp_lt_u32 s3, 2\ns_cbranch_scc1 L_q0")
    def eload(): A(f"s_load_dword s87, s[24:25], {WS_E}")
    def etags():
        A("s_add_u32 s87, s87, 0x07050301\ns_and_b32 s88, s87, 0xff\ns_bfe_u32 s89, s87, 0x80008\ns_bfe_u32 s90, s87, 0x80010\ns_lshr_b32 s91, s87, 24\ns_movk_i32 s92, 0xff")
        if PB: A(f"s_getreg_b32 s94, hwreg(HW_REG_XCC_ID, 0, 1)\ns_mul_i32 s94, s94, {-32*PB}\ns_add_i32 s94, s94, {16*PB}")
        A("s_getreg_b32 s93, hwreg(HW_REG_XCC_ID, 0, 4)\ns_lshl_b32 s93, s93, 12\ns_xor_b32 s93, s93, s87")
    A("s_waitcnt lgkmcnt(0)"); eload()
    if BA: A("s_barrier ; BA")
    stamp(1); stamp(2)
    A("s_branch L_idle\nL_q0:")
    A(f"v_mul_u32_u24 v2, 20, v0\nv_mul_u32_u24 v3, 20, v{VR}\ns_mul_i32 s10, s7, 160")
    A(f"v_mul_u32_u24 v{VQ}, 122880, v{VR}\nv_add_u32 v{VQ}, v{VQ}, v{VC}")
    A("s_mul_i32 s52, s7, 983040\ns_mul_i32 s12, s6, 384\ns_add_u32 s52, s52, s12")
    def rb(r): A(f"v_cvt_pk_bf16_f32 v{r}, v{r}, v{r}\nv_and_b32 v{r}, s55, v{r}")
    A("s_waitcnt lgkmcnt(0)")
    A(f"buffer_load_dwordx4 v[{XS}:{XS+3}], v2, s[20:23], 0 offen\nbuffer_load_dword v{XS+4}, v2, s[20:23], 0 offen offset:16")
    A(f"buffer_load_dwordx4 v[{X0}:{X0+3}], v3, s[20:23], s10 offen\nbuffer_load_dword v{X0+4}, v3, s[20:23], s10 offen offset:16")
    eload()
    A("s_cmp_eq_u32 s3, 1\ns_cbranch_scc1 L_w1")
    for g in range(10):
        for j in range(3): A(f"buffer_load_dwordx4 v[{RING+12*g+4*j}:{RING+12*g+4*j+3}], v{VQ}, s[16:19], s52 offen offset:{128*j} {wqpol}")
        if g < 9: A("s_add_u32 s52, s52, 12288")
        if g == BA - 1: A("s_barrier ; BA")
    A("s_waitcnt vmcnt(30)\ns_branch L_ln\nL_w1:")
    def ffnloads():
        srd(A, 28, 48, 1966080); srd(A, 32, 56, 1966080)
        A(f"v_mul_u32_u24 v{VQ}, 30720, v{VR}\nv_add_u32 v{VQ}, v{VQ}, v{VC}")
        A("s_mul_i32 s52, s7, 245760\ns_lshl_b32 s12, s58, 7\ns_add_u32 s52, s52, s12\ns_waitcnt lgkmcnt(0)")
        for g in range(10):
            for mtx in range(2):
                r = RING + 8 * g + 4 * mtx
                A(f"buffer_load_dwordx4 v[{r}:{r+3}], v{VQ}, s[{28+4*mtx}:{31+4*mtx}], s52 offen offset:{(g%2)*3072} {wpol}" + ("" if fe else f"\ns_waitcnt vmcnt({RF-1})"))
            if g % 2 and g < 9: A("s_add_u32 s52, s52, 6144")
    if fe == 2: A("s_barrier ; BA")
    if fe:
        A("s_and_b32 s8, s5, 3\ns_mul_i32 s58, s4, 3\ns_add_u32 s58, s58, s8\ns_cmp_lt_u32 s8, 3\ns_cbranch_scc0 L_w1b")
        ffnloads(); A("L_w1b:")
    if BA and fe != 2: A("s_barrier ; BA")
    A("s_waitcnt vmcnt(0)\nL_ln:")
    stamp(1)
    for e in range(5): A(f"v_lshlrev_b32 v{T+2*e}, 16, v{XS+e}\nv_and_b32 v{T+2*e+1}, s55, v{XS+e}")
    SM, SV, TT = T + 10, T + 11, T + 12
    A(f"v_add_f32 v{SM}, v{T}, v{T+1}")
    for e in range(2, 10): A(f"v_add_f32 v{SM}, v{SM}, v{T+e}")
    red8(A, "v_add_f32", [SM]); redhi(A, "v_add_f32", SM, TT)
    A(f"v_mul_f32 v{SM}, 0x3acccccd, v{SM}")
    for e in range(10): A(f"v_sub_f32 v{T+e}, v{T+e}, v{SM}")
    A(f"v_mul_f32 v{SV}, v{T}, v{T}")
    for e in range(1, 10): A(f"v_fmac_f32 v{SV}, v{T+e}, v{T+e}")
    red8(A, "v_add_f32", [SV]); redhi(A, "v_add_f32", SV, TT)
    A(f"v_mul_f32 v{SV}, 0x3acccccd, v{SV}"); rb(SV); rb(SM)
    A(f"v_add_f32 v{SV}, 0x3727c5ac, v{SV}"); rb(SV)
    A(f"v_sqrt_f32 v{SV}, v{SV}"); rb(SV)
    A(f"v_rcp_f32 v{SV}, v{SV}")
    for e in range(5): A(f"v_lshlrev_b32 v{PK+2*e}, 16, v{X0+e}\nv_and_b32 v{PK+2*e+1}, s55, v{X0+e}")
    for e in range(10): A(f"v_sub_f32 v{PK+e}, v{PK+e}, v{SM}")
    for e in range(10): A(f"v_cvt_pk_bf16_f32 v{PK+e}, v{PK+e}, v{PK+e}")
    for e in range(10): A(f"v_and_b32 v{PK+e}, s55, v{PK+e}")
    for e in range(10): A(f"v_mul_f32 v{PK+e}, v{PK+e}, v{SV}")
    for e in range(10): A(f"v_cvt_pk_bf16_f32 v{PK+e}, v{PK+e}, v{PK+e}")
    A("s_cmp_eq_u32 s3, 1\ns_cbranch_scc1 L_idle")
    masks(A)
    def halfsum(n, dst):
        for r in range(n): A(f"v_mov_b32 v{T+16+r}, v{ACC+r}")
        for r in range(n): A(f"v_permlane32_swap_b32 v{ACC+r}, v{T+16+r}")
        for r in range(n): A(f"v_add_f32_dpp v{dst(r)}, v{T+16+r}, v{ACC+r} row_ror:8 {DPPM}")
        A(f"v_and_b32 v2, 16, v0\nv_lshl_add_u32 v2, v{VC}, 1, v2")
    abuild(A, AB, PK)
    for g in range(10):
        if g < 9: abuild(A, AB + 4 * ((g + 1) & 1), PK + g + 1)
        A(f"s_waitcnt vmcnt({27-3*g})")
        for j in range(3): mfma(A, ACC + 4 * j, AB + 4 * (g & 1), RING + 12 * g + 4 * j, first=(g == 0))
    A(f"v_mul_u32_u24 v{VO}, {OS//16}, v{VC}\nv_lshl_add_u32 v{VO}, v{VR}, 5, v{VO}")
    A(f"s_mul_i32 s13, s6, {8*QS}\ns_add_u32 s13, s13, {WS_Q}\ns_mul_i32 s12, s7, {QS}\ns_add_u32 s12, s12, s13\nv_mul_u32_u24 v3, {QS//16}, v{VC}\nv_lshl_add_u32 v3, v{VR}, 5, v3")
    A("s_waitcnt lgkmcnt(0)"); etags()
    for r in range(4): A(f"v_mov_b32 v{T+4*r+3}, s93")
    halfsum(12, lambda r: T + 4 * (r % 4) + r // 4)
    stamp(2)
    A("s_mov_b64 exec, 0x00ff00ff")
    for r in range(4): A(f"buffer_store_dwordx4 v[{T+4*r}:{T+4*r+3}], v2, s[24:27], s12 offen offset:{256*r} {'' if q2 else 'sc1'}")
    A("s_mov_b64 exec, -1")
    def untag(rs, tags=None, t=None):
        for n, r in enumerate(rs): A(f"v_xor_b32 v{r}, {tags[n] if tags else 's%d' % (88 + n % 4)}, v{r}")
        t = t or T + 12
        while len(rs) > 1:
            if len(rs) == 2: A(f"v_or_b32 v{t}, v{rs[0]}, v{rs[1]}"); rs = [t]
            else: A(f"v_or3_b32 v{t}, v{rs[0]}, v{rs[1]}, v{rs[2]}"); rs = rs[3:] + [t]
            t += 1
        A(f"v_and_b32 v{rs[0]}, 0xff, v{rs[0]}\nv_cmp_ne_u32 vcc, 0, v{rs[0]}")
    def gather(lab, so, base, nj, alt=0):
        A(f"s_mov_b32 s61, {SPIN - 1}\n{lab}chk:")
        if alt:
            A(f"s_and_b32 s8, s61, {FB-1}\ns_cselect_b32 s8, 0, {alt}\ns_add_u32 s8, s8, {so}"); so = "s8"
        for j in range(nj):
            for e in range(2): A(f"buffer_load_dwordx4 v[{base+8*j+4*e}:{base+8*j+4*e+3}], v{VO}, s[24:27], {so} offen offset:{256*j+(OS if g2 else 16)*e} sc1")
        A(f"s_sub_u32 s61, s61, 1\ns_waitcnt vmcnt(0)\ns_cbranch_scc1 {lab}ok")
        untag([base + r for r in range(8 * nj)])
        A(f"s_cbranch_vccnz {lab}chk\n{lab}ok:")
    if B02: A("s_barrier ; B02")
    A(f"s_mov_b32 s61, {SPIN - 1}\ns_mov_b32 s8, s13\ns_mov_b32 s9, s93\nL_qchk:")
    if q2:
        A(f"s_cmp_eq_u32 s61, {SPIN - 4}\ns_cbranch_scc0 L_qnb\ns_add_u32 s12, s12, 262144")
        for r in range(4): A(f"v_mov_b32 v{T+4*r+3}, s87")
        A("s_mov_b64 exec, 0x00ff00ff")
        for r in range(4): A(f"buffer_store_dwordx4 v[{T+4*r}:{T+4*r+3}], v2, s[24:27], s12 offen offset:{256*r} sc1")
        A("s_mov_b64 exec, -1\nL_qnb:\ns_and_b32 s8, s61, 3\ns_cselect_b32 s9, s93, s87\ns_cselect_b32 s8, 0, 262144\ns_add_u32 s8, s8, s13")
    for e in range(8): A(f"buffer_load_dwordx4 v[{RING+4*e}:{RING+4*e+3}], v3, s[24:27], s8 offen offset:{256*(e%4) + 16*(e//4)} sc1")
    A("s_sub_u32 s61, s61, 1\ns_waitcnt vmcnt(0)\ns_cbranch_scc1 L_qok")
    for e in range(8): A(f"v_xor_b32 v{RING+4*e+3}, s9, v{RING+4*e+3}")
    A(f"v_or3_b32 v{RING+3}, v{RING+3}, v{RING+7}, v{RING+11}\nv_or3_b32 v{RING+15}, v{RING+15}, v{RING+19}, v{RING+23}\nv_or3_b32 v{RING+3}, v{RING+3}, v{RING+27}, v{RING+31}")
    A(f"v_or_b32 v{RING+3}, v{RING+3}, v{RING+15}\nv_cmp_ne_u32 vcc, 0, v{RING+3}\ns_cbranch_vccnz L_qchk\nL_qok:")
    red8(A, "v_add_f32", [RING + 4 * e + j for e in range(8) for j in range(3)])
    for j in range(3):
        for e in range(0, 8, 2): A(f"v_cvt_pk_bf16_f32 v{T+4*j+e//2}, v{RING+4*e+j}, v{RING+4*e+4+j}")
    A(f"v_lshlrev_b32 v2, 4, v{VR}")
    for j in range(3): A(f"ds_write_b128 v2, v[{T+4*j}:{T+4*j+3}] offset:{L_Q + 128*j}")
    A("s_branch L_b1")
    if al3: A(f".p2align {al3}")
    A("L_idle:")
    masks(A)
    A(f"v_mul_u32_u24 v{VO}, {OS//16}, v{VC}\nv_lshl_add_u32 v{VO}, v{VR}, 5, v{VO}\ns_waitcnt lgkmcnt(0)"); etags()
    if B02: A("s_barrier ; B02")
    A("s_cmp_eq_u32 s3, 2\ns_cbranch_scc0 L_b1")
    A(f"v_and_b32 v{T}, 3, v0\nv_lshlrev_b32 v{T}, 2, v{T}\nv_mov_b32 v{T+2}, {CS}\nv_mov_b32 v{T+3}, 1\nds_write2_b32 v{T}, v{T+2}, v{T+3} offset0:0 offset1:4".replace(f"v_lshlrev_b32 v{T}, 2, v{T}", f"v_lshlrev_b32 v{T}, 2, v{T}\nv_add_u32 v{T}, {L_PROG}, v{T}"))
    A(f"v_lshrrev_b32 v{T}, 2, v{VC}\nv_mov_b32 v{T+4}, -1\nds_write_b32 v{T}, v{T+4} offset:{L_ML}\nv_mov_b32 v{T+5}, 0\nds_write_b32 v{T+5}, v{T+5} offset:{L_UNI}")
    A("L_b1:\ns_waitcnt lgkmcnt(0)")
    if stamps >= 2: stamp(3)
    A("s_barrier ; B1")
    if stamps == 1: stamp(3)
    if tv:
        A(f"s_cmp_eq_u32 s3, 2\ns_cbranch_scc0 L_notv\ns_mov_b32 s34, 100663296\ns_mov_b32 s35, 0x20000\ns_mul_i32 s8, s6, 3145728\nv_min_u32 v{T}, {(3145728 >> tv) - 1}, v0\nv_lshlrev_b32 v{T}, {tv}, v{T}")
        A(f"buffer_load_dword v{T+1}, v{T}, s[32:35], s8 offen\nL_notv:")
    A("s_and_b32 s8, s5, 3\ns_mul_i32 s58, s4, 3\ns_add_u32 s58, s58, s8\ns_cmp_lt_u32 s8, 3\ns_cselect_b32 s8, s3, 0\ns_cmp_eq_u32 s8, 1\ns_cbranch_scc0 L_noffn")
    if fe: A(f"v_mov_b32 v3, 0\nL_fw:\nds_read_b32 v2, v3 offset:{L_PROG}\ns_waitcnt lgkmcnt(0)\nv_readfirstlane_b32 s9, v2\ns_cmp_lt_u32 s9, {CS + 12}\ns_cbranch_scc1 L_fw")
    else: ffnloads()
    A("s_waitcnt vmcnt(0)")
    for g in range(10):
        abuild(A, AB + 4 * (g & 1), PK + g)
        for mtx in range(2): mfma(A, ACC + 4 * mtx, AB + 4 * (g & 1), RING + 8 * g + 4 * mtx, first=(g == 0))
    A(f"v_mov_b32 v3, 0\nds_read_b32 v{XS}, v3 offset:{L_UNI}")
    halfsum(8, lambda r: T + r)
    A(f"s_waitcnt lgkmcnt(0)\nv_readfirstlane_b32 s9, v{XS}")
    A("v_mov_b32 v3, 0xff")
    for r in range(8): A(f"v_bfi_b32 v{T+r}, v3, s{88 + r%4}, v{T+r}")
    A(f"s_lshl_b32 s8, s58, 3\ns_add_u32 s8, s8, s7\ns_lshl_b32 s8, s8, 9\ns_add_u32 s8, s8, {WS_F}")
    A("s_mov_b64 exec, 0x00ff00ff")
    if d2: A(f"buffer_store_dwordx4 v[{T}:{T+3}], v2, s[24:27], s8 offen\nbuffer_store_dwordx4 v[{T+4}:{T+7}], v2, s[24:27], s8 offen offset:256\ns_add_u32 s8, s8, {WS_DB}")
    A(f"s_cmp_eq_u32 s9, 1\ns_cbranch_scc1 L_fu\nbuffer_store_dwordx4 v[{T}:{T+3}], v2, s[24:27], s8 offen sc1\nbuffer_store_dwordx4 v[{T+4}:{T+7}], v2, s[24:27], s8 offen offset:256 sc1\nL_fu:")
    A("s_mov_b64 exec, -1\nL_noffn:")
    srd(A, 36, 32, 7864320); srd(A, 40, 64, 1966080); srd(A, 48, 72, 1280)
    A(f"v_lshrrev_b32 v3, 5, v0\nv_lshl_add_u32 v3, s3, 1, v3\nv_and_b32 v{T}, 16, v0\nv_lshl_add_u32 v{T}, v{VC}, 1, v{T}\nv_lshl_add_u32 v{VY}, v3, 8, v{T}")
    VP = 3
    A(f"v_lshlrev_b32 v{VP}, 2, v0\nv_lshl_add_u32 v{VP}, s3, 8, v{VP}")
    def readP(base, stride):
        for r in range(4): A(f"ds_read2st64_b32 v[{T+2*r}:{T+2*r+1}], v{VP} offset0:{base//256 + 2*r*stride} offset1:{base//256 + (2*r+1)*stride}")
        A("s_waitcnt lgkmcnt(0)")
    A("s_mul_i32 s8, s5, 205\ns_lshr_b32 s8, s8, 11\ns_mul_i32 s9, s8, 10\ns_sub_u32 s62, s5, s9\ns_mul_i32 s63, s4, 3\ns_add_u32 s63, s63, s8")
    A("s_lshl_b32 s8, s63, 2\ns_add_u32 s8, s8, s3\ns_lshl_b32 s9, s62, 7")
    A("s_mul_i32 s10, s8, 81920\ns_add_u32 s10, s10, s9\ns_add_u32 s11, s10, 5120\ns_mul_i32 s12, s8, 20480\ns_add_u32 s12, s12, s9")
    A(f"s_lshl_b32 s13, s63, 12\ns_lshl_b32 s14, s3, 6\ns_add_u32 s13, s13, s14\ns_add_u32 s13, s13, {WS_F}")
    A(f"s_mul_i32 s14, s8, 43691\ns_lshr_b32 s14, s14, 17\ns_mul_i32 s15, s14, 3\ns_sub_u32 s15, s8, s15\ns_mul_i32 s14, s14, {8*OS}\ns_lshl_b32 s15, s15, 8\ns_add_u32 s14, s14, s15\ns_add_u32 s14, s14, {WS_O}")
    A(f"s_mul_i32 s52, s62, 24\ns_add_u32 s52, s52, s63\ns_lshl_b32 s52, s52, 8\ns_add_u32 s52, s52, {WS_Y}")
    A(f"s_lshl_b32 s54, s6, 9\ns_add_u32 s54, s54, {WS_ML}\ns_lshl_b32 s53, s7, 2")
    VWO, VWD, VF, VML = 8, 9, 10, 12
    A(f"v_mul_u32_u24 v{VWO}, 10240, v{VR}\nv_add_u32 v{VWO}, v{VWO}, v{VC}\nv_mul_u32_u24 v{VWD}, 2560, v{VR}\nv_add_u32 v{VWD}, v{VWD}, v{VC}")
    A(f"v_lshlrev_b32 v{VF}, 3, v{VR}\nv_lshl_add_u32 v{VF}, v{VC}, 5, v{VF}")
    if g2: A(f"v_and_b32 v{VO}, 3, v0\nv_mul_u32_u24 v{VO}, {2*OS}, v{VO}\nv_lshl_add_u32 v{VO}, v{VR}, 5, v{VO}\nv_and_b32 v{T}, 4, v0\nv_lshl_add_u32 v{VO}, v{T}, 2, v{VO}")
    A(f"v_and_b32 v{VML}, 31, v0\nv_lshlrev_b32 v{VML}, 4, v{VML}")
    ML, FG, WD, WO, YA = 14, 16, 20, RING, ACC
    woload = lambda g: A(f"buffer_load_dwordx4 v[{WO+4*g}:{WO+4*g+3}], v{VWO}, s[36:39], {'s10' if g < 4 else 's11'} offen offset:{(g%4)*1280} {wpol}")
    A("s_waitcnt vmcnt(0) lgkmcnt(0)\ns_cmp_ge_u32 s5, 30\ns_cbranch_scc1 L_bm")
    def wdload(w):
        for g in range(2): A(f"buffer_load_dwordx4 v[{WD+4*g}:{WD+4*g+3}], v{VWD}, s[40:43], s12 offen offset:{g*1280} {wpol}" + ("\ns_waitcnt vmcnt(0)" if w else ""))
    if wdt == 0: wdload(1)
    for g in range(8 - NL): woload(g); A("s_waitcnt vmcnt(0)")
    def service(ph, stop):
        L = f"L_s{ph}"
        A(f"s_mul_i32 s8, s4, {CX}\ns_add_u32 s8, s8, {WS_C}\nv_mov_b32 v{T}, 0\nv_and_b32 v{T+3}, 31, v0\nv_lshlrev_b32 v{T+3}, 2, v{T+3}\nv_and_b32 v{T+10}, 3, v0\nv_lshlrev_b32 v{T+10}, 2, v{T+10}")
        A(f"s_cmp_eq_u32 s3, 3\ns_cbranch_scc0 {L}x\ns_lshl_b32 s9, s5, 2\ns_add_u32 s9, s9, s8")
        if ph == 1: A(f"s_mov_b32 s84, 0\ns_mov_b32 s85, 0\ns_lshl_b32 s86, s7, 6\ns_add_u32 s86, s86, s54\nv_lshlrev_b32 v{T+8}, 1, v{T+10}\nv_lshlrev_b32 v{T+11}, 2, v{T+10}\nv_mov_b32 v{T+13}, s87\nv_mov_b32 v{T+15}, s87")
        A(f"{L}c:\nds_read_b32 v{T+1}, v{T+10} offset:{L_PROG}")
        if ph == 1: A(f"ds_read_b64 v[{T+6}:{T+7}], v{T+8} offset:{L_ML}")
        A(f"s_waitcnt lgkmcnt(0)\nv_add_u32_dpp v{T+2}, v{T+1}, v{T+1} quad_perm:[1,0,3,2] {DPPM}\nv_add_u32_dpp v{T+2}, v{T+2}, v{T+2} quad_perm:[2,3,0,1] {DPPM}")
        A(f"v_xor_b32 v{T+5}, s93, v{T+2}\ns_mov_b64 exec, 1\nbuffer_store_dword v{T+5}, v{T}, s[24:27], s9 offen\ns_mov_b64 exec, -1")
        A(f"v_readfirstlane_b32 s61, v{T+2}")
        if ph == 1:
            A(f"s_cmp_eq_u32 s85, 1\ns_cbranch_scc1 {L}m\nv_max_u32 v{T+9}, v{T+6}, v{T+7}\nv_cmp_eq_u32 vcc, -1, v{T+9}\ns_cbranch_vccnz {L}n")
            A(f"v_mov_b32 v{T+12}, v{T+6}\nv_mov_b32 v{T+14}, v{T+7}\ns_mov_b64 exec, 15\n" + (f"buffer_store_dwordx4 v[{T+12}:{T+15}], v{T+11}, s[24:27], s86 offen\ns_add_u32 s86, s86, {WS_DB}\n" if d2 else "") + f"s_cmp_eq_u32 s84, 1\ns_cbranch_scc1 {L}u\nbuffer_store_dwordx4 v[{T+12}:{T+15}], v{T+11}, s[24:27], s86 offen sc1\n{L}u:\ns_mov_b64 exec, -1\ns_mov_b32 s85, 1\n{L}m:")
        A(f"s_cmp_ge_u32 s61, {4*stop}\ns_cbranch_scc1 {L}d\n{L}n:")
        if cw: A("s_waitcnt vmcnt(0)")
        A(f"buffer_load_dword v{T+4}, v{T+3}, s[24:27], s8 offen {cld}\ns_waitcnt vmcnt(0)\nv_xor_b32 v{T+4}, s93, v{T+4}\nv_cmp_gt_u32 vcc, 0x400, v{T+4}\nv_cndmask_b32 v{T+4}, 0, v{T+4}, vcc\nv_max_i32 v{T+4}, {4*CS}, v{T+4}")
        if ph == 1 and uni: A(f"s_cmp_eq_u64 vcc, -1\ns_cselect_b32 s84, 1, 0\nv_mov_b32 v{T+9}, s84\nds_write_b32 v{T}, v{T+9} offset:{L_UNI}")
        if fr: A(f"ds_read_b32 v{T+1}, v{T+10} offset:{L_PROG}")
        red8(A, "v_add_u32", [T + 4]); redhi(A, "v_add_u32", T + 4, T + 5, (8, 16))
        if fr: A("s_waitcnt lgkmcnt(0)")
        if PB: A(f"v_add_u32 v{T+4}, s94, v{T+4}")
        A(f"v_lshlrev_b32 v{T+1}, 7, v{T+1}\nv_sub_u32 v{T+4}, v{T+4}, v{T+1}")
        if ctl:
            A(f"v_cmp_lt_i32 vcc, {16*(TH+TB)}, v{T+4}\nv_cndmask_b32 v{T+2}, 1, 2, vcc\nv_cmp_gt_i32 vcc, {16*(TB-TH)}, v{T+4}\nv_cndmask_b32 v{T+2}, v{T+2}, 0, vcc")
            A(f"s_mov_b64 exec, 15\nds_write_b32 v{T+10}, v{T+2} offset:{L_MODE}\ns_mov_b64 exec, -1")
        A(f"s_branch {L}c\n{L}x:")
        A(f"{L}d:")
    A("L_bm:")
    service(1, 192 - TM - 12)
    A("s_barrier ; BM")
    fload = f"buffer_load_dwordx2 v[{FG}:{FG+1}], v{VF}, s[24:27], s13 offen sc1\nbuffer_load_dwordx2 v[{FG+2}:{FG+3}], v{VF}, s[24:27], s13 offen offset:256 sc1"
    A("s_cmp_ge_u32 s5, 30\ns_cbranch_scc1 L_ml")
    A(f"v_and_b32 v{T}, 1, v{VR}\nv_lshlrev_b32 v{T}, 4, v{T}\nv_lshrrev_b32 v{T}, v{T}, s87\nv_bfe_u32 v{T+1}, v{T}, 8, 8\nv_and_b32 v{T}, 0xff, v{T}")
    altsel = lambda so: f"s_and_b32 s8, s61, 3\ns_cselect_b32 s8, 0, {WS_DB if d2 else 0}\ns_add_u32 s8, s8, {so}\n"
    A(f"s_mov_b32 s61, {SPIN - 1}\nL_fchk:\n{altsel('s13')}{fload.replace('s13', 's8')}\ns_sub_u32 s61, s61, 1\ns_waitcnt vmcnt(0)\ns_cbranch_scc1 L_fok")
    untag([FG, FG + 1, FG + 2, FG + 3], [f"v{T}", f"v{T+1}"] * 2)
    A("s_cbranch_vccnz L_fchk\nL_fok:")
    red8(A, "v_add_f32", [FG, FG + 1, FG + 2, FG + 3])
    for r in range(4): rb(FG + r)
    for r in range(2):
        g_, t = FG + r, T + r
        A(f"v_mul_f32 v{t}, v{g_}, v{g_}\nv_mul_f32 v{t}, 0x3d372713, v{t}\nv_fma_f32 v{t}, v{t}, v{g_}, v{g_}\nv_mul_f32 v{t}, 0xc0135761, v{t}")
        A(f"v_exp_f32 v{t}, v{t}\nv_add_f32 v{t}, 1.0, v{t}\nv_rcp_f32 v{t}, v{t}\nv_mul_f32 v{t}, v{t}, v{g_}"); rb(t)
        A(f"v_mul_f32 v{t}, v{t}, v{FG+2+r}\nv_cvt_pk_bf16_f32 v{t}, v{t}, v{t}")
        abuild(A, AB + 4 * r, t)
    if wdt == 1: wdload(1)
    if wdt < 2:
        for g in range(2): mfma(A, YA, AB + 4 * g, WD + 4 * g, first=(g == 0))
    A(f"L_ml:\ns_cmp_lg_u32 s3, 0\ns_cbranch_scc1 L_noml\ns_mov_b32 s61, {SPIN - 1}")
    A(f"L_mchk:\n{altsel('s54')}buffer_load_dwordx4 v[{G}:{G+3}], v{VML}, s[24:27], s8 offen sc1\ns_sub_u32 s61, s61, 1\ns_waitcnt vmcnt(0)\ns_cbranch_scc1 L_mok")
    A(f"v_xor_b32 v{G+1}, s87, v{G+1}\nv_xor_b32 v{G+3}, s87, v{G+3}\nv_or_b32 v{G+1}, v{G+1}, v{G+3}\nv_cmp_ne_u32 vcc, 0, v{G+1}\ns_cbranch_vccnz L_mchk\nL_mok:")
    A(f"v_mov_b32 v{ML}, v{G}\nv_mov_b32 v{ML+1}, v{G+2}")
    A(f"v_mov_b32 v{T}, v{ML}")
    red8(A, "v_max_f32", [T]); redhi(A, "v_max_f32", T, T + 1, (8, 16))
    A(f"v_sub_f32 v{T}, v{ML}, v{T}\nv_exp_f32 v{T}, v{T}\nv_mul_f32 v{T+2}, v{T}, v{ML+1}")
    red8(A, "v_add_f32", [T + 2]); redhi(A, "v_add_f32", T + 2, T + 1, (8, 16))
    A(f"v_rcp_f32 v{T+2}, v{T+2}\nv_mul_f32 v{T}, v{T}, v{T+2}")
    A(f"v_subrev_u32 v{T+1}, s53, v0\nv_cmp_gt_u32 vcc, 4, v{T+1}\nv_lshlrev_b32 v{T+1}, 2, v{T+1}\ns_and_saveexec_b64 s[8:9], vcc\nds_write_b32 v{T+1}, v{T} offset:{L_FS}\ns_mov_b64 exec, -1\ns_waitcnt lgkmcnt(0)\nL_noml:")
    service(2, 192 - CE)
    A(f"v_and_b32 v13, 3, v0\nv_lshlrev_b32 v13, 3, v13\nv_lshrrev_b32 v13, v13, s87")
    if hop: A("; wave 6 walks a chain of branches through the closing code so that it is cached before it is needed\ns_cmp_eq_u32 s3, 2\ns_cbranch_scc0 L_nohop\ns_mov_b64 exec, 0\ns_branch L_hop0\nL_hopret:\ns_mov_b64 exec, -1\nL_nohop:")
    A("s_barrier ; B15\n;padon")
    stamp(4)
    A("s_cmp_ge_u32 s5, 30\ns_cbranch_scc1 " + ("L_spare_b" if re else "L_nowo"))
    if not pace:
        if wdt == 2: wdload(0)
        for g in range(8 - NL, 8 - hb): woload(g)
        A("L_nowo:")
    else:
        late = [lambda g=g: A(f"buffer_load_dwordx4 v[{WD+4*g}:{WD+4*g+3}], v{VWD}, s[40:43], s12 offen offset:{g*1280} {wpol}") for g in range(2) if wdt == 2] + [lambda g=g: woload(g) for g in range(8 - NL, 8)]
        p0, p1, p2 = [int(c) for c in str(pace)[-3:]]
        for f in late[:p0]: f()
        A("s_barrier ; BPa")
        for f in late[p0:p0+p1]: f()
        A("s_barrier ; BPb")
        for f in late[p0+p1:p0+p1+p2]: f()
        A("s_barrier ; B2")
        for f in late[p0+p1+p2:]: f()
        A("s_branch L_b2\nL_nowo:\ns_barrier ; BPa\ns_barrier ; BPb")
    A("s_barrier ; B2\nL_b2:")
    stamp(5)
    if not re: A("s_cmp_ge_u32 s5, 30\ns_cbranch_scc1 L_spare_b")
    def osum(b):
        for r in (0, 2): A(f"v_pk_add_f32 v[{T+16+r}:{T+17+r}], v[{b+r}:{b+r+1}], v[{b+4+r}:{b+5+r}]")
    if hb:
        A("s_barrier ; BP")
        for e in range(2): A(f"buffer_load_dwordx4 v[{G+4*e}:{G+4*e+3}], v{VO}, s[24:27], s14 offen offset:{(OS if g2 else 16)*e} sc1")
        for g in range(8 - hb, 8): woload(g)
        A(f"s_waitcnt vmcnt({hb})")
        if wdt == 2 and g2:
            for g in range(2): mfma(A, YA, AB + 4 * g, WD + 4 * g, first=(g == 0))
        untag([G + r for r in range(8)])
        if op: osum(G)
        A("s_cbranch_vccz L_ook")
    if op:
        def olook(b):
            A(f"s_and_b32 s8, s61, {FB-1}\ns_cselect_b32 s8, 0, {WS_OB - WS_O}\ns_add_u32 s8, s8, s14")
            for e in range(2): A(f"buffer_load_dwordx4 v[{b+4*e}:{b+4*e+3}], v{VO}, s[24:27], s8 offen offset:{OS*e} sc1")
        A(f"s_mov_b32 s61, {SPIN - 1}"); olook(G); A("L_ochk:")
        for b, o in ((G, G + 8), (G + 8, G)):
            olook(o); A("s_waitcnt vmcnt(2)"); untag([b + r for r in range(8)]); osum(b); A("s_cbranch_vccz L_ook")
        A("s_sub_u32 s61, s61, 1\ns_cbranch_scc0 L_ochk\nL_ook:")
        G = T + 16
    else: gather("L_o", "s14", G, 1, alt=(WS_OB - WS_O) if fast else 0)
    stamp(6)
    if wdt == 2 and not (g2 and hb):
        for g in range(2): mfma(A, YA, AB + 4 * g, WD + 4 * g, first=(g == 0))
    if g2:
        if op: A("s_nop 0")
        for r in (0, 2):
            if not op: A(f"v_pk_add_f32 v[{G+r}:{G+r+1}], v[{G+r}:{G+r+1}], v[{G+4+r}:{G+5+r}]")
        for mod in ("quad_perm:[1,0,3,2]", "quad_perm:[2,3,0,1]"):
            for r in range(4): A(f"v_add_f32_dpp v{G+r}, v{G+r}, v{G+r} {mod} {DPPM}")
        for r in range(4): A(f"v_cvt_pk_bf16_f32 v{G+r}, v{G+r}, v{G+r}")
        def obuild(a, g):
            for w in range(4):
                if (w >> 1) == (g >> 2): A(f"v_and_b32 v{a+w}, v{4+w}, v{G + g%4}")
                else: A(f"v_and_b32_dpp v{a+w}, v{G + g%4}, v{4+w} row_half_mirror {DPPM}")
    else:
        red8(A, "v_add_f32", [G + r for r in range(8)])
        for r in range(8): A(f"v_cvt_pk_bf16_f32 v{G+r}, v{G+r}, v{G+r}")
        obuild = lambda a, g: abuild(A, a, G + g)
    obuild(AB, 0)
    for g in range(8):
        if g < 7: obuild(AB + 4 * ((g + 1) & 1), g + 1)
        if g >= 8 - hb: A(f"s_waitcnt vmcnt({7 - g})")
        mfma(A, YA, AB + 4 * (g & 1), WO + 4 * g)
    A("s_mov_b32 exec_lo, 0x00ff00ff\ns_mov_b32 exec_hi, 0xff00ff00")
    A(f"ds_write_b128 v{VY}, v[{YA}:{YA+3}] offset:{L_Y}\ns_mov_b64 exec, -1\ns_waitcnt lgkmcnt(0)\ns_barrier ; B3")
    A("s_cmp_lg_u32 s3, 0\ns_cbranch_scc1 L_end")
    for r in range(4): A(f"ds_read2st64_b32 v[{T+2*r}:{T+2*r+1}], v{VP} offset0:{L_Y//256 + 2*r} offset1:{L_Y//256 + 2*r + 1}")
    for r in range(1, 4): A(f"s_waitcnt lgkmcnt({3-r})\nv_pk_add_f32 v[{T}:{T+1}], v[{T}:{T+1}], v[{T+2*r}:{T+2*r+1}]")
    A(f"v_add_f32 v{T}, v{T}, v{T+1}\nv_bfi_b32 v{T}, s92, v13, v{T}")
    A(f"buffer_store_dword v{T}, v{VP}, s[24:27], s52 offen sc1")
    def putstamps():
        if stamps and stamps != 4: putst(RING)
    putstamps()
    A("s_endpgm")
    if r4:
        if al2: A(f".p2align {al2}")
        A("L_spare_b:\ns_sub_u32 s8, s2, 240")
        A(f"s_cmp_ge_u32 s8, 10\ns_cbranch_scc1 {'L_st' if stamps else 'L_end'}")
        A(f"s_mul_i32 s9, s8, 6144\ns_lshl_b32 s10, s3, 6\ns_add_u32 s9, s9, s10\ns_add_u32 s9, s9, {WS_Y}\ns_lshl_b32 s11, s8, 7\ns_lshl_b32 s10, s3, 5\ns_add_u32 s11, s11, s10\ns_add_u32 s10, s9, 3072")
        A(f"v_and_b32 v2, 15, v0\nv_lshrrev_b32 v1, 4, v0\nv_lshlrev_b32 v1, 8, v1\nv_lshl_add_u32 v1, v2, 2, v1\nv_lshlrev_b32 v2, 1, v2\nv_and_b32 v13, 0xff, v13")
        A(f"buffer_load_ushort v{ML}, v2, s[20:23], s11 offen")
        def yround(k):
            for e in range(6): A(f"buffer_load_dword v{RING+8*(k+1)+e}, v1, s[24:27], {'s9' if e < 3 else 's10'} offen offset:{(e%3)*1024} {yld}")
        A(f"s_mov_b32 s61, {SPIN}\ns_waitcnt vmcnt(0)\nv_lshlrev_b32 v{ML}, 16, v{ML}" .replace("s_waitcnt", "s_barrier ; B2\ns_waitcnt" if re else "s_waitcnt"))
        for k in range(yp - 1): yround(k)
        A("L_ychk:")
        for k in range(yp):
            yround((k + yp - 1) % yp); Y = RING + 8 * (k + 1)
            A(f"s_waitcnt vmcnt({6*(yp-1)})")
            untag([Y + e for e in range(6)], ["v13"] * 6, t=T)
            A(f"v_pk_add_f32 v[{RING}:{RING+1}], v[{Y}:{Y+1}], v[{Y+2}:{Y+3}]\nv_pk_add_f32 v[{RING}:{RING+1}], v[{RING}:{RING+1}], v[{Y+4}:{Y+5}]")
            A("s_cbranch_vccz L_yok")
        A("s_sub_u32 s61, s61, 1\ns_cbranch_scc0 L_ychk\nL_yok:")
        stamp(6)
        A(f"v_add_f32 v{RING}, v{RING}, v{RING+1}")
        redhi(A, "v_add_f32", RING, RING + 1, (16, 32))
        A(f"v_add_f32 v{RING}, v{RING}, v{ML}\nv_cvt_pk_bf16_f32 v{RING}, v{RING}, v{RING}\ns_mov_b64 exec, 0xffff")
        A(f"buffer_store_short v{RING}, v2, s[48:51], s11 offen {opol}")
    else:
        A(f"L_spare_b:\ns_cmp_lt_u32 s3, {4-yw}\ns_cbranch_scc1 L_end\ns_sub_u32 s8, s2, 240")
        A(f"s_cmp_ge_u32 s8, 10\ns_cbranch_scc1 {'L_st' if stamps else 'L_end'}")
        A(f"s_mul_i32 s9, s8, 6144\ns_add_u32 s9, s9, {WS_Y}\ns_add_u32 s10, s9, 3072\ns_lshl_b32 s11, s8, 7")
        A(f"v_lshlrev_b32 v1, 4, v0\nv_and_b32 v2, 15, v0\nv_lshlrev_b32 v2, 3, v2\nv_lshrrev_b32 v3, 4, v0\nv_lshl_add_u32 v2, v3, 1, v2")
        A(f"buffer_load_ushort v{ML}, v2, s[20:23], s11 offen")
        for e in range(gate):
            A(f"s_lshl_b32 s12, s4, 2\ns_add_u32 s12, s12, {3-e}\ns_mul_i32 s12, s12, 6144\ns_add_u32 s12, s12, {WS_O + 512}")
            gather(f"L_g{e}", "s12", G, 1, alt=(WS_OB - WS_O) if fast else 0)
        def yround(k):
            for e in range(6): A(f"buffer_load_dwordx4 v[{RING+24*(k+1)+4*e}:{RING+24*(k+1)+4*e+3}], v1, s[24:27], {'s9' if e < 3 else 's10'} offen offset:{(e%3)*1024} {yld}")
        A(f"s_mov_b32 s61, {SPIN}")
        for k in range(yp - 1): yround(k)
        A("L_ychk:")
        for k in range(yp):
            yround((k + yp - 1) % yp); Y = RING + 24 * (k + 1)
            A(f"s_waitcnt vmcnt({6*(yp-1)})")
            untag([Y + e for e in range(24)], t=T)
            for e in (0, 2, 4):
                for r in range(0, 4, 2): A(f"v_pk_add_f32 v[{RING+4*e+r}:{RING+4*e+r+1}], v[{Y+4*e+r}:{Y+4*e+r+1}], v[{Y+4*e+4+r}:{Y+4*e+4+r+1}]")
            A("s_cbranch_vccz L_yok")
        A("s_sub_u32 s61, s61, 1\ns_cbranch_scc0 L_ychk\nL_yok:")
        stamp(6)
        for e in (2, 4):
            for r in (0, 2): A(f"v_pk_add_f32 v[{RING+r}:{RING+r+1}], v[{RING+r}:{RING+r+1}], v[{RING+4*e+r}:{RING+4*e+r+1}]")
        A(f"v_lshlrev_b32 v{ML}, 16, v{ML}\nv_permlane16_swap_b32 v{RING}, v{RING+1}\nv_permlane16_swap_b32 v{RING+2}, v{RING+3}")
        A(f"v_add_f32 v{RING}, v{RING}, v{RING+1}\nv_add_f32 v{RING+2}, v{RING+2}, v{RING+3}\nv_permlane32_swap_b32 v{RING}, v{RING+2}")
        A(f"v_add_f32 v{RING}, v{RING}, v{ML}\nv_add_f32 v{RING}, v{RING}, v{RING+2}\nv_cvt_pk_bf16_f32 v{RING}, v{RING}, v{RING}")
        A(f"buffer_store_short v{RING}, v2, s[48:51], s11 offen {opol}")
    A(f"; every workgroup has read the old tag long ago (this result depends on all of them): leave the new one\ns_lshl_b32 s8, s2, 2\ns_add_u32 s8, s8, s3\ns_cmp_lg_u32 s8, 963\ns_cbranch_scc1 L_fin\nv_mov_b32 v2, {WS_E}\nv_mov_b32 v3, s87\ns_mov_b64 exec, 1\nbuffer_store_dword v3, v2, s[24:27], 0 offen\nL_fin:")
    if stamps:
        A("s_mov_b64 exec, -1\ns_waitcnt vmcnt(0)\ns_branch L_st2\nL_st:"); stamp(6); A("L_st2:"); putstamps()
    A("s_endpgm")
    if al: A(f".p2align {al}")
    if sh: A(f".fill {sh}, 4, 0xbf800000")
    A(";padoff\nL_stream:\n; ---- stream waves 0..3: 256 keys each, K pass then V pass")
    A("s_mov_b32 s30, 100663296\ns_mov_b32 s31, 0x20000\ns_mov_b32 s34, 100663296\ns_mov_b32 s35, 0x20000")
    sw_, ss, sc = {0: (98304, 393216, IC*3072), 1: (IC*3072, 393216, 4*IC*3072), 2: (IC*3072, 4*IC*3072, 32*IC*3072), 3: (786432, IC*3072, 8*IC*3072)}[il]
    goff = lambda g: (g // IC) * sc + (g % IC) * 3072
    A(f"s_mul_i32 s52, s6, 3145728\ns_lshl_b32 s8, s7, 2\ns_add_u32 s8, s8, s3\ns_mul_i32 s9, s7, {ss}\ns_add_u32 s52, s52, s9\ns_mul_i32 s9, s3, {sw_}\ns_add_u32 s52, s52, s9")
    A("v_lshrrev_b32 v1, 3, v0\nv_mul_u32_u24 v1, 384, v1\nv_and_b32 v2, 7, v0\nv_lshl_add_u32 v1, v2, 4, v1")
    Q, ACC, AB, S, M, LS, T0, RING = 8, 20, 32, 40, 72, 73, 74, 76
    assert RING + 4 * RR <= 256
    vm = VM(A); N = 192
    st = dict(issued=0, consumed=0, ctl=0, kd=0)
    slot = lambda i: RING + 4 * (i % RR)
    def nextoff(g):
        if rho: A(f"s_add_u32 s53, s59, {32*g}\ns_and_b32 s53, s53, 1023\ns_mul_i32 s53, s53, 3072\ns_add_u32 s53, s53, s60")
        else: A(f"s_add_u32 s53, s52, {goff(g)}")
    if rho: A(f"s_mul_i32 s59, s6, {rho}\ns_add_u32 s59, s59, s8\ns_mul_i32 s60, s6, 3145728")
    nextoff(0)
    def issue_to(n):
        if burst: n = n // 3 * 3
        n = min(n, N)
        while st["issued"] < n:
            i = st["issued"]
            assert i - RR < st["consumed"], (i, st)
            g, j = (i % 96) // 3, i % 3
            bs = 3 if burst else 1
            if st["ctl"] and (j == 0 or not burst):
                hb, hm, hs = [int(c, 36) for c in (WK if i < NK else (WV if i < N - NE else WE))]
                hw = lambda h: (h + (i & 1)) // 2 - bs
                if hw(hb) < RB - bs: A(f"s_waitcnt vmcnt({hw(hb)})")
                A(f"s_cmp_eq_u32 s58, 2\ns_cbranch_scc1 L_i{i}\ns_waitcnt vmcnt({hw(hm)})\ns_cbranch_vccz L_i{i}\ns_waitcnt vmcnt({hw(hs)})\nL_i{i}:")
            vm.op(f"buffer_load_dwordx4 v[{slot(i)}:{slot(i)+3}], v1, s[{28 if i < 96 else 32}:{31 if i < 96 else 35}], s53 offen offset:{j*128} {kvpol}", i)
            st["issued"] += 1
            if j == 2: nextoff((g + 1) % 32)
            if st["issued"] == N:
                A(f"s_barrier ; B15: last V load issued\n;padon\nv_mov_b32 v0, 0\nds_read_b128 v[{Q}:{Q+3}], v0 offset:{L_FS}\nds_read_b32 v73, v0 offset:{L_UNI}")
                A(f"v_mbcnt_lo_u32_b32 v2, -1, 0\nv_mbcnt_hi_u32_b32 v2, -1, v2\ns_add_u32 s87, s87, 0x07050301\ns_movk_i32 s92, 0xff\nv_and_b32 v72, 3, v2\nv_lshlrev_b32 v72, 3, v72\nv_lshrrev_b32 v72, v72, s87\nv_lshlrev_b32 v2, 2, v2\nv_lshl_add_u32 v2, s3, 8, v2")
                A(f"s_lshl_b32 s15, s6, 3\ns_add_u32 s15, s15, s7\ns_mul_i32 s15, s15, {OS}\ns_add_u32 s15, s15, {WS_O}")
    A("s_waitcnt lgkmcnt(0)")
    if prio: A(f"s_setprio {prio}")
    issue_to(R00)
    if BA: A("s_barrier")
    issue_to(R0)
    eload()
    masks(A)
    for g in range(32): A(f"v_mov_b32 v{S+g}, 0")
    A(f"v_mov_b32 v{M}, 0xff800000")
    A("s_mov_b32 s56, 0x3d93cd3a\ns_mov_b32 s57, 0x3fb8aa3b")
    A(f"v_and_b32 v2, 7, v0\nv_lshlrev_b32 v2, 4, v2")
    A(f"v_lshrrev_b32 v3, 5, v0\nv_lshl_add_u32 v3, s3, 1, v3\nv_mul_u32_u24 v3, 768, v3\nv_lshl_add_u32 v3, v2, 1, v3\nv_and_b32 v{T0}, 16, v0\nv_add_u32 v3, v3, v{T0}")
    win = lambda i: R0 if i < N0 else (RB if st['ctl'] else (R2 if i >= N - T2 else R))
    def step(i):
        vm.wait(i); issue_to(i + 1 + win(i))
        if pace and i in (N - 5, N - 3): A("s_barrier ; BP")
        if i == N - TM:
            A("s_barrier ; BM")
        if i == CS: st["ctl"] = 1; A(f"s_mov_b32 s58, 1\ns_mov_b64 vcc, 0\ns_lshl_b32 s54, s3, 2\nv_mov_b32 v0, s54")
        if st["ctl"] and st["issued"] < N:
            if i % PS == 0: A(f"v_mov_b32 v2, {i}\nds_read_b32 v75, v0 offset:{L_MODE}\nds_write_b32 v0, v2 offset:{L_PROG}")
            if i % PS == 1 and i > CS + 1: A(f"s_waitcnt lgkmcnt(0)\nv_readfirstlane_b32 s58, v75\nv_cmp_eq_u32 vcc, 0, v75")
        if stamps == 4 and i in (0, 16, NB - 1, 95, 143): stamp({0: 1, 16: 2, NB - 1: 3, 95: 5, 143: 6}[i])
    def kgroups(gs):
        for e in range(12):
            for g in gs:
                if 3*g + e//4 >= st["kd"]: A(f"v_dot2c_f32_bf16 v{S+g}, v{slot(3*g + e//4) + e%4}, v{Q+e}")
        st["consumed"] = 3 * gs[-1] + 3
        red8(A, "v_add_f32", [S + g for g in gs])
        if mimic:
            for g in gs: A(f"v_cvt_pk_bf16_f32 v{S+g}, v{S+g}, v{S+g}")
            for g in gs: A(f"v_and_b32 v{S+g}, s55, v{S+g}")
        for g in gs: A(f"v_mul_f32 v{S+g}, s56, v{S+g}")
        if mimic:
            for g in gs: A(f"v_cvt_pk_bf16_f32 v{S+g}, v{S+g}, v{S+g}")
            for g in gs: A(f"v_and_b32 v{S+g}, s55, v{S+g}")
        for g in gs: A(f"v_max_f32 v{M}, v{M}, v{S+g}")
    i = 0
    while i < NB:
        step(i); i += 1
        if B02 and i == B02: A("s_barrier ; B02")
    A("s_barrier ; B1: q ready")
    if stamps == 4: stamp(4)
    for j in range(3): A(f"ds_read_b128 v[{Q+4*j}:{Q+4*j+3}], v2 offset:{L_Q + 128*j}")
    A("s_waitcnt lgkmcnt(0)")
    gk = 0
    while gk < 32:
        avail = min(i, 96) // 3 - gk
        if avail > 0:
            n = min(avail, CU); kgroups(list(range(gk, gk + n))); gk += n
        elif ks:
            for l in range(max(st["kd"], 3 * gk), min(i, 96)):
                for e in range(4): A(f"v_dot2c_f32_bf16 v{S+gk}, v{slot(l) + e}, v{Q + 4*(l%3) + e}")
                st["kd"] = l + 1
        if gk < 32 : step(i); i += 1
    redhi(A, "v_max_f32", M, T0)
    A(f"v_mul_f32 v{M}, s57, v{M}")
    for q4 in range(SP):
        step(i); i += 1
        gs = range(32 * q4 // SP, 32 * (q4 + 1) // SP)
        for g in gs: A(f"v_fma_f32 v{S+g}, v{S+g}, s57, -v{M}")
        for g in gs: A(f"v_exp_f32 v{S+g}, v{S+g}")
        for g in gs:
            if g == 1: A(f"v_add_f32 v{LS}, v{S}, v{S+1}")
            elif g > 1: A(f"v_add_f32 v{LS}, v{LS}, v{S+g}")
    step(i); i += 1
    redhi(A, "v_add_f32", LS, T0)
    A(f"v_min_u32 v{M}, -2, v{M}\nv_min_u32 v{LS}, -2, v{LS}")
    A(f"s_lshl_b32 s54, s3, 3\nv_mov_b32 v{T0}, s54\nds_write_b64 v{T0}, v[{M}:{LS}] offset:{L_ML}")
    def pbuild(a, r): A(f"v_cvt_pk_bf16_f32 v{r}, v{r}, v{r}"); abuild(A, a, r)
    c = 96
    pbuild(AB, S)
    while c < N:
        while c < i:
            g, j = (c - 96) // 3, c % 3
            mfma(A, ACC + 4 * j, AB + 4 * (g & 1), slot(c), first=(g == 0))
            c += 1; st["consumed"] = c
            if j == 0 and g < 31: pbuild(AB + 4 * ((g + 1) & 1), S + g + 1)
        if i < N: step(i); i += 1
    A("s_mov_b32 exec_lo, 0x00ff00ff\ns_mov_b32 exec_hi, 0xff00ff00")
    for j in range(3): A(f"ds_write_b128 v3, v[{ACC+4*j}:{ACC+4*j+3}] offset:{L_P + 256*j}")
    A("s_waitcnt lgkmcnt(0)")
    if stamps == 4:
        A("s_mov_b64 exec, -1\ns_cmp_lg_u32 s3, 0\ns_cbranch_scc1 L_nost"); putst(RING); A("L_nost:")
    A("s_mov_b64 exec, -1\ns_cmp_eq_u32 s3, 3\ns_barrier ; B2\ns_cbranch_scc1 L_end")
    U = Q + 4
    for r in range(4): A(f"ds_read2st64_b32 v[{U+2*r}:{U+2*r+1}], v2 offset0:{L_P//256 + 6*r} offset1:{L_P//256 + 6*r + 3}")
    for r in range(4): A(f"s_waitcnt lgkmcnt({3-r})\nv_add_f32 v{U+2*r}, v{U+2*r}, v{U+2*r+1}\n" + (f"v_mul_f32 v{U}, v{Q}, v{U}" if r == 0 else f"v_fmac_f32 v{U}, v{Q+r}, v{U+2*r}"))
    A(f"v_bfi_b32 v{U}, s92, v72, v{U}")
    if fast: A(f"buffer_store_dword v{U}, v2, s[24:27], s15 offen\ns_add_u32 s15, s15, {WS_OB - WS_O}")
    A(f"v_readfirstlane_b32 s9, v73\ns_cmp_eq_u32 s9, {1 if uni == 1 else 2}\ns_cbranch_scc1 L_ou\nbuffer_store_dword v{U}, v2, s[24:27], s15 offen sc1\nL_ou:")
    A(f"s_cmp_ge_u32 s5, 30\ns_cbranch_scc1 L_end")
    if hb: A("s_barrier ; BP")
    A("s_barrier ; B3")

    A(";padoff\nL_end:\ns_endpgm")
    if "e" in lst or "r" in lst:
        A(""".globl empty_kernel
.p2align 8
.type empty_kernel,@function
empty_kernel:
""" + (reporter(ri, rm, rk) if "r" in lst else "") + """
s_endpgm
.section .rodata,"a"
.p2align 6
.amdhsa_kernel empty_kernel
.amdhsa_next_free_vgpr 32
.amdhsa_next_free_sgpr 32
.amdhsa_accum_offset 32
.amdhsa_group_segment_fixed_size 0
.amdhsa_kernarg_size 96
.amdhsa_user_sgpr_count 2
.amdhsa_user_sgpr_kernarg_segment_ptr 1
.amdhsa_system_sgpr_workgroup_id_x 1
.end_amdhsa_kernel""")
    A(f""".section .rodata,"a"
.p2align 6
.amdhsa_kernel {NAME}_kernel
.amdhsa_next_free_vgpr 256
.amdhsa_next_free_sgpr 96
.amdhsa_accum_offset 256
.amdhsa_group_segment_fixed_size 0
.amdhsa_kernarg_size 96
.amdhsa_user_sgpr_count 2
.amdhsa_user_sgpr_kernarg_segment_ptr 1
.amdhsa_system_sgpr_workgroup_id_x 1
.amdhsa_float_denorm_mode_32 3
.end_amdhsa_kernel""")
    txt = A.finish()
    txt = A.pads(txt, hop, 1) if hop else txt.replace(";padon\n", "").replace(";padoff\n", "")
    return HDR + txt.replace(".amdgcn_target", DOC + ".amdgcn_target", 1)
if __name__ == "__main__":
    for spec in sys.argv[1:]:
        kw = {}; out = None
        for p in spec.split(","):
            k, v = p.split("=")
            if k == "out": out = v; continue
            kw[k] = int(v) if v.lstrip("-").isdigit() else v.replace("+", " ").replace("none", "")
        fn = out or ("k_" + spec.replace(",", "_").replace("=", "").replace("+", "") + ".s")
        open(fn, "w").write(gen(**kw))
        print(fn)
```
